```python
import torch

def _softmax(x, axis=-1):
    return torch.softmax(x, dim=axis)
def _gelu(x):
    return torch.nn.functional.gelu(x, approximate="tanh")
def _silu(x):
    return torch.nn.functional.silu(x)
def _sigmoid(x):
    return torch.sigmoid(x)
def _layernorm(x, axis=-1, eps=1e-5):
    m = x.mean(dim=axis, keepdim=True)
    v = x.var(dim=axis, keepdim=True, unbiased=False)
    return (x - m) / torch.sqrt(v + eps)
def _scatter_add(tgt, idx, src, axis=0):
    return tgt.clone().index_add_(axis, idx, src)
def _segment_sum(src, seg, n):
    out = torch.zeros((n,) + src.shape[1:], dtype=src.dtype)
    return out.index_add_(0, seg, src)
def _pad(x, pw):
    flat = tuple(v for pair in reversed(pw) for v in pair)
    return torch.nn.functional.pad(x, flat)

kernel_name = 'recurrent_scan__sliding_local_dilated__glu_gated_geglu__prompt'

def setup_inputs():

    _w = (lambda a: (lambda t: t.to(torch.bfloat16) if t.is_floating_point() else t)(torch.as_tensor(a)))
    def _A_setup():
        B, S, D = 1, 2048, 640
        return {
            "x": _w((lambda *s: torch.randn(*s, dtype=torch.bfloat16) * 0.05)(B, S, D)),
            "wqkv": _w((lambda *s: torch.randn(*s, dtype=torch.bfloat16) * 0.2)(D, 3 * D)),
            "wo": _w((lambda *s: torch.randn(*s, dtype=torch.bfloat16) * 0.2)(D, D)),
        }
    _A_in = _A_setup()

    def _B_setup():
        B, S, Dm, Df = 1, 2048, 640, 1728
        return {
            "x": _w((lambda *s: torch.randn(*s, dtype=torch.bfloat16) * 0.05)(B, S, Dm)),
            "w_gate": _w((lambda *s: torch.randn(*s, dtype=torch.bfloat16) * 0.1)(Dm, Df) * (Dm ** -0.5)),
            "w_up": _w((lambda *s: torch.randn(*s, dtype=torch.bfloat16) * 0.1)(Dm, Df) * (Dm ** -0.5)),
            "w_down": _w((lambda *s: torch.randn(*s, dtype=torch.bfloat16) * 0.1)(Df, Dm) * (Df ** -0.5)),
        }
    _B_in = _B_setup()

    return {
        "A_x": _A_in["x"],
        "A_wqkv": _A_in["wqkv"],
        "A_wo": _A_in["wo"],
        "B_x": _B_in["x"],
        "B_w_gate": _B_in["w_gate"],
        "B_w_up": _B_in["w_up"],
        "B_w_down": _B_in["w_down"],
    }

def reference(A_x, A_wqkv, A_wo, B_x, B_w_gate, B_w_up, B_w_down):
    def _A_ref(x, wqkv, wo):
        B, S, D = x.shape
        H = 32; Dh = D // H
        W, dil = 8, 2
        qkv = (lambda x, *d: x.permute(*d))((x @ wqkv).reshape(B, S, 3, H, Dh), 2, 0, 3, 1, 4)
        q, k, v = qkv[0], qkv[1], qkv[2]
        scale = Dh ** -0.5
        pos = torch.arange(S)
        off = torch.arange(W) * dil
        idx = pos[:, None] - off[None, :]
        mask = idx >= 0
        idx_c = torch.where(mask, idx, 0).reshape(-1)
        kg = k[:, :, idx_c, :].reshape(B, H, S, W, Dh)
        vg = v[:, :, idx_c, :].reshape(B, H, S, W, Dh)
        logits = torch.einsum("bhsd,bhswd->bhsw", q, kg) * scale
        logits = torch.where(mask[None, None, :, :], logits, -1e9)
        attn = _softmax(logits, axis=-1)
        o = torch.einsum("bhsw,bhswd->bhsd", attn, vg)
        return (lambda x, *d: x.permute(*d))(o, 0, 2, 1, 3).reshape(B, S, D) @ wo

    def _B_ref(x, w_gate, w_up, w_down):
        g = torch.einsum("bsd,df->bsf", x, w_gate)
        u = torch.einsum("bsd,df->bsf", x, w_up)
        h = _gelu(g) * u
        return torch.einsum("bsf,fd->bsd", h, w_down)

    x = A_x
    xn = _layernorm(x, axis=-1)
    s = _A_ref(xn, A_wqkv, A_wo)
    g = _silu(_B_ref(xn, B_w_gate, B_w_up, B_w_down))
    return x + s * g
```

```python
import re

_REG = re.compile(r"(?<![\w.])([vas])(?:\[(\d+):(\d+)\]|(\d+))(?![\w])")
TRANS = ("v_exp_f32", "v_log_f32", "v_rcp_f32", "v_rsq_f32", "v_sqrt_f32")


def regs_of(op):
    out = []
    for m in _REG.finditer(op):
        k = m.group(1)
        if m.group(4) is not None:
            out.append((k, int(m.group(4))))
        else:
            out += [(k, i) for i in range(int(m.group(2)), int(m.group(3)) + 1)]
    for special in ("vcc", "exec", "m0"):
        if re.search(r"(?<![\w])" + special + r"(?![a-z0-9])", op):
            out.append(("x", special))
    return out


def split_ops(s):
    ops, depth, cur = [], 0, ""
    for ch in s:
        if ch == "[":
            depth += 1
        if ch == "]":
            depth -= 1
        if ch == "," and depth == 0:
            ops.append(cur.strip())
            cur = ""
        else:
            cur += ch
    if cur.strip():
        ops.append(cur.strip())
    return ops


class I:
    def __init__(self, text, tag=None, need=None):
        self.text = text.strip()
        self.tag = tag
        self.need = need
        self.rd, self.wr = [], []
        self.srcc = []
        self.dpp = False
        t = self.text
        if t.endswith(":") or t.startswith(".") or t.startswith(";") or not t:
            self.mn, self.kind = "", "label" if t.endswith(":") else "dir"
            return
        sp = t.split(None, 1)
        mn = self.mn = sp[0]
        ops = split_ops(sp[1]) if len(sp) > 1 else []
        R = [regs_of(o) for o in ops]
        allr = lambda a: [r for x in R[a:] for r in x]
        if mn == "WAIT":
            self.kind = "wait"
        elif mn.startswith("v_mfma"):
            self.kind = "mfma"
            self.wr = R[0]
            self.rd = allr(1)
            self.srcc = R[3]
        elif mn.startswith("v_permlane"):
            self.kind = "perm"
            self.wr = allr(0)
            self.rd = allr(0)
        elif mn.startswith("v_"):
            base = mn.replace("_e32", "").replace("_e64", "").replace("_dpp", "").replace("_sdwa", "")
            self.kind = "trans" if base in TRANS else "valu"
            if mn.startswith("v_pk_") or mn.startswith("v_dot2"):
                self.kind = "pk"
            self.dpp = "_dpp" in mn
            self.wr = list(R[0])
            self.rd = allr(1)
            if base.startswith("v_fmac") or base.startswith("v_dot2c") or (self.dpp and "row_mask:0xf" not in t):
                self.rd += R[0]
            if base in ("v_add_co_u32", "v_addc_co_u32", "v_sub_co_u32"):
                self.wr += R[1]
                self.rd = allr(2)
        elif mn.startswith("ds_read") or mn.startswith("ds_bpermute") or mn.startswith("ds_swizzle"):
            self.kind = "ldsr"
            self.wr = R[0]
            self.rd = allr(1)
        elif mn.startswith("ds_write"):
            self.kind = "ldsw"
            self.rd = allr(0)
        elif mn.startswith("buffer_load") or mn.startswith("global_load"):
            if re.search(r"\blds\b", t):
                self.kind = "dma"
                self.rd = allr(0) + [("x", "m0")]
            else:
                self.kind = "vload"
                self.wr = R[0]
                self.rd = allr(1)
        elif mn.startswith("buffer_store") or mn.startswith("global_store"):
            self.kind = "vstore"
            self.rd = allr(0)
            self.data = R[0]
        elif mn.startswith("buffer_atomic"):
            self.kind = "vload" if "sc0" in t else "vstore"
            self.rd = allr(0)
            self.data = R[0]
            if "sc0" in t:
                self.wr = R[0]
        elif mn.startswith("buffer_inv") or mn.startswith("buffer_wbl2"):
            self.kind = "vstore"
            self.data = []
        elif mn.startswith("s_load") or mn in ("s_memtime", "s_memrealtime"):
            self.kind = "smem"
            self.wr = R[0]
            self.rd = allr(1)
        elif mn in ("s_waitcnt",):
            self.kind = "wait"
        elif mn == "s_barrier":
            self.kind = "bar"
        elif mn == "s_nop":
            self.kind = "nop"
        elif mn.startswith("s_cbranch") or mn in ("s_branch", "s_endpgm", "s_sleep", "s_setprio"):
            self.kind = "ctl"
        elif mn.startswith("s_cmp") or mn.startswith("s_bitcmp"):
            self.kind = "salu"
            self.rd = allr(0)
        elif mn.startswith("s_"):
            self.kind = "salu"
            self.wr = list(R[0])
            self.rd = allr(1)
            if "saveexec" in mn:
                self.wr.append(("x", "exec"))
        else:
            raise ValueError("unknown instr " + t)

    @property
    def scalar(self):
        return self.kind in ("salu", "wait", "bar", "nop", "ctl", "smem")

    @property
    def slots(self):
        if self.kind in ("trans", "perm"):
            return 2
        if self.kind == "ldsw":
            return 2
        if self.kind in ("label", "dir"):
            return 0
        return 1

    def states(self):
        if self.kind in ("label", "dir"):
            return 0
        if self.kind == "nop":
            return int(self.text.split()[1], 0) + 1
        return 1

    def __repr__(self):
        return self.text


def W(*tags):
    return I("WAIT", need=list(tags))


def L(text):
    out = []
    for ln in text.split("\n"):
        ln = ln.split(";")[0].strip()
        if ln:
            out.append(I(ln))
    return out


VM = ("dma", "vload", "vstore")
LG = ("ldsr", "ldsw")


def resolve_waits(code, check=True, vm0=None):
    vm, lg = list(vm0 or []), []
    smem = []
    out = []
    seen = set(i.tag for i in vm)
    for ins in code:
        if ins.kind == "wait":
            if ins.mn == "WAIT":
                nv = nl = None
                for t in ins.need:
                    if t not in seen:
                        raise ValueError("wait for unknown tag %s" % (t,))
                idx = [k for k, o in enumerate(vm) if o.tag in ins.need]
                if idx:
                    nv = len(vm) - 1 - max(idx)
                idx = [k for k, o in enumerate(lg) if o.tag in ins.need]
                if idx:
                    nl = len(lg) - 1 - max(idx)
                    if smem:
                        nl = 0
                if any(o.tag in ins.need for o in smem):
                    nl = 0
                parts = []
                if nv is not None:
                    nv = min(nv, 63)
                    parts.append("vmcnt(%d)" % nv)
                if nl is not None:
                    nl = min(nl, 15)
                    parts.append("lgkmcnt(%d)" % nl)
                if not parts:
                    continue
                ins = I("s_waitcnt " + " ".join(parts))
            m = re.search(r"vmcnt\((\d+)\)", ins.text)
            if m:
                n = int(m.group(1))
                vm = vm[len(vm) - n:] if n < len(vm) else vm
                if n == 0:
                    vm = []
            m = re.search(r"lgkmcnt\((\d+)\)", ins.text)
            if m:
                n = int(m.group(1))
                if n == 0:
                    lg, smem = [], []
                elif not smem:
                    lg = lg[len(lg) - n:] if n < len(lg) else lg
            out.append(ins)
            continue
        if check and ins.kind not in ("label", "dir"):
            pend = {}
            for o in vm + lg + smem:
                for r in o.wr:
                    pend[r] = o
            for r in ins.rd + ins.wr:
                if r in pend:
                    raise ValueError("register %s of pending '%s' touched by '%s'" % (r, pend[r].text, ins.text))
        if ins.kind in VM:
            vm.append(ins)
            if len(vm) > 63 and check:
                pass
        elif ins.kind in LG:
            lg.append(ins)
        elif ins.kind == "smem":
            smem.append(ins)
        if ins.tag is not None:
            seen.add(ins.tag)
        out.append(ins)
    return out


def fix_hazards(code, report=None):
    out = []
    VAL = ("valu", "trans", "perm", "pk")

    def dist_need(prev, cur):
        n = 0
        pw, pr = set(prev.wr), set(prev.rd)
        cr, cw = set(cur.rd), set(cur.wr)
        vec = lambda s: {r for r in s if r[0] in "va"}
        sg = lambda s: {r for r in s if r[0] == "s" or r == ("x", "vcc")}
        if prev.kind == "mfma":
            d = pw
            if cur.kind == "mfma":
                ab = set(cur.rd) - set(cur.srcc)
                c = set(cur.srcc)
                if d & ab:
                    n = max(n, 8)
                if d & c and c != d:
                    n = max(n, 6)
                if d & cw and c != d:
                    n = max(n, 8)
            elif d & (cr | cw):
                n = max(n, 8)
            if cur.kind in VAL and set(prev.srcc) & cw:
                n = max(n, 3)
        if prev.kind in VAL:
            if cur.kind == "mfma" and vec(pw) & cr:
                n = max(n, 2)
            if cur.kind == "mfma" and ("x", "exec") in pw:
                n = max(n, 4)
            if cur.kind in VAL and cur.dpp and vec(pw) & cr:
                n = max(n, 2)
            if cur.kind == "perm" and vec(pw) & cr:
                n = max(n, 2)
            if prev.kind == "trans" and cur.kind in ("valu", "perm", "pk") and pw & cr:
                n = max(n, 1)
            if cur.mn.startswith("v_readfirstlane") or cur.mn.startswith("v_readlane"):
                if vec(pw) & cr:
                    n = max(n, 1)
            if sg(pw) & cr:
                if cur.kind in VM:
                    n = max(n, 5)
                elif cur.kind in VAL:
                    n = max(n, 2)
                elif cur.kind in ("salu", "smem"):
                    n = max(n, 1)
            if prev.kind == "pk" and prev.mn.startswith("v_dot2") and vec(pw) & (cr | cw):
                if not (cur.mn == prev.mn):
                    n = max(n, 3)
            if "sdwa" in prev.mn and cur.kind in VAL and pw & cr:
                n = max(n, 1)
        if prev.kind == "vstore" and len(getattr(prev, "data", [])) >= 3 and set(prev.data) & cw:
            n = max(n, 2)
        if prev.kind == "salu" and ("x", "m0") in pw and cur.kind == "dma":
            n = max(n, 1)
        return n

    for ins in code:
        if ins.kind in ("label", "dir"):
            out.append(ins)
            continue
        need = 0
        dist = 0
        for prev in reversed(out):
            if dist >= 8:
                break
            if prev.kind in ("label", "dir"):
                continue
            n = dist_need(prev, ins)
            if n - dist > need:
                need = n - dist
                why = prev
            dist += prev.states()
        if need > 0:
            if report is not None:
                report.append((need, why.text, ins.text))
            out.append(I("s_nop %d" % (need - 1)))
        out.append(ins)
    return out


class F:
    def __init__(self, ins, lo=-10 ** 9, hi=10 ** 9):
        self.ins, self.lo, self.hi = ins, lo, hi


def paced(instrs, g0, g1, hard_end=True):
    tot = sum(0 if i.scalar else i.slots for i in instrs) or 1
    out, acc = [], 0
    for i in instrs:
        lo = g0 + int((g1 - g0 + 1) * acc / tot)
        out.append(F(i, min(lo, g1), g1 if hard_end else 10 ** 9))
        acc += 0 if i.scalar else i.slots
    return out


class Stream(list):
    ooo = 0


def ooo(items, window=24):
    s = Stream(items)
    s.ooo = window
    return s


def _indep(a, b):
    if a.scalar or b.scalar:
        return False
    mem = VM + LG
    if a.kind in mem and b.kind in mem:
        return False
    aw, ar, bw, br = set(a.wr), set(a.rd), set(b.wr), set(b.rd)
    return not (aw & br or aw & bw or ar & bw)


def schedule(mfmas, streams, stats=None):
    out = []
    pend = []
    for s in streams:
        hi = 10 ** 9
        for f in reversed(s):
            hi = min(hi, f.hi)
            f.ehi = hi
        pend.append(list(s))
    win = [getattr(s, "ooo", 0) for s in streams]
    over = 0
    waste = 0

    def cands(g):
        c = []
        for k, s in enumerate(pend):
            if not s:
                continue
            if s[0].lo <= g:
                c.append((s[0].ehi, 0, k, 0))
                for x in range(1, min(len(s), win[k])):
                    if s[x].ins.kind == "mfma" or s[x].ins.scalar:
                        break
                    if s[x].lo <= g + 3 and all(_indep(s[y].ins, s[x].ins) for y in range(x)):
                        c.append((s[x].ehi, x, k, x))
        c.sort()
        return c

    def take(c):
        f = pend[c[2]].pop(c[3])
        out.append(f.ins)
        return f

    def fill(g):
        nonlocal over, waste
        cap, first = 2, True
        while True:
            cand = cands(g)
            ins = lambda c: pend[c[2]][c[3]].ins
            if first:
                first = False
                sc = [c for c in cand if ins(c).scalar]
                if sc:
                    take(sc[0])
                    continue
            pick = None
            for c in cand:
                if ins(c).kind != "mfma" and ins(c).slots <= cap:
                    if ins(c).scalar and c[0] > g and any(
                            (not ins(d).scalar) and ins(d).kind != "mfma" and ins(d).slots <= cap for d in cand):
                        continue
                    pick = c
                    break
            if pick is None:
                mm = [c for c in cand if ins(c).kind == "mfma"]
                if mm:
                    take(mm[0])
                    waste += max(cap, 0)
                    cap, first = 2, True
                    continue
                forced = [c for c in cand if c[0] <= g and c[3] == 0]
                if not forced:
                    waste += max(cap, 0)
                    return
                pick = forced[0]
            f = take(pick)
            if f.ins.slots > cap:
                over += f.ins.slots - max(cap, 0)
            cap -= f.ins.slots

    for g, m in enumerate(mfmas):
        out.append(m)
        fill(g)
    if stats is not None:
        stats["over"] = over
        stats["waste"] = waste
        stats["left"] = [len(x) for x in pend]
    return out, pend


def text_of(code):
    o = []
    for i in code:
        o.append(i.text if i.kind in ("label",) else "  " + i.text)
    return "\n".join(o)
```

```python
import math, struct, sys
from asmlib import *

NAME = "recurrent_scan__sliding_local_dilated__glu_gated_geglu__prompt"
WS_STATS = 0x1000
WS_A2 = 0x100000
WS_B2 = 0xB00000
WS_SIZE = 0x1000000
NKB = 74
OOB = 0x40000000
LDS_BYTES = 163840


def f2u(x):
    return struct.unpack("<I", struct.pack("<f", x))[0]


def hx(x):
    return "0x%x" % (x & 0xFFFFFFFF)


LOG2E = 1.4426950408889634
GK1 = -2.0 * math.sqrt(2.0 / math.pi) * LOG2E
GK2 = GK1 * 0.044715
ATT_C = (20 ** -0.5) * LOG2E

P_X, P_QKV, P_WO, P_WG, P_WU, P_WD, P_OUT, P_DBG, P_WS = 4, 6, 8, 12, 14, 16, 18, 20, 22
R_X, R_A, R_B, R_WS, R_OUT = 24, 28, 32, 36, 40
S_W = 44


def srd(r, p, nbytes, bias=0):
    o = []
    if bias:
        o += L(f"s_sub_u32 s{r}, s{p}, {bias}\ns_subb_u32 s{r+1}, s{p+1}, 0")
    else:
        o += L(f"s_mov_b32 s{r}, s{p}\ns_mov_b32 s{r+1}, s{p+1}")
    o += L(f"s_mov_b32 s{r+2}, {hx(nbytes + bias)}\ns_mov_b32 s{r+3}, 0x20000")
    return o


def load_args():
    return L("""
        s_load_dwordx16 s[4:19], s[0:1], 0
        s_load_dwordx4 s[20:23], s[0:1], 64
    """)


def wave_id():
    return L(f"""
        v_readfirstlane_b32 s{S_W}, v0
        s_lshr_b32 s{S_W}, s{S_W}, 6
        v_and_b32 v0, 63, v0
    """)


def rowof(vd, vp, vt):
    return L(f"""
        v_and_b32 v{vt}, 0x3ff, v{vp}
        v_lshrrev_b32 v{vd}, 10, v{vp}
        v_lshl_add_u32 v{vd}, v{vt}, 1, v{vd}
    """)


def stats_loads(vb, s_p0):
    a, a2, p, t = vb + 12, vb + 13, vb + 14, vb + 15
    o = L(f"""
        v_lshrrev_b32 v{p}, 5, v0
        v_add_u32 v{p}, s{s_p0}, v{p}
    """)
    o += rowof(a, p, t)
    o += L(f"""
        v_mul_u32_u24 v{a}, 1280, v{a}
        v_and_b32 v{t}, 31, v0
        v_lshl_add_u32 v{a}, v{t}, 4, v{a}
        v_add_u32 v{a}, 4096, v{a}
        v_cmp_gt_u32 vcc, 16, v{t}
        v_mov_b32 v{a2}, {hx(OOB)}
        v_cndmask_b32 v{a2}, v{a2}, v{a}, vcc
    """)
    ld = [I(f"buffer_load_dwordx4 v[{vb}:{vb+3}], v{a}, s[{R_X}:{R_X+3}], 0 offen", tag="st_ld"),
          I(f"buffer_load_dwordx4 v[{vb+4}:{vb+7}], v{a}, s[{R_X}:{R_X+3}], 0 offen offset:512", tag="st_ld"),
          I(f"buffer_load_dwordx4 v[{vb+8}:{vb+11}], v{a2}, s[{R_X}:{R_X+3}], 0 offen offset:1024", tag="st_ld")]
    return o, ld


def half_reduce(v, t):
    o = []
    for c in ("quad_perm:[1,0,3,2]", "quad_perm:[2,3,0,1]", "row_half_mirror", "row_mirror"):
        o += L(f"v_add_f32_dpp v{v}, v{v}, v{v} {c} row_mask:0xf bank_mask:0xf")
    o += L(f"""
        v_mov_b32 v{t}, v{v}
        v_permlane16_swap_b32 v{v}, v{t}
        v_add_f32 v{v}, v{v}, v{t}
    """)
    return o


def rne_bf16(v):
    return L(f"""
        v_cvt_pk_bf16_f32 v{v}, v{v}, v{v}
        v_lshlrev_b32 v{v}, 16, v{v}
    """)


def stats_compute(vb, vu, s_tag):
    p, t = vb + 14, vb + 15
    s0, s1, q0, q1 = vu + 24, vu + 25, vu + 26, vu + 27
    o = [W("st_ld")]
    for i in range(12):
        o += L(f"v_lshlrev_b32 v{vu+2*i}, 16, v{vb+i}\nv_and_b32 v{vu+2*i+1}, 0xffff0000, v{vb+i}")
    o += L(f"v_add_f32 v{s0}, v{vu}, v{vu+2}\nv_add_f32 v{s1}, v{vu+1}, v{vu+3}")
    for i in range(2, 12):
        o += L(f"v_add_f32 v{s0}, v{s0}, v{vu+2*i}\nv_add_f32 v{s1}, v{s1}, v{vu+2*i+1}")
    o += L(f"v_add_f32 v{s0}, v{s0}, v{s1}")
    o += half_reduce(s0, t)
    o += L(f"v_mul_f32 v{s0}, {hx(f2u(-1.0/640))}, v{s0}")
    o += L(f"""
        v_and_b32 v{t}, 16, v0
        v_cmp_eq_u32 vcc, 0, v{t}
        v_cndmask_b32 v{s1}, 0, v{s0}, vcc
    """)
    for i in range(24):
        o += L(f"v_add_f32 v{vu+i}, v{vu+i}, v{s0 if i < 16 else s1}")
    o += L(f"v_mul_f32 v{q0}, v{vu}, v{vu}\nv_mul_f32 v{q1}, v{vu+1}, v{vu+1}")
    for i in range(1, 12):
        o += L(f"v_fmac_f32 v{q0}, v{vu+2*i}, v{vu+2*i}\nv_fmac_f32 v{q1}, v{vu+2*i+1}, v{vu+2*i+1}")
    o += L(f"v_add_f32 v{q0}, v{q0}, v{q1}")
    o += half_reduce(q0, t)
    o += L(f"v_mul_f32 v{q0}, {hx(f2u(1.0/640))}, v{q0}")
    o += rne_bf16(q0)
    o += L(f"v_add_f32 v{q0}, {hx(f2u(1e-5))}, v{q0}")
    o += rne_bf16(q0)
    o += L(f"v_sqrt_f32 v{q0}, v{q0}")
    o += rne_bf16(q0)
    o += rne_bf16(s0)
    d = vb
    o += L(f"""
        v_mov_b32 v{d}, v{s0}
        v_mov_b32 v{d+1}, s{s_tag}
        v_mov_b32 v{d+2}, v{q0}
        v_mov_b32 v{d+3}, s{s_tag}
        v_lshlrev_b32 v{p}, 4, v{p}
        v_add_u32 v{p}, {WS_STATS}, v{p}
        v_and_b32 v{t}, 31, v0
        v_cmp_eq_u32 vcc, 0, v{t}
        v_mov_b32 v{t}, {hx(OOB)}
        v_cndmask_b32 v{p}, v{t}, v{p}, vcc
    """)
    o.append(I(f"buffer_store_dwordx4 v[{d}:{d+3}], v{p}, s[{R_WS}:{R_WS+3}], 0 offen sc1", tag="st_st"))
    return o


def side_job(s_kb, lab):
    ra, rb, t, u = 50, 51, 52, 53
    so = 54
    lb = 58
    o = L(f"""
        s_cmp_ge_u32 s{s_kb}, 54
        s_cbranch_scc1 {lab}_o
        s_cmp_ge_u32 s{s_kb}, 26
        s_cselect_b32 s{t}, 26, 0
        s_cselect_b32 s{u}, 64, 0
        s_cmp_ge_u32 s{s_kb}, 52
        s_cselect_b32 s{u}, 0, s{u}
        s_sub_u32 s{t}, s{s_kb}, s{t}
        s_lshr_b32 s{ra}, s{t}, 1
        s_lshl_b32 s{ra}, s{ra}, 7
        s_and_b32 s{t}, s{t}, 1
        s_lshl_b32 s{t}, s{t}, 5
        s_add_u32 s{ra}, s{ra}, s{t}
        s_add_u32 s{ra}, s{ra}, s{u}
        s_add_u32 s{rb}, s{ra}, 16
    """)
    o += srd(R_A, P_WD, 1728 * 1280)
    o += L(f"""
        s_branch {lab}_go
        {lab}_o:
        s_sub_u32 s{t}, s{s_kb}, 54
        s_mul_i32 s{u}, s{t}, 52
        s_lshr_b32 s{u}, s{u}, 8
        s_mul_i32 s{ra}, s{u}, 5
        s_sub_u32 s{t}, s{t}, s{ra}
        s_mul_i32 s{u}, s{u}, 160
        s_lshr_b32 s{ra}, s{t}, 1
        s_mul_i32 s{ra}, s{ra}, 80
        s_and_b32 s{rb}, s{t}, 1
        s_lshl_b32 s{rb}, s{rb}, 5
        s_add_u32 s{ra}, s{ra}, s{rb}
        s_add_u32 s{rb}, s{ra}, 16
        s_cmp_eq_u32 s{t}, 4
        s_cselect_b32 s{ra}, 64, s{ra}
        s_cselect_b32 s{rb}, 0x90, s{rb}
        s_add_u32 s{ra}, s{ra}, s{u}
        s_add_u32 s{rb}, s{rb}, s{u}
    """)
    o += srd(R_A, P_WO, 640 * 1280)
    o += L(f"""
        {lab}_go:
        s_mul_i32 s{so}, s{ra}, 1280
        s_add_u32 s{so+1}, s{so}, {8*1280}
        s_mul_i32 s{so+2}, s{rb}, 1280
        s_add_u32 s{so+3}, s{so+2}, {8*1280}
        s_mul_i32 s{lb}, s{S_W}, 40960
        v_lshrrev_b32 v1, 3, v0
        v_mul_u32_u24 v1, 1280, v1
        v_bfe_u32 v2, v0, 1, 2
        v_bfe_u32 v3, v0, 4, 2
        v_xor_b32 v2, v2, v3
        v_lshl_add_u32 v1, v2, 5, v1
        v_and_b32 v2, 1, v0
        v_lshl_add_u32 v1, v2, 4, v1
    """)
    for l in range(10):
        for j in range(4):
            o += L(f"s_add_u32 m0, s{lb}, {l*4096 + j*1024 - 128*l}")
            o.append(I(f"buffer_load_dwordx4 v1, s[{R_A}:{R_A+3}], s{so+j} offen offset:{128*l} lds", tag=(lab, "d", l)))
    o += L(f"""
        v_lshrrev_b32 v2, 2, v0
        v_lshlrev_b32 v2, 7, v2
        v_and_b32 v3, 3, v0
        v_lshl_add_u32 v2, v3, 3, v2
        v_add_u32 v2, s{lb}, v2
        v_bfe_u32 v3, v0, 3, 2
    """)
    for c in range(4):
        o += L(f"v_xor_b32 v{4+c}, {c}, v3\nv_lshl_add_u32 v{4+c}, v{4+c}, 5, v2")
    o += L(f"""
        s_mul_i32 s{t}, s{s_kb}, 5120
        s_add_u32 s{t}, s{t}, {hx(WS_B2)}
        v_lshlrev_b32 v8, 4, v0
        v_add_u32 v8, s{t}, v8
    """)

    def reads(l):
        r = [W((lab, "d", l))]
        b = 12 + 16 * (l % 3)
        for c in range(4):
            for h in range(2):
                r.append(I(f"ds_read_b64_tr_b16 v[{b+4*c+2*h}:{b+4*c+2*h+1}], v{4+c} offset:{l*4096+h*2048}",
                           tag=(lab, "r", l)))
        return r

    o += reads(0)
    for l in range(10):
        if l + 1 < 10:
            if l >= 2:
                o.append(W((lab, "s", l - 2)))
            o += reads(l + 1)
        o.append(W((lab, "r", l)))
        b = 12 + 16 * (l % 3)
        for c in range(4):
            ct = 4 * l + c
            o += L(f"s_mov_b32 s{u}, {hx((ct//5)*NKB*5120 + (ct % 5)*1024)}")
            o.append(I(f"buffer_store_dwordx4 v[{b+4*c}:{b+4*c+3}], v8, s[{R_WS}:{R_WS+3}], s{u} offen sc1",
                       tag=(lab, "s", l)))
    return o


def k0():
    o = L("s_cmp_ge_u32 s2, 256\ns_cbranch_scc1 K0_end")
    o += load_args() + wave_id()
    o += L("s_waitcnt lgkmcnt(0)")
    o += srd(R_X, P_X, 2048 * 1280, 4096) + srd(R_WS, P_WS, WS_SIZE)
    o += L(f"s_lshl_b32 s45, s2, 3\ns_lshl_b32 s46, s{S_W}, 1\ns_add_u32 s45, s45, s46\ns_mov_b32 s47, 0x1234")
    a, ld = stats_loads(64, 45)
    o += a + ld + stats_compute(64, 80, 47)
    o += L(f"""
        s_lshr_b32 s45, s2, 1
        s_and_b32 s46, s2, 1
        s_or_b32 s46, s46, s{S_W}
        s_cmp_lg_u32 s46, 0
        s_cbranch_scc1 K0_end
        s_cmp_ge_u32 s45, {NKB}
        s_cbranch_scc1 K0_end
    """)
    o += side_job(45, "K0s")
    o += L("K0_end:\ns_endpgm")
    return o


def k2():
    AD, AS = 4, 84
    VA = 164
    VB = 168
    VW = 170
    VR = 173
    VXL = 174
    VXC = 175
    VG = 176
    VX = 180
    VT = 192
    sA, sB, sAx, sBx, sT, sRB, sCB = 46, 47, 48, 49, 50, 51, 52
    XST = 122880
    o = L("s_cmp_ge_u32 s2, 256\ns_cbranch_scc1 K2_end")
    o += load_args() + wave_id()
    o += L(f"""
        s_and_b32 s{sRB}, s2, 7
        s_lshl_b32 s{sRB}, s{sRB}, 2
        s_lshr_b32 s{sT}, s2, 6
        s_add_u32 s{sRB}, s{sRB}, s{sT}
        s_bfe_u32 s{sCB}, s2, 0x30003
        s_mul_i32 s{sAx}, s{sRB}, {NKB*4096}
        s_add_u32 s{sAx}, s{sAx}, {hx(WS_A2)}
        s_mul_i32 s{sBx}, s{sCB}, {NKB*5120}
        s_add_u32 s{sBx}, s{sBx}, {hx(WS_B2)}
        v_lshlrev_b32 v{VB}, 4, v0
        v_add_u32 v{VB+1}, 4096, v{VB}
    """)
    for t in range(4):
        o += L(f"""
            s_add_u32 s{sT}, s{S_W}, {t}
            s_and_b32 s{sT}, s{sT}, 3
            s_lshl_b32 s53, s{sT}, 10
            v_add_u32 v{VA+t}, s53, v{VB}
        """)
        if t:
            o += L(f"""
                s_mul_i32 s53, s{sT}, 30720
                s_add_u32 s53, s53, {(t-1)*5120}
                v_add_u32 v{VW+t-1}, s53, v{VB}
            """)
    o += L(f"""
        s_mul_i32 s53, s{S_W}, 30720
        v_add_u32 v{VR}, s53, v{VB}
        s_waitcnt lgkmcnt(0)
    """)
    o += srd(R_WS, P_WS, WS_SIZE) + srd(R_X, P_X, 2048 * 1280) + srd(R_OUT, P_OUT, 2048 * 1280)

    blocks = [("e", i) for i in range(7)] + [("l", i) for i in range(7)] + [("o", i) for i in range(5)]

    def setoff(bi):
        cls, i = blocks[bi]
        if i == 0:
            if cls == "e":
                r = L(f"s_mul_i32 s{sT}, s{S_W}, 7\ns_cmp_eq_u32 s{S_W}, 3\ns_cselect_b32 s{sT}, 20, s{sT}")
            elif cls == "l":
                r = L(f"s_mul_i32 s{sT}, s{S_W}, 7\ns_add_u32 s{sT}, s{sT}, 26")
            else:
                r = L(f"s_mul_i32 s{sT}, s{S_W}, 5\ns_add_u32 s{sT}, s{sT}, 54")
            r += L(f"""
                s_lshl_b32 s{sA}, s{sT}, 12
                s_add_u32 s{sA}, s{sA}, s{sAx}
                s_mul_i32 s{sB}, s{sT}, 5120
                s_add_u32 s{sB}, s{sB}, s{sBx}
            """)
            return r
        r = L(f"s_add_u32 s{sA}, s{sA}, 4096\ns_add_u32 s{sB}, s{sB}, 5120")
        if cls == "e" and i == 6:
            r += L(f"""
                s_cmp_ge_u32 s{S_W}, 2
                s_cselect_b32 s{sA}, {hx(OOB)}, s{sA}
                s_cselect_b32 s{sB}, {hx(OOB)}, s{sB}
            """)
        return r

    RING = 7
    rb_ = lambda bi: 36 * (bi % RING)

    def loads(bi):
        r = setoff(bi)
        b = rb_(bi)
        for c in range(5):
            r.append(I(f"buffer_load_dwordx4 a[{b+4*c}:{b+4*c+3}], v{VB + (c == 4)}, s[{R_WS}:{R_WS+3}], s{sB} offen "
                       f"offset:{(c % 4)*1024} sc1", tag=("blk", bi)))
        for t in range(4):
            r.append(I(f"buffer_load_dwordx4 a[{b+20+4*t}:{b+23+4*t}], v{VA+t}, s[{R_WS}:{R_WS+3}], s{sA} offen sc1",
                       tag=("blk", bi)))
        return r

    for bi in range(RING - 1):
        o += loads(bi)
    o += L(f"""
        s_lshl_b32 s{sT}, s{sRB}, 6
        s_lshl_b32 s53, s{S_W}, 4
        s_add_u32 s{sT}, s{sT}, s53
        s_mul_i32 s54, s{sCB}, 160
        s_mul_i32 s55, s{S_W}, 3072
        s_add_u32 s55, s55, {XST}
    """)
    for j in range(3):
        o += L(f"""
            v_add_u32 v{VT}, {64*j}, v0
            v_mul_u32_u24 v{VT+1}, 205, v{VT}
            v_lshrrev_b32 v{VT+1}, 11, v{VT+1}
            v_mul_u32_u24 v{VT+2}, 10, v{VT+1}
            v_sub_u32 v{VT+2}, v{VT}, v{VT+2}
            v_add_u32 v{VT+1}, s{sT}, v{VT+1}
        """)
        o += rowof(VT + 3, VT + 1, VT + 4)
        o += L(f"""
            v_mul_u32_u24 v{VT+3}, 1280, v{VT+3}
            v_lshl_add_u32 v{VT+3}, v{VT+2}, 4, v{VT+3}
            v_add_u32 v{VG+j}, s54, v{VT+3}
        """)
        if j == 2:
            o += L(f"""
                v_cmp_gt_u32 vcc, 32, v0
                v_mov_b32 v{VT}, {hx(OOB)}
                v_cndmask_b32 v{VG+j}, v{VT}, v{VG+j}, vcc
            """)
        o += L(f"s_add_u32 m0, s55, {1024*j}")
        o.append(I(f"buffer_load_dwordx4 v{VG+j}, s[{R_X}:{R_X+3}], 0 offen lds", tag="xst"))
    o += L(f"""
        v_and_b32 v{VT}, 15, v0
        v_mul_u32_u24 v{VT}, 160, v{VT}
        v_lshrrev_b32 v{VT+1}, 4, v0
        v_lshl_add_u32 v{VT}, v{VT+1}, 3, v{VT}
        v_add_u32 v{VXL}, s55, v{VT}
        v_add_u32 v{VXC}, s55, v{VB}
    """)

    def mf(acc, bi, t, c, first):
        b = rb_(bi)
        d = acc + (t * 5 + c) * 4
        return I(f"v_mfma_f32_16x16x32_bf16 v[{d}:{d+3}], a[{b+4*c}:{b+4*c+3}], a[{b+20+4*t}:{b+23+4*t}], "
                 + ("0" if first else f"v[{d}:{d+3}]"))

    mf_list, ld_stream, waits = [], [], []
    for bi in range(14):
        g0 = len(mf_list)
        waits.append(F(W(("blk", bi)), g0 - 1, g0 - 1))
        for t in range(4):
            for c in (range(5) if t % 2 == 0 else range(4, -1, -1)):
                mf_list.append(mf(AD, bi, t, c, bi == 0))
        nb = bi + RING - 1
        if nb < 19:
            ld_stream += paced(loads(nb), g0, g0 + 17)
    gS = len(mf_list)
    waits.append(F(W(*[("blk", b) for b in range(14, 19)]), gS - 1, gS - 1))
    for t in (1, 2, 3, 0):
        for c in range(5):
            for bi in range(14, 19):
                mf_list.append(mf(AS, bi, t, c, bi == 14))
    ex = []
    for t in (1, 2, 3):
        for c in range(5):
            d = AD + (t * 5 + c) * 4
            ex.append(F(I(f"ds_write_b128 v{VW+t-1}, v[{d}:{d+3}] offset:{c*1024}", tag="xd"), gS + 3 + len(ex), gS + 24))
    ex.append(F(W("xd", "xst"), gS + 26, gS + 26))
    ex.append(F(I("s_barrier"), gS + 27, gS + 27))
    dv = []
    for tt in range(3):
        for c in range(5):
            d = AD + ((tt + 1) * 5 + c) * 4
            dv.append(I(f"ds_read_b128 v[{d}:{d+3}], v{VR} offset:{tt*5120 + c*1024}", tag="rd"))
    for c in range(5):
        dv.append(I(f"ds_read_b64 v[{VX+2*c}:{VX+2*c+1}], v{VXL} offset:{c*32}", tag="rd"))
    ex += [F(i, gS + 27 + k // 2, gS + 45) for k, i in enumerate(dv)]
    sw = []
    for k, t in enumerate((1, 2, 3)):
        for c in range(5):
            d = AS + (t * 5 + c) * 4
            g = gS + 25 * k + 5 * c + 4 + 4
            sw.append(F(I(f"ds_write_b128 v{VW+t-1}, v[{d}:{d+3}] offset:{15360 + c*1024}", tag="xs"),
                        max(g, gS + 46 + 2 * len(sw)), gS + 88))
    sw.append(F(W("xs"), gS + 90, gS + 90))
    sw.append(F(I("s_barrier"), gS + 91, gS + 91))
    for tt in range(3):
        for c in range(5):
            d = AS + ((tt + 1) * 5 + c) * 4
            sw.append(F(I(f"ds_read_b128 v[{d}:{d+3}], v{VR} offset:{15360 + tt*5120 + c*1024}", tag="rs"), gS + 91, gS + 99))
    va = [W("rd")]
    for e in range(20):
        va += L(f"""
            v_add_f32 v{AD+e}, v{AD+e}, v{AD+20+e}
            v_add_f32 v{AD+40+e}, v{AD+40+e}, v{AD+60+e}
            v_add_f32 v{AD+e}, v{AD+e}, v{AD+40+e}
            v_mul_f32 v{AD+20+e}, {hx(f2u(-LOG2E))}, v{AD+e}
            v_exp_f32 v{AD+20+e}, v{AD+20+e}
            v_add_f32 v{AD+20+e}, 1.0, v{AD+20+e}
            v_rcp_f32 v{AD+20+e}, v{AD+20+e}
            v_mul_f32 v{AD+e}, v{AD+e}, v{AD+20+e}
        """)
        if e % 2 == 0:
            va += L(f"v_lshlrev_b32 v{AD+40+e}, 16, v{VX+e//2}")
        else:
            va += L(f"v_and_b32 v{AD+40+e}, 0xffff0000, v{VX+e//2}")
    vs = ooo([F(va[0], gS + 47, gS + 47)] + [F(i, gS + 47, gS + 99) for i in va[1:]], 40)
    st = {}
    pre = [w.ins for w in waits if w.lo < 0]
    body, left = schedule(mf_list, [[w for w in waits if w.lo >= 0], ex + sw, ld_stream, vs], st)
    print("K2 sched", st, file=sys.stderr)
    o += pre + body
    o.append(W("rs"))
    for e in range(0, 20, 2):
        o += L(f"""
            v_pk_add_f32 v[{AS+20+e}:{AS+21+e}], v[{AS+20+e}:{AS+21+e}], v[{AS+40+e}:{AS+41+e}]
            v_pk_add_f32 v[{AS+e}:{AS+1+e}], v[{AS+e}:{AS+1+e}], v[{AS+60+e}:{AS+61+e}]
        """)
    for e in range(0, 20, 2):
        o += L(f"v_pk_add_f32 v[{AS+e}:{AS+1+e}], v[{AS+e}:{AS+1+e}], v[{AS+20+e}:{AS+21+e}]")
    for e in range(0, 20, 2):
        o += L(f"v_pk_fma_f32 v[{AS+e}:{AS+1+e}], v[{AS+e}:{AS+1+e}], v[{AD+e}:{AD+1+e}], v[{AD+40+e}:{AD+41+e}]")
    for c in range(5):
        o += L(f"""
            v_cvt_pk_bf16_f32 v{VX+2*c}, v{AS+4*c}, v{AS+4*c+1}
            v_cvt_pk_bf16_f32 v{VX+2*c+1}, v{AS+4*c+2}, v{AS+4*c+3}
        """)
        o.append(I(f"ds_write_b64 v{VXL}, v[{VX+2*c}:{VX+2*c+1}] offset:{c*32}", tag="ow"))
    o.append(W("ow"))
    for j in range(3):
        o.append(I(f"ds_read_b128 v[{VT+4*j}:{VT+4*j+3}], v{VXC} offset:{1024*j}", tag=("or", j)))
    for j in range(3):
        o.append(W(("or", j)))
        o.append(I(f"buffer_store_dwordx4 v[{VT+4*j}:{VT+4*j+3}], v{VG+j}, s[{R_OUT}:{R_OUT+3}], 0 offen"))
    o += L("K2_end:\ns_endpgm")
    return o


XRING = 81920
XSLOT = 6272
S_P0, S_PLO, S_PN = 45, 46, 47
S_XL, S_XO = 48, 49
S_WL, S_WO = 50, 51
S_ROLE, S_RB, S_CG = 52, 53, 54
S_T = 55


def xa(t, ks):
    b = (ks * 3 + t) * 4
    return f"a[{b}:{b+3}]"


def x_setup(VXA, VXR, vt):
    o = L(f"""
        s_mul_i32 s{S_XL}, s{S_W}, {3*XSLOT}
        s_add_u32 s{S_XL}, s{S_XL}, {XRING}
        s_mov_b32 s{S_XO}, 0
        v_lshrrev_b32 v{vt}, 3, v0
        v_and_b32 v{vt+1}, 7, v0
    """)
    for j in range(6):
        o += L(f"""
            v_add_u32 v{vt+2}, {8*j+1}, v{vt}
            v_bfe_u32 v{vt+3}, v{vt+2}, 1, 3
            v_xor_b32 v{vt+3}, v{vt+3}, v{vt+1}
            v_add_u32 v{vt+2}, s{S_P0}, v{vt+2}
            v_subrev_u32 v{vt+2}, 1, v{vt+2}
        """)
        o += rowof(VXA + j, vt + 2, vt + 4)
        o += L(f"""
            v_mul_u32_u24 v{VXA+j}, 1280, v{VXA+j}
            v_lshl_add_u32 v{VXA+j}, v{vt+3}, 4, v{VXA+j}
            v_add_u32 v{VXA+j}, {4096 - 1024*(j % 4)}, v{VXA+j}
            v_subrev_u32 v{vt+2}, s{S_PLO}, v{vt+2}
            v_cmp_gt_u32 vcc, s{S_PN}, v{vt+2}
            v_mov_b32 v{vt+4}, {hx(OOB)}
        """)
        if j == 5:
            o += L(f"""
                v_cndmask_b32 v{VXA+j}, v{vt+4}, v{VXA+j}, vcc
                v_cmp_gt_u32 vcc, 56, v0
            """)
        o += L(f"v_cndmask_b32 v{VXA+j}, v{vt+4}, v{VXA+j}, vcc")
    return o


def x_setup2(VXR, vt):
    o = L(f"""
        v_and_b32 v{vt}, 15, v0
        v_bfe_u32 v{vt+1}, v0, 1, 3
        v_lshrrev_b32 v{vt+2}, 4, v0
        v_xor_b32 v{vt+1}, v{vt+1}, v{vt+2}
        v_lshlrev_b32 v{vt}, 7, v{vt}
        v_lshl_add_u32 v{vt}, v{vt+1}, 4, v{vt}
        v_add_u32 v{VXR}, s{S_XL}, v{vt}
        v_xor_b32 v{vt}, 64, v{vt}
        v_add_u32 v{VXR+1}, s{S_XL}, v{vt}
        v_and_b32 v{vt}, 31, v0
        v_lshlrev_b32 v{vt}, 2, v{vt}
        v_add_u32 v{vt}, s{S_XL}, v{vt}
        v_mov_b32 v{vt+1}, 0x3f803f80
    """)
    for s in range(3):
        o.append(I(f"ds_write_b32 v{vt}, v{vt+1} offset:{s*XSLOT}", tag="ones"))
    return o


def x_dma(st, VXA):
    o = []
    base = (st % 3) * XSLOT + 128
    for j in range(6):
        if j % 4 == 0:
            o += L(f"s_add_u32 m0, s{S_XL}, {base + 1024*j}")
        o.append(I(f"buffer_load_dwordx4 v{VXA+j}, s[{R_X}:{R_X+3}], s{S_XO} offen offset:{1024*(j % 4)} lds", tag=("x", st)))
    o += L(f"s_add_u32 s{S_XO}, s{S_XO}, 128")
    return o


def x_read(st, VXR):
    o = []
    for s in range(2):
        for t in range(3):
            o.append(I(f"ds_read_b128 {xa(t, 2*st+s)}, v{VXR+s} offset:{(st % 3)*XSLOT + t*2048}", tag=("xr", st)))
    return o


def gemm_streams(nst, ng, wdma, trread, mfma, xst, VXA, VXR, ring):
    per = ng * 6
    mf, waits, tr, dma = [], [], [], []
    total = nst * ng
    pre = []
    pre.append(W(("x", 0), "ones") if xst else None)
    if xst:
        pre += x_read(0, VXR)
    pre = [p for p in pre if p is not None]
    pre += [W(("w", 0)), I("s_barrier")]
    pre += trread(0, 0, 0) + trread(0, 1, 1)
    if xst:
        pre += [W(("xr", 0))] + x_dma(3, VXA)
    pre += [W(("t", 0, 0))]
    for k in range(total):
        st, g = divmod(k, ng)
        g0 = len(mf)
        mf += mfma(st, g, k % 3)
        if k + 1 < total:
            s1, g1 = divmod(k + 1, ng)
            need = [("t", s1, g1)]
            if g1 == 0 and s1 < xst:
                need.append(("xr", s1))
            waits.append(F(W(*need), g0 + 5, g0 + 5))
        if k + 2 < total:
            s2, g2 = divmod(k + 2, ng)
            rd = trread(s2, g2, (k + 2) % 3)
            if g2 == 0:
                tr.append(F(W(("t", st, ng - 1), ("w", s2)), g0 + 2, g0 + 2))
                tr.append(F(I("s_barrier"), g0 + 3, g0 + 3))
                tr += [F(r, g0 + 3 + i, g0 + 5 if i < 3 else g0 + 6) for i, r in enumerate(rd)]
            elif g2 == 1:
                tr += [F(r, g0 + 1 + i, g0 + 4) for i, r in enumerate(rd)]
            else:
                tr += [F(r, g0 + i, g0 + 4) for i, r in enumerate(rd)]
        if g == 0 and st + 1 < xst:
            rd = x_read(st + 1, VXR)
            dma.append(F(W(("x", st + 1)), g0 + 8 - 6, g0 + 8))
            dma += [F(r, g0 + 3 + i, g0 + 12) for i, r in enumerate(rd)]
            if st + 4 < xst:
                dma.append(F(W(("xr", st + 1)), g0 + 14, g0 + 14))
                dma += paced(x_dma(st + 4, VXA), g0 + 15, g0 + (ng - 2) * 6 + 2)
        if g == ng - 2:
            w = wdma(st + ring)
            if w:
                dma += paced(w, g0 + 4, g0 + 13 if st + 2 < xst else g0 + 4 + per // 2)
    return pre, mf, waits, tr, dma


def ffn():
    ACC = [4, 100]
    VWF = 196
    VTR = 204
    VWA = 208
    VHS = 1
    VC = 212
    VT = 224
    VXR = 248
    VXA = 250
    S_KB = 60
    S_WO2 = 64
    acc = lambda p, gu, c, t: ACC[p] + (gu * 4 + c) * 12 + t * 4
    wbuf = lambda b: ("a", 240 + 8 * b) if b < 2 else ("v", VWF)
    o = L("FFN:")
    o += L(f"""
        s_mul_i32 s{S_P0}, s{S_RB}, 188
        s_mul_i32 s{S_T}, s{S_W}, 47
        s_add_u32 s{S_P0}, s{S_P0}, s{S_T}
        s_mov_b32 s{S_PLO}, 0
        s_mov_b32 s{S_PN}, 2048
        s_lshl_b32 s{S_WL}, s{S_W}, 12
        s_mul_i32 s{S_WO}, s{S_W}, {16*3456}
        s_lshl_b32 s{S_T}, s{S_CG}, 8
        s_add_u32 s{S_WO}, s{S_WO}, s{S_T}
        s_add_u32 s{S_WO2}, s{S_WO}, 128
        s_cmp_eq_u32 s{S_CG}, 13
        s_cselect_b32 s{S_WO2}, {hx(OOB)}, s{S_WO2}
        v_lshrrev_b32 v{VT}, 3, v0
        v_mul_u32_u24 v{VT}, 3456, v{VT}
        v_and_b32 v{VT+1}, 1, v0
        v_lshl_add_u32 v{VT}, v{VT+1}, 4, v{VT}
        v_bfe_u32 v{VT+1}, v0, 1, 2
        v_bfe_u32 v{VT+2}, v0, 4, 1
        v_xor_b32 v{VT+1}, v{VT+1}, v{VT+2}
        v_lshl_add_u32 v{VWA}, v{VT+1}, 5, v{VT}
        v_xor_b32 v{VT+1}, 2, v{VT+1}
        v_lshl_add_u32 v{VWA+1}, v{VT+1}, 5, v{VT}
        v_add_u32 v{VWA+1}, {8*3456 - 1024}, v{VWA+1}
    """)
    o += x_setup(VXA, VXR, VT)
    o += L("s_waitcnt lgkmcnt(0)")
    o += srd(R_X, P_X, 2048 * 1280, 4096) + srd(R_A, P_WG, 640 * 3456) + srd(R_B, P_WU, 640 * 3456, 2048)
    o += srd(R_WS, P_WS, WS_SIZE)

    def wdma(st):
        if st >= 20:
            return None
        r = L(f"s_add_u32 m0, s{S_WL}, {(st % 4)*16384}")
        for j in range(4):
            rr = R_A if j < 2 else R_B
            r.append(I(f"buffer_load_dwordx4 v{VWA + (j & 1)}, s[{rr}:{rr+3}], s{S_WO} offen offset:{1024*j} lds", tag=("w", st)))
        if st == 9:
            r += L(f"s_mov_b32 s{S_WO}, s{S_WO2}")
        else:
            r += L(f"s_add_u32 s{S_WO}, s{S_WO}, {64*3456}")
        return r

    for st in range(3):
        o += x_dma(st, VXA) + wdma(st)
    o += wdma(3)
    o += x_setup2(VXR, VT)
    o += L(f"""
        v_lshrrev_b32 v{VT}, 5, v0
        v_lshlrev_b32 v{VT}, 12, v{VT}
        v_bfe_u32 v{VT+1}, v0, 4, 1
        v_lshl_add_u32 v{VT}, v{VT+1}, 10, v{VT}
        v_bfe_u32 v{VT+1}, v0, 2, 2
        v_lshl_add_u32 v{VT}, v{VT+1}, 7, v{VT}
        v_and_b32 v{VT+1}, 3, v0
        v_lshl_add_u32 v{VT}, v{VT+1}, 3, v{VT}
        v_bfe_u32 v{VT+1}, v0, 3, 2
    """)
    for c in range(4):
        o += L(f"v_xor_b32 v{VTR+c}, {c}, v{VT+1}\nv_lshl_add_u32 v{VTR+c}, v{VTR+c}, 5, v{VT}")

    def trread(st, g, b):
        c, gu = g >> 1, g & 1
        k, r0 = wbuf(b)
        return [I(f"ds_read_b64_tr_b16 {k}[{r0+4*s+2*h}:{r0+4*s+2*h+1}], v{VTR+c} "
                  f"offset:{(st % 4)*16384 + s*8192 + gu*2048 + h*512}", tag=("t", st, g))
                for s in range(2) for h in range(2)]

    def mfma(st, g, b):
        c, gu = g >> 1, g & 1
        p, sl = divmod(st, 10)
        k, r0 = wbuf(b)
        r = []
        for t in range(3):
            d = acc(p, gu, c, t)
            for s in range(2):
                cin = "0" if (sl == 0 and s == 0) else f"v[{d}:{d+3}]"
                r.append(I(f"v_mfma_f32_16x16x32_bf16 v[{d}:{d+3}], {k}[{r0+4*s}:{r0+4*s+3}], {xa(t, 2*sl+s)}, {cin}"))
        return r

    pre, mf, waits, tr, dma = gemm_streams(20, 8, wdma, trread, mfma, 10, VXA, VXR, 4)

    cs = []
    for t in range(3):
        cs += L(f"""
            v_and_b32 v{VT}, 15, v0
            v_add_u32 v{VT}, {16*t}, v{VT}
            v_add_u32 v{VT+1}, s{S_P0}, v{VT}
            v_subrev_u32 v{VT+1}, 1, v{VT+1}
            v_lshrrev_b32 v{VT+2}, 6, v{VT+1}
            v_mul_u32_u24 v{VT+2}, {NKB*4096}, v{VT+2}
            v_bfe_u32 v{VT+3}, v{VT+1}, 4, 2
            v_lshl_add_u32 v{VT+2}, v{VT+3}, 10, v{VT+2}
            v_and_b32 v{VT+3}, 15, v{VT+1}
            v_lshl_add_u32 v{VT+2}, v{VT+3}, 4, v{VT+2}
            v_lshrrev_b32 v{VT+3}, 4, v0
            v_lshl_add_u32 v{VT+2}, v{VT+3}, 8, v{VT+2}
            v_mov_b32 v{VT+3}, {hx(OOB)}
            v_lshlrev_b32 v{VT+4}, 4, v{VT+1}
            v_add_u32 v{VT+4}, {WS_STATS}, v{VT+4}
            v_cmp_gt_u32 vcc, s{S_PN}, v{VT+1}
            v_cndmask_b32 v{VHS+t}, v{VT+3}, v{VT+2}, vcc
            v_cndmask_b32 v{VT+5+t}, v{VT+3}, v{VT+4}, vcc
        """)
        if t == 0:
            cs += L(f"""
                v_cmp_ne_u32 vcc, 0, v{VT}
                v_cndmask_b32 v{VHS+t}, v{VT+3}, v{VHS+t}, vcc
                v_cndmask_b32 v{VT+5+t}, v{VT+3}, v{VT+5+t}, vcc
            """)
    o += L(f"""
        s_lshl_b32 s{S_KB}, s{S_CG}, 1
        s_cmp_eq_u32 s{S_CG}, 13
        s_cselect_b32 s{S_KB}, 52, s{S_KB}
        s_lshl_b32 s{S_KB}, s{S_KB}, 12
        s_add_u32 s{S_KB}, s{S_KB}, {hx(WS_A2)}
        s_add_u32 s{S_KB+1}, s{S_KB}, 4096
        s_add_u32 s{S_KB+2}, s{S_KB}, {26*4096}
        s_cmp_eq_u32 s{S_CG}, 13
        s_cselect_b32 s{S_KB+2}, {hx(OOB)}, s{S_KB+2}
        s_add_u32 s{S_KB+3}, s{S_KB+2}, 4096
    """)
    sl = [I(f"buffer_load_dwordx4 v[{VC+4*t}:{VC+4*t+3}], v{VT+5+t}, s[{R_WS}:{R_WS+3}], 0 offen sc1", tag="stat")
          for t in range(3)]
    c2 = [W("stat")]
    for t in range(3):
        b = VC + 4 * t
        c2 += L(f"""
            v_rcp_f32 v{b+1}, v{b+2}
            v_mul_f32 v{b+3}, v{b+2}, v{b+2}
            v_mul_f32 v{b+2}, v{b+1}, v{b+1}
            v_mul_f32 v{b+2}, v{b+2}, v{b+1}
            v_mul_f32 v{b+1}, {hx(f2u(GK1))}, v{b+1}
            v_mul_f32 v{b+2}, {hx(f2u(GK2))}, v{b+2}
        """)

    def epi(p, packed):
        r = []
        q = 0
        for hb in range(2):
            for t in (1, 2, 0):
                b = VC + 4 * t
                dst = acc(p, 1, 2 * hb, t)
                for ci in range(2):
                    c = 2 * hb + ci
                    G, U = acc(p, 0, c, t), acc(p, 1, c, t)
                    G0, U0 = acc(p, 0, c, 0), acc(p, 1, c, 0)
                    tm = VT + 4 * (q % 4)
                    q += 1
                    for e in range(4):
                        r += L(f"v_fmac_f32_dpp v{G+e}, v{G0+e}, v{b} row_newbcast:0 row_mask:0xf bank_mask:0xf")
                    for e in range(4):
                        r += L(f"v_fmac_f32_dpp v{U+e}, v{U0+e}, v{b} row_newbcast:0 row_mask:0xf bank_mask:0xf")
                    if not packed:
                        for e in range(4):
                            r += L(f"v_mul_f32 v{tm+e}, v{G+e}, v{G+e}")
                        for e in range(4):
                            r += L(f"v_fma_f32 v{tm+e}, v{tm+e}, v{b+2}, v{b+1}")
                        for e in range(4):
                            r += L(f"v_mul_f32 v{tm+e}, v{tm+e}, v{G+e}")
                        for e in range(4):
                            r += L(f"v_exp_f32 v{tm+e}, v{tm+e}")
                        for e in range(4):
                            r += L(f"v_mul_f32 v{G+e}, v{G+e}, v{U+e}")
                        for e in range(4):
                            r += L(f"v_fma_f32 v{tm+e}, v{tm+e}, v{b+3}, v{b+3}")
                        for e in range(4):
                            r += L(f"v_rcp_f32 v{tm+e}, v{tm+e}")
                        for e in range(4):
                            r += L(f"v_mul_f32 v{G+e}, v{G+e}, v{tm+e}")
                    else:
                        pr = lambda x: f"v[{x}:{x+1}]"
                        for e in (0, 2):
                            r += L(f"v_pk_mul_f32 {pr(tm+e)}, {pr(G+e)}, {pr(G+e)}")
                        for e in (0, 2):
                            r += L(f"v_pk_fma_f32 {pr(tm+e)}, {pr(tm+e)}, {pr(b+2)}, {pr(b)} op_sel:[0,0,1] op_sel_hi:[1,0,1]")
                        for e in (0, 2):
                            r += L(f"v_pk_mul_f32 {pr(tm+e)}, {pr(tm+e)}, {pr(G+e)}")
                        for e in range(4):
                            r += L(f"v_exp_f32 v{tm+e}, v{tm+e}")
                        for e in (0, 2):
                            r += L(f"v_pk_mul_f32 {pr(G+e)}, {pr(G+e)}, {pr(U+e)}")
                        for e in (0, 2):
                            r += L(f"v_pk_fma_f32 {pr(tm+e)}, {pr(tm+e)}, {pr(b+2)}, {pr(b+2)} op_sel:[0,1,1] op_sel_hi:[1,1,1]")
                        for e in range(4):
                            r += L(f"v_rcp_f32 v{tm+e}, v{tm+e}")
                        for e in (0, 2):
                            r += L(f"v_pk_mul_f32 {pr(G+e)}, {pr(G+e)}, {pr(tm+e)}")
                    r += L(f"v_cvt_pk_bf16_f32 v{dst+2*ci}, v{G}, v{G+1}\nv_cvt_pk_bf16_f32 v{dst+2*ci+1}, v{G+2}, v{G+3}")
                r.append(I(f"buffer_store_dwordx4 v[{dst}:{dst+3}], v{VHS+t}, s[{R_WS}:{R_WS+3}], s{S_KB+2*p+hb} offen sc1",
                           tag=("h", p)))
        return r

    misc = paced(cs, 60, 200) + [F(i, 330, 340) for i in sl] + paced(c2, 440, 470)
    ep = ooo(paced(epi(0, False), 482, 955), 28)
    st = {}
    body, left = schedule(mf, [waits, tr, dma, misc, ep], st)
    print("FFN sched", st, file=sys.stderr)
    o += pre + body
    o += epi(1, True)
    o += L("s_endpgm")
    return o


class Pool:
    def __init__(self, regs):
        self.free = set(regs)

    def get(self, n, align=None):
        align = align or (2 if n > 1 else 1)
        for b in sorted(self.free):
            if b % align == 0 and all(b + i in self.free for i in range(n)):
                for i in range(n):
                    self.free.remove(b + i)
                return b
        raise ValueError("out of registers for %d (free %s)" % (n, sorted(self.free)))

    def put(self, b, n):
        for i in range(n):
            assert b + i not in self.free
            self.free.add(b + i)


def lanemask(f):
    m = 0
    for l in range(64):
        if f(l >> 4, l & 15):
            m |= 1 << l
    return m


def att():
    AK, AQ, AV = 4, 64, 124
    VWF = 184
    VTR = 192
    VWA = 194
    VOS = 1
    VNM = 200
    VPM = 206
    VL = 210
    VXR = 248
    VXA = 250
    VT = 216
    S_HG, S_PAR = S_CG, 60
    S_OB = 61
    S_SEL = 64
    S_GM = 80
    S_IN = 86
    STL = 157184
    HALO = XRING
    wbuf = lambda b: ("a", 240 + 8 * b) if b < 2 else ("v", VWF)
    o = L("ATT:")
    o += L(f"""
        s_bfe_u32 s{S_PAR}, s2, 0x10002
        s_lshl_b32 s{S_PLO}, s{S_PAR}, 10
        s_mul_i32 s{S_T}, s{S_RB}, 171
        s_add_u32 s{S_PN}, s{S_T}, 171
        s_min_u32 s{S_PN}, s{S_PN}, 1024
        s_mul_i32 s{S_P0}, s{S_W}, 47
        s_add_u32 s{S_P0}, s{S_P0}, s{S_T}
        s_add_u32 s{S_P0}, s{S_P0}, s{S_PLO}
        s_sub_u32 s{S_P0}, s{S_P0}, 7
        s_mul_i32 s{S_WL}, s{S_W}, 5120
        s_and_b32 s{S_T}, s{S_W}, 1
        s_mul_i32 s{S_WO}, s{S_T}, {32*3840}
        s_cmp_lt_u32 s{S_W}, 2
        s_cselect_b32 s{S_T}, 1280, 0
        s_add_u32 s{S_WO}, s{S_WO}, s{S_T}
        s_mul_i32 s{S_T}, s{S_HG}, 160
        s_add_u32 s{S_WO}, s{S_WO}, s{S_T}
    """)
    for j in range(5):
        o += L(f"""
            v_add_u32 v{VT}, {64*j}, v0
            v_mul_u32_u24 v{VT+1}, 205, v{VT}
            v_lshrrev_b32 v{VT+1}, 11, v{VT+1}
            v_mul_u32_u24 v{VT+2}, 10, v{VT+1}
            v_sub_u32 v{VT+2}, v{VT}, v{VT+2}
            v_and_b32 v{VT+3}, 19, v{VT+1}
            v_bfe_u32 v{VT+4}, v{VT+1}, 2, 1
            v_lshl_add_u32 v{VT+3}, v{VT+4}, 3, v{VT+3}
            v_bfe_u32 v{VT+4}, v{VT+1}, 3, 1
            v_lshl_add_u32 v{VT+3}, v{VT+4}, 2, v{VT+3}
            v_mul_u32_u24 v{VT+3}, 3840, v{VT+3}
            v_lshl_add_u32 v{VT+3}, v{VT+2}, 4, v{VT+3}
            v_add_u32 v{VWA+j}, {4096 - 1024*(j % 4)}, v{VT+3}
        """)
    o += x_setup(VXA, VXR, VT)
    o += L("s_waitcnt lgkmcnt(0)")
    o += srd(R_X, P_X, 2048 * 1280, 4096) + srd(R_A, P_QKV, 640 * 3840, 4096) + srd(R_WS, P_WS, WS_SIZE)

    def wdma(st):
        if st >= 15:
            return None
        r = []
        for j in range(5):
            if j % 4 == 0:
                r += L(f"s_add_u32 m0, s{S_WL}, {(st % 4)*20480 + 1024*j}")
            r.append(I(f"buffer_load_dwordx4 v{VWA+j}, s[{R_A}:{R_A+3}], s{S_WO} offen offset:{1024*(j % 4)} lds", tag=("w", st)))
        if st == 9:
            r += L(f"""
                s_mul_i32 s{S_WO}, s{S_W}, {32*3840}
                s_mul_i32 s{S_T}, s{S_HG}, 160
                s_add_u32 s{S_WO}, s{S_WO}, s{S_T}
                s_add_u32 s{S_WO}, s{S_WO}, 2560
            """)
        else:
            r += L(f"s_add_u32 s{S_WO}, s{S_WO}, {(64 if st < 9 else 128)*3840}")
        return r

    for st in range(3):
        o += x_dma(st, VXA) + wdma(st)
    o += wdma(3)
    o += x_setup2(VXR, VT)
    o += L(f"""
        v_lshrrev_b32 v{VT}, 5, v0
        v_lshlrev_b32 v{VT}, 4, v{VT}
        v_bfe_u32 v{VT+1}, v0, 2, 3
        v_add_u32 v{VT}, v{VT}, v{VT+1}
        v_mul_u32_u24 v{VT}, 160, v{VT}
        v_and_b32 v{VT+1}, 3, v0
        v_lshl_add_u32 v{VTR}, v{VT+1}, 3, v{VT}
        v_add_u32 v{VTR+1}, 40960, v{VTR}
    """)

    def gsc(st, g):
        return (g // 5, g % 5) if st < 10 else (g & 1, g >> 1)

    def trread(st, g, b):
        sec, c = gsc(st, g)
        k, r0 = wbuf(b)
        sl = st % 4
        return [I(f"ds_read_b64_tr_b16 {k}[{r0+4*s+2*h}:{r0+4*s+2*h+1}], v{VTR + (sl >> 1)} "
                  f"offset:{(sl & 1)*20480 + sec*10240 + (32*s + 8*h)*160 + c*32}", tag=("t", st, g))
                for s in range(2) for h in range(2)]

    def mfma(st, g, b):
        sec, c = gsc(st, g)
        k, r0 = wbuf(b)
        r = []
        for t in range(3):
            for s in range(2):
                wf = f"{k}[{r0+4*s}:{r0+4*s+3}]"
                if st < 10:
                    d = (AK, AQ)[sec] + t * 20 + c * 4
                    ks = 2 * st + s
                    ab = f"{wf}, {xa(t, ks)}"
                else:
                    d = AV + t * 20 + c * 4
                    ks = 4 * (st - 10) + 2 * sec + s
                    ab = f"{xa(t, ks)}, {wf}"
                cin = "0" if ks == 0 else f"v[{d}:{d+3}]"
                r.append(I(f"v_mfma_f32_16x16x32_bf16 v[{d}:{d+3}], {ab}, {cin}"))
        return r

    pre, mf, waits, tr, dma = gemm_streams(15, 10, wdma, trread, mfma, 10, VXA, VXR, 4)

    cs = []
    cs += L(f"""
        s_mul_i32 s{S_T+1}, s{S_RB}, 171
        s_sub_u32 s{S_T+2}, s{S_PN}, s{S_T+1}
        s_add_u32 s{S_T+1}, s{S_T+1}, s{S_PLO}
    """)
    for t in range(3):
        cs += L(f"""
            v_and_b32 v{VT}, 15, v0
            v_add_u32 v{VT}, {16*t}, v{VT}
            v_add_u32 v{VT+1}, s{S_P0}, v{VT}
            v_subrev_u32 v{VT+1}, 1, v{VT+1}
            v_lshrrev_b32 v{VT+2}, 6, v{VT+1}
            v_mul_u32_u24 v{VT+2}, {NKB*4096}, v{VT+2}
            v_bfe_u32 v{VT+3}, v{VT+1}, 4, 2
            v_lshl_add_u32 v{VT+2}, v{VT+3}, 10, v{VT+2}
            v_and_b32 v{VT+3}, 15, v{VT+1}
            v_lshl_add_u32 v{VT+2}, v{VT+3}, 4, v{VT+2}
            v_lshrrev_b32 v{VT+3}, 4, v0
            v_lshl_add_u32 v{VT+2}, v{VT+3}, 8, v{VT+2}
            v_mov_b32 v{VT+3}, {hx(OOB)}
            v_subrev_u32 v{VT+1}, s{S_T+1}, v{VT+1}
            v_cmp_gt_u32 vcc, s{S_T+2}, v{VT+1}
            v_cndmask_b32 v{VOS+t}, v{VT+3}, v{VT+2}, vcc
        """)
        if t == 0:
            cs += L(f"""
                v_cmp_ne_u32 vcc, 0, v{VT}
                v_cndmask_b32 v{VOS+t}, v{VT+3}, v{VOS+t}, vcc
            """)
    cs += L(f"""
        s_lshr_b32 s{S_OB}, s{S_HG}, 1
        s_mul_i32 s{S_OB}, s{S_OB}, 5
        s_add_u32 s{S_OB}, s{S_OB}, 54
        s_lshl_b32 s{S_OB}, s{S_OB}, 12
        s_add_u32 s{S_OB}, s{S_OB}, {hx(WS_A2)}
        s_and_b32 s{S_T+1}, s{S_HG}, 1
        s_lshl_b32 s{S_T+2}, s{S_T+1}, 3
        s_add_u32 s{S_OB+2}, s{S_OB}, {4*4096}
        s_add_u32 s{S_OB+2}, s{S_OB+2}, s{S_T+2}
        s_lshl_b32 s{S_T+1}, s{S_T+1}, 13
        s_add_u32 s{S_OB}, s{S_OB}, s{S_T+1}
        s_add_u32 s{S_OB+1}, s{S_OB}, 4096
    """)
    for geom in range(2):
        for r in range(4):
            prev = lambda g, q: 4 * g + r >= q + (8 if geom == 0 else 9)
            cur = lambda g, q: 0 <= q - (4 * g + r) <= 7 and (geom == 1 or 4 * g + r >= 1)
            m = lanemask(prev)
            s = S_SEL + 2 * (4 * geom + r)
            cs += L(f"s_mov_b32 s{s}, {hx(m)}\ns_mov_b32 s{s+1}, {hx(m >> 32)}")
            m = lanemask(lambda g, q: prev(g, q) or cur(g, q))
            s = S_IN + 2 * (4 * geom + r)
            cs += L(f"s_mov_b32 s{s}, {hx(m)}\ns_mov_b32 s{s+1}, {hx(m >> 32)}")
    for k in range(3):
        m = lanemask(lambda g, q: g <= k)
        cs += L(f"s_mov_b32 s{S_GM+2*k}, {hx(m)}\ns_mov_b32 s{S_GM+2*k+1}, {hx(m >> 32)}")
    sel = lambda geom, r: f"s[{S_SEL+2*(4*geom+r)}:{S_SEL+2*(4*geom+r)+1}]"
    inb = lambda geom, r: f"s[{S_IN+2*(4*geom+r)}:{S_IN+2*(4*geom+r)+1}]"
    gm = lambda k: f"s[{S_GM+2*k}:{S_GM+2*k+1}]"
    cs += L(f"v_mov_b32 v{VT}, 0xffff\nv_mov_b32 v{VT+1}, 0xffff0000")
    for geom in range(2):
        for pr in range(2):
            d = VPM + 2 * geom + pr
            cs += L(f"""
                v_cndmask_b32 v{d}, 0, v{VT}, {sel(geom, 2*pr)}
                v_cndmask_b32 v{VT+2}, 0, v{VT+1}, {sel(geom, 2*pr+1)}
                v_or_b32 v{d}, v{d}, v{VT+2}
            """)
    cs += L(f"""
        v_add_u32 v{VT}, s{S_P0}, v0
        v_subrev_u32 v{VT}, 16, v{VT}
        v_subrev_u32 v{VT+1}, 1, v{VT}
        v_cmp_gt_u32 vcc, 16, v0
        v_cndmask_b32 v{VT}, v{VT+1}, v{VT}, vcc
        v_subrev_u32 v{VT+1}, s{S_PLO}, v{VT}
        v_lshlrev_b32 v{VT}, 4, v{VT}
        v_add_u32 v{VT}, {WS_STATS}, v{VT}
        v_mov_b32 v{VT+2}, {hx(OOB)}
        v_cmp_gt_u32 vcc, s{S_PN}, v{VT+1}
        v_cndmask_b32 v{VT}, v{VT+2}, v{VT}, vcc
        v_cmp_ne_u32 vcc, 16, v0
        v_cndmask_b32 v{VT}, v{VT+2}, v{VT}, vcc
        s_lshl_b32 s{S_T+1}, s{S_W}, 9
        s_add_u32 s{S_T+1}, s{S_T+1}, {STL}
        v_lshlrev_b32 v{VT+1}, 2, v0
        v_add_u32 v{VT+1}, s{S_T+1}, v{VT+1}
        v_and_b32 v{VT+2}, 15, v0
        v_lshlrev_b32 v{VT+2}, 2, v{VT+2}
        v_add_u32 v{VT+2}, s{S_T+1}, v{VT+2}
        v_lshrrev_b32 v{VL}, 4, v0
        v_lshlrev_b32 v{VL}, 4, v{VL}
        v_add_u32 v{VL}, s{S_T+1}, v{VL}
        s_mul_i32 s{S_T+1}, s{S_W}, 2560
        s_add_u32 s{S_T+1}, s{S_T+1}, {HALO}
        v_lshlrev_b32 v{VL+1}, 3, v0
        s_add_u32 s{S_T+2}, s{S_W}, 3
        s_and_b32 s{S_T+2}, s{S_T+2}, 3
        s_mul_i32 s{S_T+2}, s{S_T+2}, 2560
        s_add_u32 s{S_T+2}, s{S_T+2}, {HALO}
        v_add_u32 v{VL+2}, s{S_T+2}, v{VL+1}
        v_add_u32 v{VL+1}, s{S_T+1}, v{VL+1}
    """)
    sl = [I(f"buffer_load_dwordx4 v[{VT+4}:{VT+7}], v{VT}, s[{R_WS}:{R_WS+3}], 0 offen sc1", tag="stat")]
    c2 = [W("stat")] + L(f"""
        v_rcp_f32 v{VT+5}, v{VT+6}
        v_cmp_lt_f32 vcc, 0, v{VT+6}
        v_cndmask_b32 v{VT+5}, 0, v{VT+5}, vcc
    """)
    c2.append(I(f"ds_write_b32 v{VT+1}, v{VT+4}", tag="stw"))
    c2.append(I(f"ds_write_b32 v{VT+1}, v{VT+5} offset:256", tag="stw"))
    c2.append(W("stw"))
    for t in range(3):
        c2.append(I(f"ds_read2_b32 v[{VNM+2*t}:{VNM+2*t+1}], v{VT+2} offset0:{16+16*t} offset1:{64+16+16*t}", tag="str"))
    c2.append(W("str"))
    for t in range(3):
        c2 += L(f"v_mul_f32 v{VNM+2*t+1}, {hx(f2u(ATT_C))}, v{VNM+2*t+1}")

    pool = Pool([199] + list(range(213, 256)))
    vs = []
    dppb = "row_newbcast:0 row_mask:0xf bank_mask:0xf"
    KP = {}
    for t in (2, 1, 0):
        for e in range(20):
            vs += L(f"v_fmac_f32_dpp v{AK+20*t+e}, v{AK+e}, v{VNM+2*t} {dppb}")
        for e in range(10):
            vs += L(f"v_cvt_pk_bf16_f32 v{AK+20*t+e}, v{AK+20*t+2*e}, v{AK+20*t+2*e+1}")
        KP[t] = AK + 20 * t
        pool.put(AK + 20 * t + 10, 10)
        if t == 2:
            for c in range(5):
                vs.append(I(f"ds_write_b64 v{VL+1}, v[{KP[2]+2*c}:{KP[2]+2*c+1}] offset:{512*c}", tag="khw"))
    khw_end = len(vs)
    RS = pool.get(16, 4)
    for t in range(4):
        vs.append(I(f"ds_read_b128 v[{RS+4*t}:{RS+4*t+3}], v{VL} offset:{256 + 64*t}", tag="rs2"))
    for t in (2, 1, 0):
        for e in range(20):
            vs += L(f"v_fmac_f32_dpp v{AQ+20*t+e}, v{AQ+e}, v{VNM+2*t} {dppb}")
    vs.append(W("rs2"))
    POP = {}
    marks = {}

    def q_ops(t):
        r = []
        Q = AQ + 20 * t
        qo = pool.get(16, 2)
        for e in range(2):
            r += L(f"v_cvt_pk_bf16_f32 v{qo+e}, v{Q+2*e}, v{Q+2*e+1}")
            r += L(f"v_cvt_pk_bf16_f32 v{qo+14+e}, v{Q+16+2*e}, v{Q+16+2*e+1}")
        for c in (1, 2, 3):
            for e in range(2):
                a, b = qo + 4 * (c - 1) + 2 + e, qo + 4 * c + e
                r += L(f"""
                    v_cvt_pk_bf16_f32 v{a}, v{Q+4*c+2*e}, v{Q+4*c+2*e+1}
                    v_cndmask_b32 v{b}, v{a}, 0, {gm(c-1)}
                    v_cndmask_b32 v{a}, 0, v{a}, {gm(c-1)}
                """)
        pool.put(Q, 20)
        S = [pool.get(4, 2) for _ in range(8)]
        for h in range(4):
            for w in range(2):
                kp = KP[t - 1 + w] + 2 * h
                r.append(I(f"v_mfma_f32_16x16x32_bf16 v[{S[2*h+w]}:{S[2*h+w]+3}], v[{kp}:{kp+3}], v[{qo+4*h}:{qo+4*h+3}], 0"))
        return r, S, qo

    def consts(t):
        geom = 0 if t == 0 else 1
        cb = pool.get(8, 2)
        r = []
        for e in range(4):
            r += L(f"""
                v_cndmask_b32 v{cb+e}, v{RS+4*(t+1)+e}, v{RS+4*t+e}, {sel(geom, e)}
                v_mul_f32 v{cb+e}, v{cb+e}, v{VNM+2*t+1}
                v_cndmask_b32 v{cb+e}, 0, v{cb+e}, {inb(geom, e)}
                v_cmp_lt_f32 vcc, 0, v{cb+e}
                v_mov_b32 v{cb+4+e}, {hx(f2u(-1e30))}
                v_cndmask_b32 v{cb+4+e}, v{cb+4+e}, 0, vcc
            """)
        return r, cb

    def xred(op, M):
        return L(f"""
            v_permlane32_swap_b32 v{M}, v{M+1}
            v_permlane32_swap_b32 v{M+2}, v{M+3}
            {op} v{M}, v{M}, v{M+1}
            {op} v{M+2}, v{M+2}, v{M+3}
            v_permlane16_swap_b32 v{M}, v{M+2}
            {op} v{M}, v{M}, v{M+2}
        """)

    def xbc(M):
        return L(f"""
            v_mov_b32 v{M+2}, v{M}
            v_permlane16_swap_b32 v{M}, v{M+2}
            v_mov_b32 v{M+1}, v{M}
            v_mov_b32 v{M+3}, v{M+2}
            v_permlane32_swap_b32 v{M}, v{M+1}
            v_permlane32_swap_b32 v{M+2}, v{M+3}
        """)

    def softmax(t, S, cb):
        geom = 0 if t == 0 else 1
        r = []
        M = pool.get(4, 2)
        for h in range(4):
            a, b = S[2 * h], S[2 * h + 1]
            for e in range(4):
                r += L(f"v_cndmask_b32 v{b+e}, v{b+e}, v{a+e}, {sel(geom, e)}")
            for e in range(4):
                r += L(f"v_fma_f32 v{b+e}, v{b+e}, v{cb+e}, v{cb+4+e}")
            r += L(f"v_max3_f32 v{M+h}, v{b}, v{b+1}, v{b+2}\nv_max_f32 v{M+h}, v{M+h}, v{b+3}")
        r += xred("v_max_f32", M) + xbc(M)
        for h in range(4):
            b = S[2 * h + 1]
            for e in range(4):
                r += L(f"v_sub_f32 v{b+e}, v{b+e}, v{M+h}")
            for e in range(4):
                r += L(f"v_exp_f32 v{b+e}, v{b+e}")
        for h in range(4):
            a, b = S[2 * h], S[2 * h + 1]
            r += L(f"v_add_f32 v{M+h}, v{b}, v{b+1}\nv_add_f32 v{a}, v{b+2}, v{b+3}\nv_add_f32 v{M+h}, v{M+h}, v{a}")
        r += xred("v_add_f32", M) + L(f"v_rcp_f32 v{M}, v{M}") + xbc(M)
        for h in range(4):
            a, b = S[2 * h], S[2 * h + 1]
            for e in range(4):
                r += L(f"v_mul_f32 v{b+e}, v{b+e}, v{M+h}")
            for e in range(2):
                r += L(f"v_cvt_pk_bf16_f32 v{a+2+e}, v{b+2*e}, v{b+2*e+1}")
            for e in range(2):
                r += L(f"v_and_b32 v{a+e}, v{a+2+e}, v{VPM+2*geom+e}")
            for e in range(2):
                r += L(f"v_xor_b32 v{a+2+e}, v{a+2+e}, v{a+e}")
            POP[t, h] = a
            pool.put(b, 4)
        pool.put(M, 4)
        pool.put(cb, 8)
        return r

    for t in (2, 1, 0):
        if t == 0:
            KP[-1] = pool.get(10, 2)
            marks["khr"] = len(vs)
            for c in range(5):
                vs.append(I(f"ds_read_b64 v[{KP[-1]+2*c}:{KP[-1]+2*c+1}], v{VL+2} offset:{512*c}", tag="khr"))
            vs.append(W("khr"))
        a, S, qo = q_ops(t)
        vs += a
        a, cb = consts(t)
        vs += a
        pool.put(qo, 16)
        pool.put(KP[t], 10)
        vs += softmax(t, S, cb)
    pool.put(KP[-1], 10)
    G0 = 600
    fv = paced(vs, G0 + 2, 899)
    barB = G0 + 120 + 8 * 6 + 2
    for f in fv[:khw_end]:
        f.hi = min(f.hi, barB - 2)
    fv[marks["khr"]].lo = max(fv[marks["khr"]].lo, barB + 2)
    for f in tr:
        if f.ins.mn == "WAIT" and f.lo == barB:
            f.ins.need.append("khw")
    misc = paced(cs, 40, 330) + [F(i, 400, 410) for i in sl] + paced(c2, 540, 590)
    st = {}
    body, left = schedule(mf, [waits, tr, dma, misc, ooo(fv, 28)], st)
    print("ATT sched", st, file=sys.stderr)
    o += pre + body

    NM2 = pool.get(12, 4)
    WSV = pool.get(6, 2)
    tl = []
    for t in range(3):
        tl.append(I(f"ds_read_b128 v[{NM2+4*t}:{NM2+4*t+3}], v{VL} offset:{64*(t+1)}", tag="nm2"))
    BA = pool.get(1)
    tl += L(f"v_and_b32 v{BA}, 15, v0\nv_lshlrev_b32 v{BA}, 2, v{BA}")
    for c in range(5):
        tl.append(I(f"ds_bpermute_b32 v{WSV+c}, v{BA}, v{AV+4*c}", tag="nm2"))
    tl.append(W("nm2"))
    VP = [pool.get(8, 2) for _ in range(5)]
    pr = lambda x: f"v[{x}:{x+1}]"

    def vfix(t):
        r = []
        for c in range(5):
            a = AV + 20 * t + 4 * c
            wb, hi = WSV + (c & ~1), c & 1
            for e in (0, 2):
                r += L(f"v_pk_fma_f32 {pr(a+e)}, {pr(NM2+4*t+e)}, {pr(wb)}, {pr(a+e)} op_sel:[0,{hi},0] op_sel_hi:[1,{hi},1]")
            for e in (0, 2):
                r += L(f"v_pk_mul_f32 {pr(a+e)}, {pr(a+e)}, {pr(RS+4*(t+1)+e)}")
            for e in (0, 1):
                r += L(f"v_cvt_pk_bf16_f32 v{VP[c]+2*(t+1)+e}, v{a+2*e}, v{a+2*e+1}")
        return r

    tl += vfix(2)
    for c in range(5):
        tl.append(I(f"ds_write_b64 v{VL+1}, v[{VP[c]+6}:{VP[c]+7}] offset:{16384 + 512*c}", tag="vhw"))
    tl += vfix(1) + vfix(0)
    tl += [W("vhw"), I("s_barrier")]
    for c in range(5):
        tl.append(I(f"ds_read_b64 v[{VP[c]}:{VP[c]+1}], v{VL+2} offset:{16384 + 512*c}", tag="vhr"))
    pool.put(AV, 60)
    OD = {}

    def pv(t):
        r = []
        for h in range(4):
            for w in range(2):
                d = OD[t, h, w] = pool.get(4, 2)
                vp = VP[h + w] + 2 * t
                r.append(I(f"v_mfma_f32_16x16x32_bf16 v[{d}:{d+3}], v[{vp}:{vp+3}], v[{POP[t, h]}:{POP[t, h]+3}], 0"))
        return r

    def ostore(t):
        r = []
        ob = pool.get(12, 4)
        for c in range(5):
            if c == 0:
                s = OD[t, 0, 0]
            elif c == 4:
                s = OD[t, 3, 1]
            else:
                s = OD[t, c, 0]
                for e in range(4):
                    r += L(f"v_cndmask_b32 v{s+e}, v{s+e}, v{OD[t, c-1, 1]+e}, {gm(c-1)}")
            for e in range(2):
                r += L(f"v_cvt_pk_bf16_f32 v{ob+2*c+e}, v{s+2*e}, v{s+2*e+1}")
            if c in (1, 3):
                r.append(I(f"buffer_store_dwordx4 v[{ob+2*c-2}:{ob+2*c+1}], v{VOS+t}, s[{R_WS}:{R_WS+3}], s{S_OB + c//2} offen sc1"))
            if c == 4:
                r.append(I(f"buffer_store_dwordx2 v[{ob+8}:{ob+9}], v{VOS+t}, s[{R_WS}:{R_WS+3}], s{S_OB+2} offen sc1"))
        for h in range(4):
            for w in range(2):
                pool.put(OD[t, h, w], 4)
            pool.put(POP[t, h], 4)
        return r

    tl += pv(2)
    m1 = pv(1)
    b1, _ = schedule(m1, [[F(i, 2, 7) for i in ostore(2)]])
    tl += b1
    tl.append(W("vhr"))
    m0 = pv(0)
    b0, _ = schedule(m0, [[F(i, 2, 7) for i in ostore(1)]])
    tl += b0
    tl += ostore(0)
    o += tl
    o += L("s_endpgm")
    return o


def k1_head():
    o = L("s_cmp_ge_u32 s2, 256\ns_cbranch_scc1 K1_end")
    o += load_args() + wave_id()
    T = S_T
    o += L(f"""
        s_lshr_b32 s{T}, s2, 3
        s_and_b32 s{T+1}, s2, 3
        s_cmp_lt_u32 s{T}, 12
        s_cbranch_scc0 K1_notatt
        s_lshr_b32 s{S_RB}, s{T}, 1
        s_and_b32 s{S_CG}, s{T}, 1
        s_lshl_b32 s{T+1}, s{T+1}, 1
        s_add_u32 s{S_CG}, s{S_CG}, s{T+1}
        s_branch ATT
        K1_notatt:
        s_cmp_lt_u32 s{T}, 30
        s_cbranch_scc1 K1_two
        s_lshl_b32 s{T+1}, s{T+1}, 1
        s_add_u32 s{T+1}, s{T+1}, s{T}
        s_sub_u32 s{S_RB}, s{T+1}, 30
        s_cmp_ge_u32 s{S_RB}, 5
        s_cbranch_scc1 K1_end
        s_bitcmp1_b32 s2, 2
        s_cselect_b32 s{T+1}, 6, 0
        s_add_u32 s{S_RB}, s{S_RB}, s{T+1}
        s_mov_b32 s{S_CG}, 13
        s_branch FFN
        K1_two:
        s_mul_i32 s{T+1}, s{T+1}, 18
        s_add_u32 s{T+1}, s{T+1}, s{T}
        s_sub_u32 s{T+1}, s{T+1}, 12
        s_bitcmp1_b32 s2, 2
        s_cselect_b32 s{T+2}, 35, 42
        s_cselect_b32 s{T+3}, 1, 0
        s_cmp_ge_u32 s{T+1}, s{T+2}
        s_cselect_b32 s{T+2}, s{T+2}, 0
        s_cselect_b32 s{S_CG}, 7, 0
        s_cselect_b32 s{T+4}, 1, 0
        s_sub_u32 s{T+1}, s{T+1}, s{T+2}
        s_cmp_eq_u32 s{T+3}, s{T+4}
        s_cselect_b32 s{T+2}, 43, 52
        s_cselect_b32 s{T+4}, 6, 5
        s_mul_i32 s{T+2}, s{T+2}, s{T+1}
        s_lshr_b32 s{T+2}, s{T+2}, 8
        s_add_u32 s{S_CG}, s{S_CG}, s{T+2}
        s_mul_i32 s{T+2}, s{T+2}, s{T+4}
        s_sub_u32 s{S_RB}, s{T+1}, s{T+2}
        s_sub_u32 s{T+4}, 11, s{T+4}
        s_mul_i32 s{T+4}, s{T+4}, s{T+3}
        s_add_u32 s{S_RB}, s{S_RB}, s{T+4}
        s_branch FFN
        K1_end:
        s_endpgm
    """)
    return o


def finish(code, name):
    rep = []
    c = fix_hazards(resolve_waits(code), rep)
    n = sum(r[0] for r in rep)
    print(f"{name}: {len(c)} instrs, {len(rep)} hazard nops ({n} states)", file=sys.stderr)
    if "-v" in sys.argv:
        for r in rep:
            print("   ", r, file=sys.stderr)
    return text_of(c)


def kd(name):
    return f""".p2align 6
.amdhsa_kernel {name}
  .amdhsa_next_free_vgpr 512
  .amdhsa_next_free_sgpr 102
  .amdhsa_accum_offset 256
  .amdhsa_group_segment_fixed_size 0
  .amdhsa_kernarg_size 80
  .amdhsa_user_sgpr_count 2
  .amdhsa_user_sgpr_kernarg_segment_ptr 1
  .amdhsa_system_sgpr_workgroup_id_x 1
  .amdhsa_float_denorm_mode_32 3
.end_amdhsa_kernel"""


def main():
    ks = ["prep_kernel", "mid_kernel", NAME + "_kernel"]
    out = []
    for k in ks:
        out.append(f"; @launch kernel={k} grid=(256,1,1) block=(256,1,1) lds={LDS_BYTES}")
    out.append('.amdgcn_target "amdgcn-amd-amdhsa--gfx950"\n.text')
    hd = lambda k: f".globl {k}\n.p2align 8\n.type {k},@function\n{k}:"
    out += [hd(ks[0]), finish(k0(), "k0")]
    head = k1_head()
    larg = [i for i in head if i.kind == "smem"]
    out += [hd(ks[1]), finish(head, "k1head"), ".p2align 6", finish(ffn(), "ffn"), ".p2align 6", finish(att(), "att")]
    out += [hd(ks[2]), finish(k2(), "k2")]
    out.append('.section .rodata,"a"')
    out += [kd(k) for k in ks]
    print("\n".join(out))


if __name__ == "__main__":
    main()
```

```python
import re

_REG = re.compile(r"(?<![\w.])([vas])(?:\[(\d+):(\d+)\]|(\d+))(?![\w])")
TRANS = ("v_exp_f32", "v_log_f32", "v_rcp_f32", "v_rsq_f32", "v_sqrt_f32")


def regs_of(op):
    out = []
    for m in _REG.finditer(op):
        k = m.group(1)
        if m.group(4) is not None:
            out.append((k, int(m.group(4))))
        else:
            out += [(k, i) for i in range(int(m.group(2)), int(m.group(3)) + 1)]
    for special in ("vcc", "exec", "m0"):
        if re.search(r"(?<![\w])" + special + r"(?![a-z0-9])", op):
            out.append(("x", special))
    return out


def split_ops(s):
    ops, depth, cur = [], 0, ""
    for ch in s:
        if ch == "[":
            depth += 1
        if ch == "]":
            depth -= 1
        if ch == "," and depth == 0:
            ops.append(cur.strip())
            cur = ""
        else:
            cur += ch
    if cur.strip():
        ops.append(cur.strip())
    return ops


class I:
    def __init__(self, text, tag=None, need=None):
        self.text = text.strip()
        self.tag = tag
        self.need = need
        self.rd, self.wr = [], []
        self.srcc = []
        self.dpp = False
        t = self.text
        if t.endswith(":") or t.startswith(".") or t.startswith(";") or not t:
            self.mn, self.kind = "", "label" if t.endswith(":") else "dir"
            return
        sp = t.split(None, 1)
        mn = self.mn = sp[0]
        ops = split_ops(sp[1]) if len(sp) > 1 else []
        R = [regs_of(o) for o in ops]
        allr = lambda a: [r for x in R[a:] for r in x]
        if mn == "WAIT":
            self.kind = "wait"
        elif mn.startswith("v_mfma"):
            self.kind = "mfma"
            self.wr = R[0]
            self.rd = allr(1)
            self.srcc = R[3]
        elif mn.startswith("v_permlane"):
            self.kind = "perm"
            self.wr = allr(0)
            self.rd = allr(0)
        elif mn.startswith("v_"):
            base = mn.replace("_e32", "").replace("_e64", "").replace("_dpp", "").replace("_sdwa", "")
            self.kind = "trans" if base in TRANS else "valu"
            if mn.startswith("v_pk_") or mn.startswith("v_dot2"):
                self.kind = "pk"
            self.dpp = "_dpp" in mn
            self.wr = list(R[0])
            self.rd = allr(1)
            if base.startswith("v_fmac") or base.startswith("v_dot2c") or (self.dpp and "row_mask:0xf" not in t):
                self.rd += R[0]
            if base in ("v_add_co_u32", "v_addc_co_u32", "v_sub_co_u32"):
                self.wr += R[1]
                self.rd = allr(2)
        elif mn.startswith("ds_read") or mn.startswith("ds_bpermute") or mn.startswith("ds_swizzle"):
            self.kind = "ldsr"
            self.wr = R[0]
            self.rd = allr(1)
        elif mn.startswith("ds_write"):
            self.kind = "ldsw"
            self.rd = allr(0)
        elif mn.startswith("buffer_load") or mn.startswith("global_load"):
            if re.search(r"\blds\b", t):
                self.kind = "dma"
                self.rd = allr(0) + [("x", "m0")]
            else:
                self.kind = "vload"
                self.wr = R[0]
                self.rd = allr(1)
        elif mn.startswith("buffer_store") or mn.startswith("global_store"):
            self.kind = "vstore"
            self.rd = allr(0)
            self.data = R[0]
        elif mn.startswith("buffer_atomic"):
            self.kind = "vload" if "sc0" in t else "vstore"
            self.rd = allr(0)
            self.data = R[0]
            if "sc0" in t:
                self.wr = R[0]
        elif mn.startswith("buffer_inv") or mn.startswith("buffer_wbl2"):
            self.kind = "vstore"
            self.data = []
        elif mn.startswith("s_load") or mn in ("s_memtime", "s_memrealtime"):
            self.kind = "smem"
            self.wr = R[0]
            self.rd = allr(1)
        elif mn in ("s_waitcnt",):
            self.kind = "wait"
        elif mn == "s_barrier":
            self.kind = "bar"
        elif mn == "s_nop":
            self.kind = "nop"
        elif mn.startswith("s_cbranch") or mn in ("s_branch", "s_endpgm", "s_sleep", "s_setprio"):
            self.kind = "ctl"
        elif mn.startswith("s_cmp") or mn.startswith("s_bitcmp"):
            self.kind = "salu"
            self.rd = allr(0)
        elif mn.startswith("s_"):
            self.kind = "salu"
            self.wr = list(R[0])
            self.rd = allr(1)
            if "saveexec" in mn:
                self.wr.append(("x", "exec"))
        else:
            raise ValueError("unknown instr " + t)

    @property
    def scalar(self):
        return self.kind in ("salu", "wait", "bar", "nop", "ctl", "smem")

    @property
    def slots(self):
        if self.kind in ("trans", "perm"):
            return 2
        if self.kind == "ldsw":
            return 2
        if self.kind in ("label", "dir"):
            return 0
        return 1

    def states(self):
        if self.kind in ("label", "dir"):
            return 0
        if self.kind == "nop":
            return int(self.text.split()[1], 0) + 1
        return 1

    def __repr__(self):
        return self.text


def G(text):
    parts = L(text)
    g = I("s_nop 0")
    g.kind, g.mn = "ctl", "glue"
    g.text = "\n".join(p.text if p.kind == "label" else "  " + p.text for p in parts).strip()
    g.rd = [r for p in parts for r in p.rd]
    g.wr = [r for p in parts for r in p.wr]
    if any(p.mn in ("s_cbranch_vccnz", "s_cbranch_vccz") for p in parts):
        g.rd.append(("x", "vcc"))
    return g


def W(*tags):
    return I("WAIT", need=list(tags))


def L(text):
    out = []
    for ln in text.split("\n"):
        ln = ln.split(";")[0].strip()
        if ln:
            out.append(I(ln))
    return out


VM = ("dma", "vload", "vstore")
LG = ("ldsr", "ldsw")


def resolve_waits(code, check=True, vm0=None):
    vm, lg = list(vm0 or []), []
    smem = []
    out = []
    seen = set(i.tag for i in vm)
    for ins in code:
        if ins.kind == "wait":
            if ins.mn == "WAIT":
                nv = nl = None
                for t in ins.need:
                    if t not in seen:
                        raise ValueError("wait for unknown tag %s" % (t,))
                idx = [k for k, o in enumerate(vm) if o.tag in ins.need]
                if idx:
                    nv = len(vm) - 1 - max(idx)
                idx = [k for k, o in enumerate(lg) if o.tag in ins.need]
                if idx:
                    nl = len(lg) - 1 - max(idx)
                    if smem:
                        nl = 0
                if any(o.tag in ins.need for o in smem):
                    nl = 0
                parts = []
                if nv is not None:
                    nv = min(nv, 63)
                    parts.append("vmcnt(%d)" % nv)
                if nl is not None:
                    nl = min(nl, 15)
                    parts.append("lgkmcnt(%d)" % nl)
                if not parts:
                    continue
                ins = I("s_waitcnt " + " ".join(parts))
            m = re.search(r"vmcnt\((\d+)\)", ins.text)
            if m:
                n = int(m.group(1))
                vm = vm[len(vm) - n:] if n < len(vm) else vm
                if n == 0:
                    vm = []
            m = re.search(r"lgkmcnt\((\d+)\)", ins.text)
            if m:
                n = int(m.group(1))
                if n == 0:
                    lg, smem = [], []
                elif not smem:
                    lg = lg[len(lg) - n:] if n < len(lg) else lg
            out.append(ins)
            continue
        if check and ins.kind not in ("label", "dir"):
            pend = {}
            for o in vm + lg + smem:
                for r in o.wr:
                    pend[r] = o
            for r in ins.rd + ins.wr:
                if r in pend:
                    raise ValueError("register %s of pending '%s' touched by '%s'" % (r, pend[r].text, ins.text))
        if ins.kind in VM:
            vm.append(ins)
            if len(vm) > 63 and check:
                pass
        elif ins.kind in LG:
            lg.append(ins)
        elif ins.kind == "smem":
            smem.append(ins)
        if ins.tag is not None:
            seen.add(ins.tag)
        out.append(ins)
    return out


def fix_hazards(code, report=None):
    out = []
    VAL = ("valu", "trans", "perm", "pk")

    def dist_need(prev, cur):
        n = 0
        pw, pr = set(prev.wr), set(prev.rd)
        cr, cw = set(cur.rd), set(cur.wr)
        vec = lambda s: {r for r in s if r[0] in "va"}
        sg = lambda s: {r for r in s if r[0] == "s" or r == ("x", "vcc")}
        if prev.kind == "mfma":
            d = pw
            if cur.kind == "mfma":
                ab = set(cur.rd) - set(cur.srcc)
                c = set(cur.srcc)
                if d & ab:
                    n = max(n, 8)
                if d & c and c != d:
                    n = max(n, 6)
                if d & cw and c != d:
                    n = max(n, 8)
            elif d & (cr | cw):
                n = max(n, 8)
            if cur.kind in VAL and set(prev.srcc) & cw:
                n = max(n, 3)
        if prev.kind in VAL:
            if cur.kind == "mfma" and vec(pw) & cr:
                n = max(n, 2)
            if cur.kind == "mfma" and ("x", "exec") in pw:
                n = max(n, 4)
            if cur.kind in VAL and cur.dpp and vec(pw) & cr:
                n = max(n, 2)
            if cur.kind == "perm" and vec(pw) & cr:
                n = max(n, 2)
            if prev.kind == "trans" and cur.kind in ("valu", "perm", "pk") and pw & cr:
                n = max(n, 1)
            if cur.mn.startswith("v_readfirstlane") or cur.mn.startswith("v_readlane"):
                if vec(pw) & cr:
                    n = max(n, 1)
            if sg(pw) & cr:
                if cur.kind in VM:
                    n = max(n, 5)
                elif cur.kind in VAL:
                    n = max(n, 2)
                elif cur.kind in ("salu", "smem"):
                    n = max(n, 1)
            if prev.kind == "pk" and prev.mn.startswith("v_dot2") and vec(pw) & (cr | cw):
                if not (cur.mn == prev.mn):
                    n = max(n, 3)
            if "sdwa" in prev.mn and cur.kind in VAL and pw & cr:
                n = max(n, 1)
        if prev.kind == "vstore" and len(getattr(prev, "data", [])) >= 3 and set(prev.data) & cw:
            n = max(n, 2)
        if prev.kind == "salu" and ("x", "m0") in pw and cur.kind == "dma":
            n = max(n, 1)
        return n

    for ins in code:
        if ins.kind in ("label", "dir"):
            out.append(ins)
            continue
        need = 0
        dist = 0
        for prev in reversed(out):
            if dist >= 8:
                break
            if prev.kind in ("label", "dir"):
                continue
            n = dist_need(prev, ins)
            if n - dist > need:
                need = n - dist
                why = prev
            dist += prev.states()
        if need > 0:
            if report is not None:
                report.append((need, why.text, ins.text))
            out.append(I("s_nop %d" % (need - 1)))
        out.append(ins)
    return out


class F:
    def __init__(self, ins, lo=-10 ** 9, hi=10 ** 9):
        self.ins, self.lo, self.hi = ins, lo, hi


def paced(instrs, g0, g1, hard_end=True):
    tot = sum(0 if i.scalar else i.slots for i in instrs) or 1
    out, acc = [], 0
    for i in instrs:
        lo = g0 + int((g1 - g0 + 1) * acc / tot)
        if i.kind == "salu":
            lo = max(g0, lo - 2)
        out.append(F(i, min(lo, g1), g1 if hard_end else 10 ** 9))
        acc += 0 if i.scalar else i.slots
    return out


class Stream(list):
    ooo = 0


def ooo(items, window=24):
    s = Stream(items)
    s.ooo = window
    return s


def _indep(a, b):
    if a.scalar or b.scalar:
        return False
    mem = VM + LG
    if a.kind in mem and b.kind in mem:
        return False
    aw, ar, bw, br = set(a.wr), set(a.rd), set(b.wr), set(b.rd)
    return not (aw & br or aw & bw or ar & bw)


def schedule(mfmas, streams, stats=None):
    out = []
    pend = []
    for s in streams:
        hi = 10 ** 9
        for f in reversed(s):
            hi = min(hi, f.hi)
            f.ehi = hi
        pend.append(list(s))
    win = [getattr(s, "ooo", 0) for s in streams]
    over = 0
    waste = 0

    def cands(g):
        c = []
        for k, s in enumerate(pend):
            if not s:
                continue
            if s[0].lo <= g:
                c.append((s[0].ehi, 0, k, 0))
                for x in range(1, min(len(s), win[k])):
                    if s[x].ins.kind == "mfma" or s[x].ins.scalar:
                        break
                    if s[x].lo <= g + 3 and all(_indep(s[y].ins, s[x].ins) for y in range(x)):
                        c.append((s[x].ehi, x, k, x))
        c.sort()
        return c

    def take(c):
        f = pend[c[2]].pop(c[3])
        out.append(f.ins)
        return f

    def fill(g):
        nonlocal over, waste
        cap, first = 2, True
        while True:
            cand = cands(g)
            ins = lambda c: pend[c[2]][c[3]].ins
            if first:
                first = False
                sc = [c for c in cand if ins(c).scalar]
                if sc:
                    take(sc[0])
                    continue
            pick = None
            for c in cand:
                if ins(c).kind == "dma" and c[0] > g and ("x", "m0") in out[-1].wr:
                    continue
                if ins(c).kind != "mfma" and ins(c).slots <= cap:
                    if ins(c).scalar and c[0] > g and any(
                            (not ins(d).scalar) and ins(d).kind != "mfma" and ins(d).slots <= cap for d in cand):
                        continue
                    pick = c
                    break
            if pick is None:
                mm = [c for c in cand if ins(c).kind == "mfma"]
                if mm:
                    take(mm[0])
                    waste += max(cap, 0)
                    cap, first = 2, True
                    continue
                forced = [c for c in cand if c[0] <= g and c[3] == 0]
                if not forced:
                    waste += max(cap, 0)
                    return
                pick = forced[0]
            f = take(pick)
            if f.ins.slots > cap:
                over += f.ins.slots - max(cap, 0)
            cap -= f.ins.slots

    for g, m in enumerate(mfmas):
        out.append(m)
        fill(g)
    if stats is not None:
        stats["over"] = over
        stats["waste"] = waste
        stats["left"] = [len(x) for x in pend]
    return out, pend


def text_of(code):
    o = []
    for i in code:
        o.append(i.text if i.kind in ("label",) else "  " + i.text)
    return "\n".join(o)
```

```python
import math, struct, sys
from asmlib import *

NAME = "recurrent_scan__sliding_local_dilated__glu_gated_geglu__prompt"
OPT = dict(a.lstrip("-").split("=") if "=" in a else (a.lstrip("-"), "1") for a in sys.argv[1:])
opt = lambda k, d: int(OPT.get(k, d))
STAMP = opt("s", 0)

FS = opt("fs", 128)
WS_STATS = 0x1000
WS_FB, WS_FH, WS_FO = 0x10000, 0x40000, 0x80000
WS_A2 = 0x100000
WS_B2 = 0xB00000
WS_STAMP = 0xE00000
WS_SIZE = 0x1000000
NKB = 74
NUNIT = 500
OOB = 0x40000000
LDS_BYTES = 163840
SPIN = 20000


def f2u(x):
    return struct.unpack("<I", struct.pack("<f", x))[0]


def hx(x):
    return "0x%x" % (x & 0xFFFFFFFF)


LOG2E = 1.4426950408889634
GK1 = -2.0 * math.sqrt(2.0 / math.pi) * LOG2E
GK2 = GK1 * 0.044715
ATT_C = (20 ** -0.5) * LOG2E

P_X, P_QKV, P_WO, P_WG, P_WU, P_WD, P_OUT, P_DBG, P_WS = 4, 6, 8, 12, 14, 16, 18, 20, 22
R_X, R_A, R_B, R_WS, R_XF = 24, 28, 32, 36, 40
S_W, S_PL0, S_PAR, S_PEND = 44, 45, 46, 47
S_XL, S_XO, S_WL, S_WO, S_WB = 48, 49, 50, 51, 52
S_RB, S_CG = 53, 54
S_T = 55
S_SEQ = 60
S_TAG, S_FO = 62, 63
S_BE, S_BL, S_BO, S_BT = 64, 65, 66, 67
S_CNT = 68
S_R = 70
VB, VTAG, VFL, VPB, VPE, VPL, VPD, VST = 248, 249, 250, 251, 252, 253, 254, 255
ST_B, ST_U = 124, 140
VXA, VXR = 176, 182
XRING = 81920
XSLOT = 6272
SLOW = []


def srd(r, p, nbytes, bias=0):
    o = []
    if bias:
        o += L(f"s_sub_u32 s{r}, s{p}, {bias}\ns_subb_u32 s{r+1}, s{p+1}, 0")
    else:
        o += L(f"s_mov_b64 s[{r}:{r+1}], s[{p}:{p+1}]")
    if nbytes is not None:
        o += L(f"s_mov_b32 s{r+2}, {hx(nbytes + bias)}")
    o += L(f"s_mov_b32 s{r+3}, 0x20000")
    return o


def R(r):
    return f"s[{r}:{r+3}]"


def stamp(i):
    if not STAMP:
        return []
    return L(f"s_memrealtime s[10:11]\ns_memtime s[0:1]\ns_waitcnt lgkmcnt(0)\n"
             f"v_writelane_b32 v{VST}, s10, {i}\nv_writelane_b32 v{VST}, s0, {i+32}")


def stamped(body, at):
    out, n = [], 0
    for i in body:
        if i.kind == "mfma":
            if n in at:
                out += stamp(at[n])
            n += 1
        out.append(i)
    return out


def stamp_out():
    if not STAMP:
        return []
    return stamp(30) + L("s_waitcnt vmcnt(0)") + stamp(31) + L(f"""
        v_writelane_b32 v{VST}, s3, 0
        s_lshl_b32 s10, s2, 2
        s_add_u32 s10, s10, s{S_W}
        s_lshl_b32 s10, s10, 8
        s_add_u32 s10, s10, {hx(WS_STAMP)}
        v_lshlrev_b32 v1, 2, v0
        buffer_store_dword v{VST}, v1, {R(R_WS)}, s10 offen
    """)


def rowof(vd, vp, vt):
    return L(f"""
        v_and_b32 v{vt}, 0x3ff, v{vp}
        v_lshrrev_b32 v{vd}, 10, v{vp}
        v_lshl_add_u32 v{vd}, v{vt}, 1, v{vd}
    """)


def spin(lab, loads, cmpv, back=None):
    o = L(f"{lab}:\ns_mov_b32 s{S_CNT}, {SPIN}\n{lab}_l:")
    o += [I(i.text) for i in loads] + L("s_waitcnt vmcnt(0)") + [I(i.text) for i in cmpv]
    o += L(f"""
        s_cbranch_vccz {lab}_d
        s_sub_u32 s{S_CNT}, s{S_CNT}, 1
        s_cbranch_scc0 {lab}_l
        {lab}_d:
    """)
    if back:
        o += L(f"s_branch {back}")
    return o


def check(lab, loads, cmpv, tag, publish=False):
    sp = spin("S" + lab, loads, cmpv, "B" + lab)
    if publish:
        sp[1:1] = L(f"s_waitcnt vmcnt(0)\nbuffer_store_dword v{VTAG}, v{VFL}, {R(R_WS)}, s{S_FO} offen sc1")
    SLOW.append(sp)
    return [W(tag)] + cmpv + [G(f"s_cbranch_vccnz S{lab}\nB{lab}:")]


def poll_ld(va, tag=None):
    return [I(f"buffer_load_dword v{VPD}, v{va}, {R(R_WS)}, 0 offen sc1", tag=tag)]


def poll_cmp():
    return L(f"v_cmp_ne_u32 vcc, v{VPD}, v{VTAG}")


def stats_loads():
    vb = ST_B
    a, a2, p, t = vb + 12, vb + 13, vb + 14, vb + 15
    o = L(f"""
        s_lshl_b32 s{S_T}, s2, 2
        s_add_u32 s{S_T}, s{S_T}, s{S_W}
        s_lshl_b32 s{S_T}, s{S_T}, 1
        v_lshrrev_b32 v{p}, 5, v0
        v_add_u32 v{p}, s{S_T}, v{p}
        v_mul_u32_u24 v{a}, 1280, v{p}
        v_and_b32 v{t}, 31, v0
        v_lshl_add_u32 v{a}, v{t}, 4, v{a}
        v_and_b32 v{t}, 16, v0
        v_lshl_add_u32 v{a2}, v{t}, 26, v{a}
        v_mov_b32 v{VTAG}, 0
    """)
    o += [I(f"buffer_load_dwordx4 v[{vb}:{vb+3}], v{a}, {R(R_XF)}, 0 offen", tag="st_ld"),
          I(f"buffer_load_dwordx4 v[{vb+4}:{vb+7}], v{a}, {R(R_XF)}, 0 offen offset:512", tag="st_ld"),
          I(f"buffer_load_dwordx4 v[{vb+8}:{vb+11}], v{a2}, {R(R_XF)}, 0 offen offset:1024", tag="st_ld"),
          I(f"buffer_load_dword v{VTAG}, v{VTAG}, {R(R_WS)}, 0 offen sc1", tag="st_ld")]
    return o


def half_reduce(v, t):
    o = []
    for c in ("quad_perm:[1,0,3,2]", "quad_perm:[2,3,0,1]", "row_half_mirror", "row_mirror"):
        o += L(f"v_add_f32_dpp v{v}, v{v}, v{v} {c} row_mask:0xf bank_mask:0xf")
    o += L(f"""
        v_mov_b32 v{t}, v{v}
        v_permlane16_swap_b32 v{v}, v{t}
        v_add_f32 v{v}, v{v}, v{t}
    """)
    return o


def rne_bf16(v):
    return L(f"v_cvt_pk_bf16_f32 v{v}, v{v}, v{v}\nv_lshlrev_b32 v{v}, 16, v{v}")


def stats_compute():
    vb, vu = ST_B, ST_U
    p, t = vb + 14, vb + 15
    s0, s1, q0, q1 = vu + 24, vu + 25, vu + 26, vu + 27
    o = [W("st_ld")]
    o += L(f"""
        s_mov_b32 s{S_T}, 1664525
        v_mul_lo_u32 v{VTAG}, v{VTAG}, s{S_T}
        v_add_u32 v{VTAG}, 1013904223, v{VTAG}
    """)
    for i in range(12):
        o += L(f"v_lshlrev_b32 v{vu+2*i}, 16, v{vb+i}\nv_and_b32 v{vu+2*i+1}, 0xffff0000, v{vb+i}")
    o += L(f"v_add_f32 v{s0}, v{vu}, v{vu+2}\nv_add_f32 v{s1}, v{vu+1}, v{vu+3}")
    for i in range(2, 12):
        o += L(f"v_add_f32 v{s0}, v{s0}, v{vu+2*i}\nv_add_f32 v{s1}, v{s1}, v{vu+2*i+1}")
    o += L(f"v_add_f32 v{s0}, v{s0}, v{s1}")
    o += half_reduce(s0, t)
    o += L(f"""
        v_and_b32 v{t}, 16, v0
        v_cmp_eq_u32 vcc, 0, v{t}
        v_mul_f32 v{s0}, {hx(f2u(-1.0/640))}, v{s0}
    """)
    for i in range(16):
        o += L(f"v_add_f32 v{vu+i}, v{vu+i}, v{s0}")
    o += L(f"v_cndmask_b32 v{s1}, 0, v{s0}, vcc")
    for i in range(16, 24):
        o += L(f"v_add_f32 v{vu+i}, v{vu+i}, v{s1}")
    o += L(f"v_mul_f32 v{q0}, v{vu}, v{vu}\nv_mul_f32 v{q1}, v{vu+1}, v{vu+1}")
    for i in range(1, 12):
        o += L(f"v_fmac_f32 v{q0}, v{vu+2*i}, v{vu+2*i}\nv_fmac_f32 v{q1}, v{vu+2*i+1}, v{vu+2*i+1}")
    o += L(f"v_add_f32 v{q0}, v{q0}, v{q1}")
    o += half_reduce(q0, t)
    o += L(f"v_mul_f32 v{q0}, {hx(f2u(1.0/640))}, v{q0}")
    o += rne_bf16(q0)
    o += L(f"v_add_f32 v{q0}, {hx(f2u(1e-5))}, v{q0}")
    o += rne_bf16(q0)
    o += L(f"v_sqrt_f32 v{q0}, v{q0}")
    d = vb
    o += L(f"""
        v_cvt_pk_bf16_f32 v{s0}, v{s0}, v{s0}
        v_lshlrev_b32 v{d}, 16, v{s0}
        v_cvt_pk_bf16_f32 v{q0}, v{q0}, v{q0}
        v_lshlrev_b32 v{d+2}, 16, v{q0}
        v_mov_b32 v{d+1}, v{VTAG}
        v_mov_b32 v{d+3}, v{VTAG}
        v_and_b32 v{t}, 1, v{p}
        v_lshrrev_b32 v{p}, 1, v{p}
        v_lshl_add_u32 v{p}, v{t}, 10, v{p}
        v_lshlrev_b32 v{p}, 4, v{p}
        v_and_b32 v{t}, 31, v0
        v_lshl_add_u32 v{p}, v{t}, 25, v{p}
        v_add_u32 v{p}, {WS_STATS}, v{p}
    """)
    o.append(I(f"buffer_store_dwordx4 v[{d}:{d+3}], v{p}, {R(R_WS)}, 0 offen sc1", tag="st_st"))
    return o


def p2_setup(vt):
    T = S_T
    sh = int(math.log2(FS))
    o = L(f"""
        v_lshlrev_b32 v{VB}, 4, v0
        s_bfe_u32 s{T}, s2, 0x30003
        s_mul_i32 s{T+1}, s{T}, {NKB*5120}
        s_add_u32 s{T+1}, s{T+1}, {hx(WS_B2)}
        s_mul_i32 s{T+2}, s{S_W}, 7
        s_mul_i32 s{S_BE}, s{T+2}, 5120
        s_add_u32 s{S_BE}, s{S_BE}, s{T+1}
        s_min_u32 s{T+3}, s{T+2}, 20
        s_mul_i32 s{S_BL}, s{T+3}, 5120
        s_add_u32 s{S_BL}, s{S_BL}, s{T+1}
        s_add_u32 s{S_BL}, s{S_BL}, {28*5120}
        s_mul_i32 s{S_BO}, s{S_W}, {5*5120}
        s_add_u32 s{S_BO}, s{S_BO}, s{T+1}
        s_add_u32 s{S_BO}, s{S_BO}, {54*5120}
        s_mul_i32 s{T}, s{T}, 5
        s_lshr_b32 s{T}, s{T}, 2
        v_lshrrev_b32 v{vt}, 1, v0
        v_min_u32 v{vt}, 18, v{vt}
        s_mul_i32 s{T+1}, s{S_W}, 5
        s_add_u32 s{T+1}, s{T+1}, 40
        v_mov_b32 v{vt+1}, s{T+1}
        s_add_u32 s{T+1}, s{T+3}, 21
        v_mov_b32 v{vt+2}, s{T+1}
        v_cmp_gt_u32 vcc, 14, v{vt}
        v_cndmask_b32 v{vt+1}, v{vt+1}, v{vt+2}, vcc
        v_mov_b32 v{vt+2}, s{T+2}
        v_cmp_gt_u32 vcc, 7, v{vt}
        v_cndmask_b32 v{vt+1}, v{vt+1}, v{vt+2}, vcc
        v_add_u32 v{vt}, v{vt}, v{vt+1}
        v_and_b32 v{vt+1}, 1, v0
        v_lshl_add_u32 v{vt}, v{vt}, 4, v{vt+1}
        v_add_u32 v{vt}, s{T}, v{vt}
        v_lshlrev_b32 v{vt}, {sh}, v{vt}
        v_add_u32 v{VPB}, {hx(WS_FB)}, v{vt}
    """)
    o += L(f"""
        s_and_b32 s{T}, s2, 3
        s_lshl_b32 s{T}, s{T}, 2
        s_lshr_b32 s{T+1}, s2, 6
        s_add_u32 s{T}, s{T}, s{T+1}
        s_lshl_b32 s{T}, s{T}, 6
        s_mul_i32 s{T+1}, s{T}, 1395
        s_lshr_b32 s{T+1}, s{T+1}, 16
        v_bfe_u32 v{vt}, v0, 3, 2
        v_add_u32 v{vt+1}, s{T+1}, v{vt}
        s_add_u32 s{T+1}, s{T}, 63
        s_mul_i32 s{T+1}, s{T+1}, 1395
        s_lshr_b32 s{T+1}, s{T+1}, 16
        v_min_u32 v{vt+1}, s{T+1}, v{vt+1}
        s_bfe_u32 s{T+4}, s2, 0x10002
        s_mul_i32 s{T+1}, s{T+4}, 22
        v_add_u32 v{vt+1}, s{T+1}, v{vt+1}
        v_and_b32 v{vt+2}, 7, v0
        v_min_u32 v{VPE}, 6, v{vt+2}
        v_add_u32 v{VPE}, s{T+2}, v{VPE}
        v_lshrrev_b32 v{VPE}, 1, v{VPE}
        v_lshl_add_u32 v{VPE}, v{VPE}, 6, v{vt+1}
        v_lshlrev_b32 v{VPE}, {sh}, v{VPE}
        v_add_u32 v{VPE}, {hx(WS_FH)}, v{VPE}
        s_lshr_b32 s{T+1}, s{S_W}, 1
        s_sub_u32 s{T+1}, 6, s{T+1}
        v_min_u32 v{VPL}, s{T+1}, v{vt+2}
        v_add_u32 v{VPL}, s{T+3}, v{VPL}
        v_lshrrev_b32 v{VPL}, 1, v{VPL}
        v_lshl_add_u32 v{VPL}, v{VPL}, 6, v{vt+1}
        v_lshlrev_b32 v{VPL}, {sh}, v{VPL}
        v_add_u32 v{VPL}, {hx(WS_FH + 16*64*FS)}, v{VPL}
    """)

    def aw(d, x, t):
        return L(f"""
            s_mul_i32 s{d}, s{x}, 3067
            s_lshr_b32 s{d}, s{d}, 19
            s_mul_i32 s{t}, s{d}, 171
            s_sub_u32 s{t}, s{x}, s{t}
            s_add_u32 s{t}, s{t}, 7
            s_mul_i32 s{t}, s{t}, 1395
            s_lshr_b32 s{t}, s{t}, 16
            s_lshl_b32 s{d}, s{d}, 2
            s_add_u32 s{d}, s{d}, s{t}
        """)

    o += aw(T + 1, T, T + 2)
    o += L(f"v_add_u32 v{vt}, s{T+1}, v{vt}\ns_add_u32 s{T}, s{T}, 63")
    o += aw(T + 1, T, T + 2)
    o += L(f"""
        v_min_u32 v{vt}, s{T+1}, v{vt}
        s_mul_i32 s{T+4}, s{T+4}, 24
        s_lshl_b32 s{T+1}, s{S_W}, 7
        s_add_u32 s{T+4}, s{T+4}, s{T+1}
        v_add_u32 v{vt}, s{T+4}, v{vt}
        v_and_b32 v{vt+1}, 1, v0
        v_lshl_add_u32 v{vt}, v{vt+1}, 6, v{vt}
        v_lshlrev_b32 v{vt}, {sh}, v{vt}
        v_add_u32 v{vt}, {hx(WS_FO)}, v{vt}
        v_cmp_gt_u32 vcc, 32, v0
        v_cndmask_b32 v{VPL}, v{vt}, v{VPL}, vcc
    """)
    return o


def flag_addr(sidx):
    return L(f"""
        v_lshlrev_b32 v{VFL}, 24, v0
        v_add_u32 v{VFL}, s{sidx}, v{VFL}
    """)


def b_loads(i):
    base, k = ((S_BE, i), (S_BL, i - 7), (S_BO, i - 14))[0 if i < 7 else 1 if i < 14 else 2]
    b = 20 * (i % 12)
    o = L(f"s_add_u32 s{S_BT}, s{base}, {k*5120}")
    if i == 13:
        o = [G(f"s_add_u32 s{S_BT}, s{base}, {k*5120}\ns_cmp_ge_u32 s{S_W}, 2\ns_cselect_b32 s{S_BT}, {hx(OOB)}, s{S_BT}")]
    for c in range(5):
        if c == 4:
            o += L(f"s_add_u32 s{S_BT}, s{S_BT}, 4096")
        o.append(I(f"buffer_load_dwordx4 a[{b+4*c}:{b+4*c+3}], v{VB}, {R(R_WS)}, s{S_BT} offen offset:{(c % 4)*1024} sc1",
                   tag=("B", i)))
    return o


def side_job(s_kb, lab):
    ra, rb, t, u = S_R, S_R + 1, S_R + 2, S_R + 3
    so = S_R + 4
    lb = S_R + 8
    o = L(f"""
        s_cmp_ge_u32 s{s_kb}, 54
        s_cbranch_scc1 {lab}_o
        s_sub_u32 s{t}, s{s_kb}, 28
        s_lshr_b32 s{ra}, s{t}, 1
        s_lshl_b32 s{ra}, s{ra}, 7
        s_and_b32 s{t}, s{t}, 1
        s_lshl_b32 s{t}, s{t}, 5
        s_add_u32 s{ra}, s{ra}, s{t}
        s_add_u32 s{ra}, s{ra}, 64
        s_add_u32 s{rb}, s{ra}, 16
    """)
    o += srd(R_A, P_WD, 1728 * 1280)
    o += L(f"""
        s_branch {lab}_go
        {lab}_o:
        s_sub_u32 s{t}, s{s_kb}, 54
        s_mul_i32 s{u}, s{t}, 52
        s_lshr_b32 s{u}, s{u}, 8
        s_mul_i32 s{ra}, s{u}, 5
        s_sub_u32 s{t}, s{t}, s{ra}
        s_mul_i32 s{u}, s{u}, 160
        s_lshr_b32 s{ra}, s{t}, 1
        s_mul_i32 s{ra}, s{ra}, 80
        s_and_b32 s{rb}, s{t}, 1
        s_lshl_b32 s{rb}, s{rb}, 5
        s_add_u32 s{ra}, s{ra}, s{rb}
        s_add_u32 s{rb}, s{ra}, 16
        s_cmp_eq_u32 s{t}, 4
        s_cselect_b32 s{ra}, 64, s{ra}
        s_cselect_b32 s{rb}, 0x90, s{rb}
        s_add_u32 s{ra}, s{ra}, s{u}
        s_add_u32 s{rb}, s{rb}, s{u}
    """)
    o += srd(R_A, P_WO, 640 * 1280)
    o += L(f"""
        {lab}_go:
        s_mul_i32 s{so}, s{ra}, 1280
        s_add_u32 s{so+1}, s{so}, {8*1280}
        s_mul_i32 s{so+2}, s{rb}, 1280
        s_add_u32 s{so+3}, s{so+2}, {8*1280}
        s_mul_i32 s{lb}, s{S_W}, 40960
    """)
    o += unit_addr(1, 4, lb, 2)
    dm = []
    for l in range(10):
        for j in range(4):
            dm += L(f"s_add_u32 m0, s{lb}, {l*4096 + j*1024 - 128*l}")
            dm.append(I(f"buffer_load_dwordx4 v1, {R(R_A)}, s{so+j} offen offset:{128*l} lds", tag=(lab, "d", l)))
    o2 = L(f"""
        s_mul_i32 s{t}, s{s_kb}, 5120
        s_add_u32 s{t}, s{t}, {hx(WS_B2)}
        v_lshlrev_b32 v8, 4, v0
        v_add_u32 v8, s{t}, v8
    """)
    for l in range(10):
        b = 16 * l
        o2.append(W((lab, "d", l)))
        for c in range(4):
            for h in range(2):
                o2.append(I(f"ds_read_b64_tr_b16 a[{b+4*c+2*h}:{b+4*c+2*h+1}], v{4+c} offset:{l*4096+h*2048}", tag=(lab, "r", l)))
    for l in range(10):
        b = 16 * l
        o2.append(W((lab, "r", l)))
        for c in range(4):
            ct = 4 * l + c
            o2 += L(f"s_mov_b32 s{u}, {hx((ct//5)*NKB*5120 + (ct % 5)*1024)}")
            o2.append(I(f"buffer_store_dwordx4 a[{b+4*c}:{b+4*c+3}], v8, {R(R_WS)}, s{u} offen sc1", tag=(lab, "s")))
    return o, dm, o2


def unit_addr(vd, vtr, slb, vt):
    o = L(f"""
        v_lshrrev_b32 v{vd}, 3, v0
        v_mul_u32_u24 v{vd}, 1280, v{vd}
        v_bfe_u32 v{vt}, v0, 1, 2
        v_bfe_u32 v{vt+1}, v0, 4, 2
        v_xor_b32 v{vt}, v{vt}, v{vt+1}
        v_lshl_add_u32 v{vd}, v{vt}, 5, v{vd}
        v_and_b32 v{vt}, 1, v0
        v_lshl_add_u32 v{vd}, v{vt}, 4, v{vd}
        v_lshrrev_b32 v{vt}, 2, v0
        v_lshlrev_b32 v{vt}, 7, v{vt}
        v_and_b32 v{vt+1}, 3, v0
        v_lshl_add_u32 v{vt}, v{vt+1}, 3, v{vt}
        v_add_u32 v{vt}, s{slb}, v{vt}
        v_bfe_u32 v{vt+1}, v0, 3, 2
    """)
    for c in range(4):
        o += L(f"v_xor_b32 v{vtr+c}, {c}, v{vt+1}\nv_lshl_add_u32 v{vtr+c}, v{vtr+c}, 5, v{vt}")
    return o


def slowjoin():
    o = L(f"SLOWJOIN:\ns_mov_b32 s{S_FO}, {hx(OOB)}")
    o += spin("SJb", poll_ld(VPB), poll_cmp())
    for i in range(12):
        o += b_loads(i)
    o += stamp(9)
    o += spin("SJe", poll_ld(VPE), poll_cmp())
    o += L("s_branch JOIN")
    return o


def helper():
    KB = S_R + 10
    o = L("HELPER:")
    o += L("s_waitcnt lgkmcnt(0)") + (L("s_mov_b32 s3, s42") if STAMP else [])
    o += srd(R_XF, P_X, 2048 * 1280) + srd(R_WS, P_WS, WS_SIZE)
    o += stats_loads()
    o += L(f"s_lshl_b32 s{KB}, s{S_RB}, 2\ns_add_u32 s{KB}, s{KB}, s{S_W}\ns_add_u32 s{KB}, s{KB}, 50")
    a, dm, b = side_job(KB, "HJ")
    o += a + dm[:16] + stats_compute() + dm[16:] + b
    sh = int(math.log2(FS))
    o += p2_setup(10)
    o += L(f"""
        s_lshl_b32 s{S_T}, s{KB}, {4+sh}
        s_add_u32 s{S_T}, s{S_T}, {hx(WS_FB)}
        v_min_u32 v1, 9, v0
        v_lshlrev_b32 v1, {sh}, v1
        s_waitcnt vmcnt(0)
        buffer_store_dword v{VTAG}, v1, {R(R_WS)}, s{S_T} offen sc1
        v_mov_b32 v{VFL}, 0
    """)
    o += stamp(8)
    o += L(f"""
        s_cmp_lg_u32 s{KB}, 50
        s_cbranch_scc1 HG_done
        v_lshlrev_b32 v1, 4, v0
        v_add_u32 v1, {WS_STATS + 4}, v1
        v_add_u32 v2, 4096, v1
        v_add_u32 v3, 8192, v1
        v_add_u32 v4, 12288, v1
    """)
    lds_ = [I(f"buffer_load_dword v{8+i}, v{1 + i//4}, {R(R_WS)}, 0 offen offset:{1024*(i % 4)} sc1") for i in range(16)]
    cm = []
    for i in range(16):
        cm += L(f"v_xor_b32 v{8+i}, v{8+i}, v{VTAG}")
    for i in range(1, 16):
        cm += L(f"v_or_b32 v8, v8, v{8+i}")
    cm += L("v_cmp_ne_u32 vcc, 0, v8")
    o += spin("HG", lds_, cm)
    o += L(f"""
        v_lshlrev_b32 v1, 24, v0
        buffer_store_dword v{VTAG}, v1, {R(R_WS)}, 0 offen sc1
        HG_done:
        s_waitcnt vmcnt(0) lgkmcnt(0)
        s_branch SLOWJOIN
    """)
    return o


def phase2():
    AD, AS = 100, 4
    VW, VR, VXL, VXC, VG = 236, 239, 240, 241, 242
    VT = 1
    R_OUT = R_A
    sAt = S_R
    sA, sT, sRB = S_R + 4, S_R + 5, S_R + 6
    sE, sL, sO = S_R + 8, S_R + 9, S_R + 10
    XST = 122880
    o = L("JOIN:")
    o += stamp(10)
    o += L(f"""
        s_and_b32 s{sRB}, s2, 7
        s_lshl_b32 s{sRB}, s{sRB}, 2
        s_lshr_b32 s{sT}, s2, 6
        s_add_u32 s{sRB}, s{sRB}, s{sT}
        s_mul_i32 s{sA}, s{sRB}, {NKB*4096}
        s_add_u32 s{sA}, s{sA}, {hx(WS_A2)}
        s_mul_i32 s{sE}, s{S_W}, {7*4096}
        s_min_u32 s{sL}, s{sE}, {20*4096}
        s_add_u32 s{sL}, s{sL}, {28*4096}
        s_mul_i32 s{sO}, s{S_W}, {5*4096}
        s_add_u32 s{sO}, s{sO}, {54*4096}
        s_sub_u32 s{sO}, s{sO}, s{sL}
        s_sub_u32 s{sL}, s{sL}, s{sE}
        s_add_u32 s{sA}, s{sA}, s{sE}
    """)
    for t in range(4):
        o += L(f"""
            s_add_u32 s{sT}, s{S_W}, {t}
            s_and_b32 s{sT}, s{sT}, 3
            s_lshl_b32 s{sT}, s{sT}, 10
            s_add_u32 s{sAt+t}, s{sA}, s{sT}
        """)
    bufs = [("a", 240 + 4 * k) for k in range(4)] + [("v", 84 + 4 * k) for k in range(4)] + [("v", 4 + 4 * k) for k in range(20)]
    obufs = [("v", 180 + 4 * k) for k in range(14)] + bufs[:6]
    RG = lambda b: f"{b[0]}[{b[1]}:{b[1]+3}]"
    TO = (1, 2, 3, 0)
    abuf = {}
    for i in range(7):
        for t in range(4):
            abuf[i, t] = bufs[4 * i + t]
    for k, t in enumerate(TO):
        for i in range(7):
            abuf[7 + i, t] = bufs[7 * k + i]
        for i in range(5):
            abuf[14 + i, t] = obufs[5 * k + i]

    def a_load(i, t):
        k = i if i < 7 else i - 7 if i < 14 else i - 14
        r = L(f"s_add_u32 s{sA}, s{sAt+t}, {k*4096}")
        if i == 13:
            r = [G(f"s_add_u32 s{sA}, s{sAt+t}, {k*4096}\ns_cmp_ge_u32 s{S_W}, 2\ns_cselect_b32 s{sA}, {hx(OOB)}, s{sA}")]
        r.append(I(f"buffer_load_dwordx4 {RG(abuf[i, t])}, v{VB}, {R(R_WS)}, s{sA} offen sc1", tag=("A", i, t)))
        return r

    def adv(s):
        return L("\n".join(f"s_add_u32 s{sAt+t}, s{sAt+t}, s{s}" for t in range(4)))

    def mf(acc, i, t, c, first):
        b = 20 * (i % 12)
        d = acc + (t * 5 + c) * 4
        return I(f"v_mfma_f32_16x16x32_bf16 v[{d}:{d+3}], a[{b+4*c}:{b+4*c+3}], {RG(abuf[i, t])}, "
                 + ("0" if first else f"v[{d}:{d+3}]"))

    for i in range(2):
        for t in range(4):
            o += a_load(i, t)
    su = []
    for t in range(1, 4):
        su += L(f"""
            s_add_u32 s{sT}, s{S_W}, {t}
            s_and_b32 s{sT}, s{sT}, 3
            s_mul_i32 s{sT}, s{sT}, 30720
            s_add_u32 s{sT}, s{sT}, {(t-1)*5120}
            v_add_u32 v{VW+t-1}, s{sT}, v{VB}
        """)
    su += L(f"""
        s_mul_i32 s{sT}, s{S_W}, 30720
        v_add_u32 v{VR}, s{sT}, v{VB}
        s_and_b32 s{sT}, s{sRB}, 15
        s_lshl_b32 s{sT}, s{sT}, 2
        s_add_u32 s{sT}, s{sT}, s{S_W}
        s_mul_i32 s{sT}, s{sT}, {16*2560}
        s_lshr_b32 s{sRB}, s{sRB}, 4
        s_mul_i32 s{sRB}, s{sRB}, 1280
        s_add_u32 s{sT}, s{sT}, s{sRB}
        s_bfe_u32 s{sRB}, s2, 0x30003
        s_mul_i32 s{sRB}, s{sRB}, 160
        s_add_u32 s{sT}, s{sT}, s{sRB}
        s_mul_i32 s{sRB}, s{S_W}, 3072
        s_add_u32 s{sRB}, s{sRB}, {XST}
    """)
    for j in range(3):
        su += L(f"""
            v_add_u32 v{VT}, {64*j}, v0
            v_mul_u32_u24 v{VT+1}, 205, v{VT}
            v_lshrrev_b32 v{VT+1}, 11, v{VT+1}
            v_mul_u32_u24 v{VT+1}, {2560-160}, v{VT+1}
            v_lshl_add_u32 v{VT+1}, v{VT}, 4, v{VT+1}
            v_add_u32 v{VG+j}, s{sT}, v{VT+1}
        """)
    su += L(f"""
        v_and_b32 v{VT}, 32, v0
        v_lshl_add_u32 v{VG+2}, v{VT}, 25, v{VG+2}
        v_and_b32 v{VT}, 15, v0
        v_mul_u32_u24 v{VT}, 160, v{VT}
        v_lshrrev_b32 v{VT+1}, 4, v0
        v_lshl_add_u32 v{VT}, v{VT+1}, 3, v{VT}
        v_add_u32 v{VXL}, s{sRB}, v{VT}
        v_add_u32 v{VXC}, s{sRB}, v{VB}
    """)
    su += srd(R_OUT, P_OUT, 2048 * 1280)
    o += su
    o.append(W("role"))
    o.append(I(f"buffer_store_dword v{VTAG}, v{VFL}, {R(R_WS)}, s{S_FO} offen sc1"))
    o += stamp(11)
    o += L("s_barrier")
    for t in range(4):
        o += a_load(2, t)

    mfl, waits, ld = [], [], []
    for i in range(7):
        g0 = len(mfl)
        waits.append(F(W(*[("A", i, t) for t in range(4)]), g0 - 1, g0 - 1))
        for t in range(4):
            for c in (range(5) if t % 2 == 0 else range(4, -1, -1)):
                mfl.append(mf(AD, i, t, c, i == 0))
        x = []
        if i + 3 < 7:
            for t in range(4):
                x += a_load(i + 3, t)
        if i >= 1:
            x += b_loads(11 + i)
        if i == 5:
            for j in range(3):
                x += L(f"s_add_u32 m0, s{sRB}, {1024*j}")
                x.append(I(f"buffer_load_dwordx4 v{VG+j}, {R(R_XF)}, 0 offen lds", tag="xst"))
        ld += paced(x, g0, g0 + 18)
    st = {}
    body, _ = schedule(mfl, [waits[1:], ld], st)
    o += [waits[0].ins] + body
    o += b_loads(18) + adv(sL)
    o += stamp(12)
    o += spin("PL", poll_ld(VPL), poll_cmp())
    o += stamp(13)

    mfl, waits, ld = [], [], []
    seq = [(7 + i, t) for t in TO for i in range(7)] + [(14 + i, t) for t in TO for i in range(5)]
    NPRE = opt("npre", 10)
    for i, t in seq[:NPRE]:
        o += a_load(i, t)
    rest = []
    for n, (i, t) in enumerate(seq):
        if n == 28:
            rest += adv(sO)
        if n >= NPRE:
            rest += a_load(i, t)
    ld = paced(rest, 0, opt("lend", 150))
    end = {}
    for k, t in enumerate(TO):
        g0 = len(mfl)
        if k == 0:
            for i in range(7, 14):
                waits.append(F(W(("A", i, t)), len(mfl) - 1, len(mfl) - 1))
                for c in range(5):
                    mfl.append(mf(AD, i, t, c, False))
                    end["d", t, c] = len(mfl) - 1
        else:
            waits.append(F(W(*[("A", i, t) for i in range(7, 14)]), g0 - 1, g0 - 1))
            for c in range(5):
                for i in range(7, 14):
                    mfl.append(mf(AD, i, t, c, False))
                end["d", t, c] = len(mfl) - 1
    gS = len(mfl)
    for t in TO:
        g0 = len(mfl)
        waits.append(F(W(*[("A", i, t) for i in range(14, 19)]), g0 - 1, g0 - 1))
        for c in range(5):
            for i in range(14, 19):
                mfl.append(mf(AS, i, t, c, i == 14))
            end["s", t, c] = len(mfl) - 1
    for f in ld:
        if f.ins.kind == "vload" and f.ins.tag[1] >= 14 and abuf[f.ins.tag[1], f.ins.tag[2]] in bufs:
            f.lo = max(f.lo, 35)
    ex = []
    g = 0
    for t in (1, 2, 3):
        for c in range(5):
            d = AD + (t * 5 + c) * 4
            g = max(g + 3, end["d", t, c] + 5)
            ex.append(F(I(f"ds_write_b128 v{VW+t-1}, v[{d}:{d+3}] offset:{c*1024}", tag="xd"), g, g + 2))
    g += 6
    ex.append(F(W("xd"), g, g))
    ex.append(F(I("s_barrier"), g + 1, g + 1))
    VX = 84
    for tt in range(3):
        for c in range(5):
            d = AD + ((tt + 1) * 5 + c) * 4
            g += 1
            ex.append(F(I(f"ds_read_b128 v[{d}:{d+3}], v{VR} offset:{tt*5120 + c*1024}", tag="rd"), g, g + 4))
    gRD = max(g + 6, gS + 2)
    g = gRD
    for t in (1, 2, 3):
        for c in range(5):
            d = AS + (t * 5 + c) * 4
            g = max(g + 3, end["s", t, c] + 5)
            ex.append(F(I(f"ds_write_b128 v{VW+t-1}, v[{d}:{d+3}] offset:{15360 + c*1024}", tag="xs"), g, g + 2))
    g += 6
    ex.append(F(W("xs"), g, g))
    ex.append(F(I("s_barrier"), g + 1, g + 1))
    last = len(mfl) - 1
    for tt in range(3):
        for c in range(5):
            d = AS + ((tt + 1) * 5 + c) * 4
            ex.append(F(I(f"ds_read_b128 v[{d}:{d+3}], v{VR} offset:{15360 + tt*5120 + c*1024}", tag="rs"), g + 1, last))
    va = []
    for e in range(20):
        va += L(f"""
            v_add_f32 v{AD+20+e}, v{AD+20+e}, v{AD+40+e}
            v_add_f32 v{AD+e}, v{AD+e}, v{AD+60+e}
            v_add_f32 v{AD+e}, v{AD+e}, v{AD+20+e}
        """)
    XP = AD + 60
    for c in range(5):
        va.append(I(f"ds_read_b64 v[{XP+2*c}:{XP+2*c+1}], v{VXL} offset:{c*32}", tag="rx"))
    for e in range(20):
        va += L(f"""
            v_mul_f32 v{AD+20+e}, {hx(f2u(-LOG2E))}, v{AD+e}
            v_exp_f32 v{AD+20+e}, v{AD+20+e}
            v_add_f32 v{AD+20+e}, 1.0, v{AD+20+e}
            v_rcp_f32 v{AD+20+e}, v{AD+20+e}
            v_mul_f32 v{AD+e}, v{AD+e}, v{AD+20+e}
        """)
    va.append(W("rx"))
    for e in range(20):
        va += L(f"v_lshlrev_b32 v{AD+40+e}, 16, v{XP+e//2}" if e % 2 == 0 else f"v_and_b32 v{AD+40+e}, 0xffff0000, v{XP+e//2}")
    vs = ooo([F(W("rd"), gRD, gRD)] + [F(i, gRD, last) for i in va], 40)
    st = {}
    body, _ = schedule(mfl, [waits[1:], ex, ld, vs], st)
    print("P2 late sched", st, file=sys.stderr)
    o += [waits[0].ins] + stamp(14) + stamped(body, {gS: 15}) + stamp(16)
    o.append(W("rs"))
    pr = lambda x: f"v[{x}:{x+1}]"
    for e in range(0, 20, 2):
        o += L(f"v_pk_add_f32 {pr(AS+20+e)}, {pr(AS+20+e)}, {pr(AS+40+e)}\nv_pk_add_f32 {pr(AS+e)}, {pr(AS+e)}, {pr(AS+60+e)}")
    for c in range(5):
        for e in (4 * c, 4 * c + 2):
            o += L(f"v_pk_add_f32 {pr(AS+e)}, {pr(AS+e)}, {pr(AS+20+e)}")
        for e in (4 * c, 4 * c + 2):
            o += L(f"v_pk_fma_f32 {pr(AS+e)}, {pr(AS+e)}, {pr(AD+e)}, {pr(AD+40+e)}")
        o += L(f"""
            v_cvt_pk_bf16_f32 v{XP+2*c}, v{AS+4*c}, v{AS+4*c+1}
            v_cvt_pk_bf16_f32 v{XP+2*c+1}, v{AS+4*c+2}, v{AS+4*c+3}
        """)
        o.append(I(f"ds_write_b64 v{VXL}, v[{XP+2*c}:{XP+2*c+1}] offset:{c*32}", tag="ow"))
    o.append(W("ow"))
    for j in range(3):
        o.append(I(f"ds_read_b128 v[{180+4*j}:{183+4*j}], v{VXC} offset:{1024*j}", tag=("or", j)))
    for j in range(3):
        o.append(W(("or", j)))
        o.append(I(f"buffer_store_dwordx4 v[{180+4*j}:{183+4*j}], v{VG+j}, {R(R_OUT)}, 0 offen {OPT.get('ofl', '')}"))
    o += stamp_out()
    o += L("s_endpgm")
    return o


def xa(t, ks):
    b = (ks * 3 + t) * 4
    return f"a[{b}:{b+3}]"


def nib(dst, st, seq=S_SEQ):
    return L(f"s_bfe_u32 s{dst}, s{seq + st//8}, {hx((4 << 16) | (4*(st % 8)))}")


def x_addr(vt):
    o = L(f"""
        s_mul_i32 s{S_XL}, s{S_W}, {3*XSLOT}
        s_add_u32 s{S_XL}, s{S_XL}, {XRING}
        s_mul_i32 s{S_T}, s{S_PL0}, 2560
        s_mul_i32 s{S_T+1}, s{S_PAR}, 1280
        s_add_u32 s{S_T}, s{S_T}, s{S_T+1}
        s_mul_i32 s{R_X+2}, s{S_PEND}, 2560
        v_lshrrev_b32 v{vt}, 3, v0
        v_add_u32 v{vt+1}, 1, v{vt}
        v_lshrrev_b32 v{vt+1}, 1, v{vt+1}
        v_xor_b32 v{vt+1}, v{vt+1}, v0
        v_and_b32 v{vt+1}, 7, v{vt+1}
        v_mul_u32_u24 v{vt}, 2560, v{vt}
        v_lshl_add_u32 v{vt}, v{vt+1}, 4, v{vt}
        v_add_u32 v{VXA}, s{S_T}, v{vt}
        v_xor_b32 v{vt}, 64, v{vt}
        v_add_u32 v{vt}, s{S_T}, v{vt}
        v_add_u32 v{VXA+1}, {20480 - 1024}, v{vt}
        v_add_u32 v{VXA+2}, {40960 - 2048}, v{VXA}
        v_add_u32 v{VXA+3}, {61440 - 3072}, v{vt}
        v_add_u32 v{VXA+4}, {81920}, v{VXA}
        v_add_u32 v{VXA+5}, {102400 - 1024}, v{vt}
        v_min_u32 v{VXA}, {hx(OOB)}, v{VXA}
    """)
    return o


def x_setup2(vt):
    o = L(f"""
        v_and_b32 v{vt}, 15, v0
        v_bfe_u32 v{vt+1}, v0, 1, 3
        v_lshrrev_b32 v{vt+2}, 4, v0
        v_xor_b32 v{vt+1}, v{vt+1}, v{vt+2}
        v_lshlrev_b32 v{vt}, 7, v{vt}
        v_lshl_add_u32 v{vt}, v{vt+1}, 4, v{vt}
        v_add_u32 v{VXR}, s{S_XL}, v{vt}
        v_xor_b32 v{vt}, 64, v{vt}
        v_add_u32 v{VXR+1}, s{S_XL}, v{vt}
        v_and_b32 v{vt}, 31, v0
        v_lshlrev_b32 v{vt}, 2, v{vt}
        v_add_u32 v{vt}, s{S_XL}, v{vt}
        v_mov_b32 v{vt+1}, 0x3f803f80
    """)
    for s in range(3):
        o.append(I(f"ds_write_b32 v{vt}, v{vt+1} offset:{s*XSLOT}", tag="ones"))
    return o


def x_dma(st):
    o = nib(S_XO, st) + L(f"s_lshl_b32 s{S_XO}, s{S_XO}, 7")
    base = (st % 3) * XSLOT + 128
    for j in range(6):
        if j % 4 == 0:
            o.insert(len(o) - (1 if j == 0 else 0), I(f"s_add_u32 m0, s{S_XL}, {base + 1024*j}"))
        o.append(I(f"buffer_load_dwordx4 v{VXA+j}, {R(R_X)}, s{S_XO} offen offset:{1024*(j % 4)} lds", tag=("x", st)))
    return o


def x_read(st):
    return [I(f"ds_read_b128 {xa(t, 2*st+s)}, v{VXR+s} offset:{(st % 3)*XSLOT + t*2048}", tag=("xr", st))
            for s in range(2) for t in range(3)]


def gemm_streams(nst, ng, wdma, trread, mfma, extra):
    per = ng * 6
    mf, waits, tr, dma = [], [], [], []
    total = nst * ng
    pre = [W(("x", 0), "ones")] + x_read(0) + [W(("w", 0)), I("s_barrier")]
    pre += trread(0, 0, 0) + trread(0, 1, 1) + [W(("t", 0, 0), ("xr", 0))]
    bar = {0: -1}

    def window(s, lo, hi):
        x = []
        if s + 2 < 10:
            x += x_dma(s + 2)
        if s + 2 < nst:
            x += wdma(s + 2)
        if s + 2 >= 10:
            hi = lo + (hi - lo) // 2
        return paced(x, lo, hi) + extra.get(s, [])

    dma += window(0, 0, (ng - 2) * 6 - 3)
    for k in range(total):
        st, g = divmod(k, ng)
        g0 = len(mf)
        mf += mfma(st, g, k % 3)
        if k + 1 < total:
            s1, g1 = divmod(k + 1, ng)
            need = [("t", s1, g1)]
            if g1 == 0 and s1 < 10:
                need.append(("xr", s1))
            waits.append(F(W(*need), g0 + 5, g0 + 5))
        if k + 2 < total:
            s2, g2 = divmod(k + 2, ng)
            rd = trread(s2, g2, (k + 2) % 3)
            if g2 == 0:
                need = [("w", s2)] + ([("x", s2)] if s2 < 10 else [])
                tr.append(F(W(*need), g0 - 2, g0 - 2))
                tr.append(F(I("s_barrier"), g0, g0))
                bar[s2] = g0
                if s2 < 10:
                    xr = x_read(s2)
                    rd = [rd[0], xr[0], rd[1], xr[1], rd[2], xr[2], rd[3], xr[3], xr[4], xr[5]]
                    tr += [F(r, g0 + i // 2, g0 + 5) for i, r in enumerate(rd)]
                else:
                    tr += [F(r, g0 + i, g0 + 4) for i, r in enumerate(rd)]
                dma += window(s2, g0 + (5 if s2 < 10 else 1), g0 + per - 3)
            else:
                tr += [F(r, g0 + i, g0 + (3 if g2 == ng - 1 else 4)) for i, r in enumerate(rd)]
    return pre, mf, waits, tr, dma, bar


def a2_addr(vd, t, vt, lo_s=None):
    return L(f"""
        v_and_b32 v{vt}, 15, v0
        v_add_u32 v{vt+1}, {16*t - 1}, v{vt}
        v_add_u32 v{vt+1}, s{S_PL0}, v{vt+1}
        v_lshrrev_b32 v{vt+2}, 6, v{vt+1}
        v_mul_u32_u24 v{vt+2}, {NKB*4096}, v{vt+2}
        v_bfe_u32 v{vt+3}, v{vt+1}, 4, 2
        v_lshl_add_u32 v{vt+2}, v{vt+3}, 10, v{vt+2}
        v_and_b32 v{vt+3}, 15, v{vt+1}
        v_lshl_add_u32 v{vt+2}, v{vt+3}, 4, v{vt+2}
        v_lshrrev_b32 v{vt+3}, 4, v0
        v_lshl_add_u32 v{vt+2}, v{vt+3}, 8, v{vt+2}
        v_mov_b32 v{vt+3}, {hx(OOB)}
        v_cmp_gt_i32 vcc, s{S_PEND}, v{vt+1}
        v_cndmask_b32 v{vd}, v{vt+3}, v{vt+2}, vcc
        v_cmp_le_i32 vcc, s{lo_s}, v{vt+1}
        v_cndmask_b32 v{vd}, v{vt+3}, v{vd}, vcc
    """)


F_VWA = 208
F_UO, F_US, F_UF, F_WB2 = S_R + 4, S_R + 5, S_R + 6, S_R + 7


def ffn_wdma(st):
    r = nib(S_WO, st % 10) + L(f"""
        s_mul_i32 s{S_WO}, s{S_WO}, {64*3456}
        s_add_u32 m0, s{S_WL}, {(st % 4)*16384}
        s_add_u32 s{S_WO}, s{S_WO}, s{S_WB if st < 10 else F_WB2}
    """)
    for j in range(4):
        rr = R_A if j < 2 else R_B
        r.append(I(f"buffer_load_dwordx4 v{F_VWA + (j & 1)}, {R(rr)}, s{S_WO} offen offset:{1024*j} lds", tag=("w", st)))
    return r


def ffn_pro():
    VT, VWA = 224, F_VWA
    o = L(f"""
        s_lshl_b32 s{S_WL}, s{S_W}, 12
        s_mul_i32 s{S_WB}, s{S_W}, {16*3456}
        s_lshl_b32 s{S_T}, s{S_CG}, 8
        s_add_u32 s{S_WB}, s{S_WB}, s{S_T}
        v_lshrrev_b32 v{VT}, 3, v0
        v_mul_u32_u24 v{VT}, 3456, v{VT}
        v_and_b32 v{VT+1}, 1, v0
        v_lshl_add_u32 v{VT}, v{VT+1}, 4, v{VT}
        v_bfe_u32 v{VT+1}, v0, 1, 2
        v_bfe_u32 v{VT+2}, v0, 4, 1
        v_xor_b32 v{VT+1}, v{VT+1}, v{VT+2}
        v_lshl_add_u32 v{VWA}, v{VT+1}, 5, v{VT}
        v_xor_b32 v{VWA+1}, 64, v{VWA}
        v_add_u32 v{VWA+1}, {8*3456 - 1024}, v{VWA+1}
    """)
    o += srd(R_A, P_WG, 640 * 3456) + srd(R_B, P_WU, 640 * 3456, 2048)
    o += ffn_wdma(0) + stats_loads() + x_dma(1) + ffn_wdma(1)
    return o


def ffn():
    ACC = [4, 100]
    VWF, VTR, VHS, VC, VT = 196, 204, 1, 212, 224
    S_KB = S_R
    sh = int(math.log2(FS))
    acc = lambda p, gu, c, t: ACC[p] + (gu * 4 + c) * 12 + t * 4
    wbuf = lambda b: ("a", 240 + 8 * b) if b < 2 else ("v", VWF)
    o = L("FFN:")
    o += x_setup2(VT)
    o += L(f"""
        v_lshrrev_b32 v{VT}, 5, v0
        v_lshlrev_b32 v{VT}, 12, v{VT}
        v_bfe_u32 v{VT+1}, v0, 4, 1
        v_lshl_add_u32 v{VT}, v{VT+1}, 10, v{VT}
        v_bfe_u32 v{VT+1}, v0, 2, 2
        v_lshl_add_u32 v{VT}, v{VT+1}, 7, v{VT}
        v_and_b32 v{VT+1}, 3, v0
        v_lshl_add_u32 v{VT}, v{VT+1}, 3, v{VT}
        v_bfe_u32 v{VT+1}, v0, 3, 2
    """)
    for c in range(4):
        o += L(f"v_xor_b32 v{VTR+c}, {c}, v{VT+1}\nv_lshl_add_u32 v{VTR+c}, v{VTR+c}, 5, v{VT}")

    def trread(st, g, b):
        c, gu = g >> 1, g & 1
        k, r0 = wbuf(b)
        return [I(f"ds_read_b64_tr_b16 {k}[{r0+4*s+2*h}:{r0+4*s+2*h+1}], v{VTR+c} "
                  f"offset:{(st % 4)*16384 + s*8192 + gu*2048 + h*512}", tag=("t", st, g))
                for s in range(2) for h in range(2)]

    def mfma(st, g, b):
        c, gu = g >> 1, g & 1
        p, sl = divmod(st, 10)
        k, r0 = wbuf(b)
        r = []
        for t in range(3):
            d = acc(p, gu, c, t)
            for s in range(2):
                cin = "0" if (sl == 0 and s == 0) else f"v[{d}:{d+3}]"
                r.append(I(f"v_mfma_f32_16x16x32_bf16 v[{d}:{d+3}], {k}[{r0+4*s}:{r0+4*s+3}], {xa(t, 2*sl+s)}, {cin}"))
        return r

    UD, UA, UT = 100, 116, 117
    R_U = S_R + 14
    ULB, UCT, UTm = S_R + 8, S_R + 9, S_R + 10
    T = S_T
    us = L(f"""
        s_mul_i32 s{T}, s{F_UF}, 205
        s_lshr_b32 s{T}, s{T}, 11
        s_mul_i32 s{T+1}, s{T}, 10
        s_sub_u32 s{T+1}, s{F_UF}, s{T+1}
    """)
    us += [G(f"s_cmp_ge_u32 s{T}, 28\ns_cselect_b32 s{T+2}, 28, 0\ns_cselect_b32 s{T+3}, 64, 0")]
    us += L(f"""
        s_sub_u32 s{T+2}, s{T}, s{T+2}
        s_lshr_b32 s{F_UO}, s{T+2}, 1
        s_lshl_b32 s{F_UO}, s{F_UO}, 7
        s_and_b32 s{T+2}, s{T+2}, 1
        s_lshl_b32 s{T+2}, s{T+2}, 5
        s_add_u32 s{F_UO}, s{F_UO}, s{T+2}
        s_add_u32 s{F_UO}, s{F_UO}, s{T+3}
        s_mul_i32 s{F_UO}, s{F_UO}, 1280
        s_lshl_b32 s{T+2}, s{T+1}, 7
        s_add_u32 s{F_UO}, s{F_UO}, s{T+2}
        s_lshl_b32 s{UCT}, s{T+1}, 2
        s_mul_i32 s{F_US}, s{T}, 5120
        s_lshl_b32 s{T+2}, s{T+1}, 12
        s_add_u32 s{F_US}, s{F_US}, s{T+2}
        s_add_u32 s{F_US}, s{F_US}, {hx(WS_B2)}
        s_lshl_b32 s{T}, s{T}, 4
        s_add_u32 s{T}, s{T}, s{T+1}
        s_lshl_b32 s{T}, s{T}, {sh}
        s_add_u32 s{T}, s{T}, {hx(WS_FB)}
    """)
    us += [G(f"s_cmp_ge_u32 s{F_UF}, {NUNIT}\ns_cselect_b32 s{F_UO}, {hx(OOB)}, s{F_UO}\n"
             f"s_cselect_b32 s{F_US}, {hx(OOB)}, s{F_US}\ns_cselect_b32 s{F_UF}, {hx(OOB)}, s{T}")]
    us += L(f"s_add_u32 s{ULB}, s{S_WL}, 65536")
    us += srd(R_U, P_WD, 1728 * 1280)
    us += unit_addr(UA, UT, ULB, VT)
    us += [G(f"s_add_u32 s{F_WB2}, s{S_WB}, 128\ns_cmp_eq_u32 s{S_CG}, 13\ns_cselect_b32 s{F_WB2}, {hx(OOB)}, s{F_WB2}")]
    ud = []
    for j in range(4):
        ud += L(f"s_add_u32 m0, s{ULB}, {1024*j}\ns_add_u32 s{UTm}, s{F_UO}, {10240*j}")
        ud.append(I(f"buffer_load_dwordx4 v{UA}, {R(R_U)}, s{UTm} offen lds", tag="ud"))
    ur = [W("ud")]
    for c in range(4):
        for h in range(2):
            ur.append(I(f"ds_read_b64_tr_b16 v[{UD+4*c+2*h}:{UD+4*c+2*h+1}], v{UT+c} offset:{h*2048}", tag="ur"))
    ust = [W("ur")]
    for c in range(4):
        ust += L(f"""
            s_add_u32 s{T}, s{UCT}, {c}
            s_mul_i32 s{T}, s{T}, 52
            s_lshr_b32 s{T}, s{T}, 8
            s_mul_i32 s{T}, s{T}, {(NKB-1)*5120}
            s_add_u32 s{T}, s{T}, s{F_US}
        """)
        ust.append(I(f"buffer_store_dwordx4 v[{UD+4*c}:{UD+4*c+3}], v{VB}, {R(R_WS)}, s{T} offen offset:{1024*c} sc1", tag="us"))
    ufl = L(f"v_lshlrev_b32 v{VPD}, 24, v0") + [W("us"), I(f"buffer_store_dword v{VTAG}, v{VPD}, {R(R_WS)}, s{F_UF} offen sc1")]

    UW = opt("uw", 5)
    gU = (UW + 1) * 48 - 12 - 3
    extra = {UW: [F(i, gU - 8, gU) for i in ud]}
    pre, mf, waits, tr, dma, bar = gemm_streams(20, 8, ffn_wdma, trread, mfma, extra)

    cs = []
    for t in range(3):
        cs += a2_addr(VHS + t, t, VT, S_PL0)
        cs += L(f"""
            v_max_i32 v{VT+1}, 0, v{VT+1}
            v_min_u32 v{VT+1}, 0x3ff, v{VT+1}
            v_lshlrev_b32 v{VT+5+t}, 4, v{VT+1}
        """)
    cs += L(f"""
        s_mul_i32 s{S_KB}, s{S_PAR}, {16*NKB*4096}
        s_lshl_b32 s{T}, s{S_CG}, 13
        s_add_u32 s{S_KB}, s{S_KB}, s{T}
        s_add_u32 s{S_KB}, s{S_KB}, {hx(WS_A2)}
        s_add_u32 s{S_KB+1}, s{S_KB}, 4096
        s_add_u32 s{S_KB+2}, s{S_KB}, {28*4096}
        s_add_u32 s{S_KB+3}, s{S_KB}, {29*4096}
        s_lshl_b32 s{T}, s{S_CG}, 6
        s_lshl_b32 s{T+1}, s{S_RB}, 2
        s_add_u32 s{T}, s{T}, s{T+1}
        s_add_u32 s{T}, s{T}, s{S_W}
        s_lshl_b32 s{T}, s{T}, {sh}
        s_add_u32 s{T}, s{T}, {hx(WS_FH)}
        s_mov_b32 s{S_FO}, {16*64*FS}
    """) + flag_addr(T)
    SSO = S_R + 11
    cs += L(f"s_lshl_b32 s{SSO}, s{S_PAR}, 14\ns_add_u32 s{SSO}, s{SSO}, {WS_STATS}")
    sl = [I(f"buffer_load_dwordx4 v[{VC+4*t}:{VC+4*t+3}], v{VT+5+t}, {R(R_WS)}, s{SSO} offen sc1", tag="stat") for t in range(3)]
    cm = []
    for t in range(3):
        cm += L(f"v_xor_b32 v{VC+4*t+1}, v{VC+4*t+1}, v{VTAG}\nv_xor_b32 v{VC+4*t+3}, v{VC+4*t+3}, v{VTAG}")
    cm += L(f"""
        v_or3_b32 v{VT}, v{VC+1}, v{VC+3}, v{VC+5}
        v_or3_b32 v{VT}, v{VT}, v{VC+7}, v{VC+9}
        v_or_b32 v{VT}, v{VT}, v{VC+11}
        v_cmp_ne_u32 vcc, 0, v{VT}
    """)
    c2 = check("Fs", sl, cm, "stat")
    for t in range(3):
        b = VC + 4 * t
        c2 += L(f"""
            v_rcp_f32 v{b+1}, v{b+2}
            v_mul_f32 v{b+3}, v{b+2}, v{b+2}
            v_mul_f32 v{b+2}, v{b+1}, v{b+1}
            v_mul_f32 v{b+2}, v{b+2}, v{b+1}
            v_mul_f32 v{b+1}, {hx(f2u(GK1))}, v{b+1}
            v_mul_f32 v{b+2}, {hx(f2u(GK2))}, v{b+2}
        """)

    def epi(p, packed):
        r = []
        q = 0
        dp = "row_newbcast:0 row_mask:0xf bank_mask:0xf"
        pr = lambda x: f"v[{x}:{x+1}]"
        for hb in range(2):
            for t in (1, 2, 0):
                b = VC + 4 * t
                dst = acc(p, 1, 2 * hb, t)
                for ci in range(2):
                    c = 2 * hb + ci
                    Gt, U = acc(p, 0, c, t), acc(p, 1, c, t)
                    G0, U0 = acc(p, 0, c, 0), acc(p, 1, c, 0)
                    tm = VT + 4 * (q % 4)
                    q += 1
                    E4, E2 = range(4), (0, 2)
                    r += [I(f"v_fmac_f32_dpp v{Gt+e}, v{G0+e}, v{b} {dp}") for e in E4]
                    r += [I(f"v_fmac_f32_dpp v{U+e}, v{U0+e}, v{b} {dp}") for e in E4]
                    if not packed:
                        r += [I(f"v_mul_f32 v{tm+e}, v{Gt+e}, v{Gt+e}") for e in E4]
                        r += [I(f"v_fma_f32 v{tm+e}, v{tm+e}, v{b+2}, v{b+1}") for e in E4]
                        r += [I(f"v_mul_f32 v{tm+e}, v{tm+e}, v{Gt+e}") for e in E4]
                        r += [I(f"v_exp_f32 v{tm+e}, v{tm+e}") for e in E4]
                        r += [I(f"v_mul_f32 v{Gt+e}, v{Gt+e}, v{U+e}") for e in E4]
                        r += [I(f"v_fma_f32 v{tm+e}, v{tm+e}, v{b+3}, v{b+3}") for e in E4]
                        r += [I(f"v_rcp_f32 v{tm+e}, v{tm+e}") for e in E4]
                        r += [I(f"v_mul_f32 v{Gt+e}, v{Gt+e}, v{tm+e}") for e in E4]
                    else:
                        r += [I(f"v_pk_mul_f32 {pr(tm+e)}, {pr(Gt+e)}, {pr(Gt+e)}") for e in E2]
                        r += [I(f"v_pk_fma_f32 {pr(tm+e)}, {pr(tm+e)}, {pr(b+2)}, {pr(b)} op_sel:[0,0,1] op_sel_hi:[1,0,1]") for e in E2]
                        r += [I(f"v_pk_mul_f32 {pr(tm+e)}, {pr(tm+e)}, {pr(Gt+e)}") for e in E2]
                        r += [I(f"v_exp_f32 v{tm+e}, v{tm+e}") for e in E4]
                        r += [I(f"v_pk_mul_f32 {pr(Gt+e)}, {pr(Gt+e)}, {pr(U+e)}") for e in E2]
                        r += [I(f"v_pk_fma_f32 {pr(tm+e)}, {pr(tm+e)}, {pr(b+2)}, {pr(b+2)} op_sel:[0,1,1] op_sel_hi:[1,1,1]") for e in E2]
                        r += [I(f"v_rcp_f32 v{tm+e}, v{tm+e}") for e in (0, 2, 1, 3)]
                        r += [I(f"v_pk_mul_f32 {pr(Gt+e)}, {pr(Gt+e)}, {pr(tm+e)}") for e in E2]
                    r += L(f"v_cvt_pk_bf16_f32 v{dst+2*ci}, v{Gt}, v{Gt+1}\nv_cvt_pk_bf16_f32 v{dst+2*ci+1}, v{Gt+2}, v{Gt+3}")
                r.append(I(f"buffer_store_dwordx4 v[{dst}:{dst+3}], v{VHS+t}, {R(R_WS)}, s{S_KB+2*p+hb} offen sc1", tag=("h", p)))
        return r

    eflag = I(f"buffer_store_dword v{VTAG}, v{VFL}, {R(R_WS)}, 0 offen sc1")
    misc = paced(stats_compute(), 34, 190, False) + paced(us, 190, gU - 12) + paced(cs, gU - 30, gU + 50, False)
    misc += [F(i, gU + 50) for i in sl] + paced(p2_setup(VT), gU + 50, gU + 100, False)
    misc += paced(ur, gU + 100, gU + 112, False) + paced(ust, gU + 120, gU + 150, False)
    misc += paced(c2, 440, 474)
    misc.append(F(G(f"s_cmp_eq_u32 s{S_CG}, 13\ns_cbranch_scc1 SINGLE"), 478, 478))
    misc += [F(i, 500, 520) for i in ufl]
    gB = opt("fgb", 580)
    misc += [F(i, gB, gB + 4) for i in poll_ld(VPB, "pb")]
    misc += [F(i, gB + 50, gB + 54) for i in check("Fb", poll_ld(VPB), poll_cmp(), "pb")]
    NB = opt("fnb", 9)
    bl = []
    for i in range(NB):
        bl += b_loads(i)
    bs = paced(bl, gB + 56, 958)
    for f in bs:
        if f.ins.kind == "vload":
            f.lo = max(f.lo, 480 + 48 * (f.ins.wr[-1][1] // 24 + 1))
    misc += bs
    ep = ooo(paced(epi(0, False), 482, opt("fe1", 900)), 28)
    st = {}
    body, left = schedule(mf, [waits, tr, dma, misc, ep], st)
    print("FFN sched", st, file=sys.stderr)
    ib = next(k for k, i in enumerate(body) if "SINGLE" in i.text)
    nxt = next(k for k in range(ib, len(body)) if body[k].kind == "mfma")
    single = L("SINGLE:") + [I(body[nxt].text)] + L("s_waitcnt vmcnt(0) lgkmcnt(0)")
    single += [ufl[0], ufl[2]] + epi(0, True) + L("s_waitcnt vmcnt(0)") + [eflag] + stamp(8) + L("s_branch SLOWJOIN")
    SLOW.append(single)
    body = stamped(body, {96: 4, 240: 5, 480: 6, 720: 7})
    o += stamp(2) + pre + stamp(3) + body + stamp(8)
    tl = epi(1, True)
    n = len(tl)
    ins = {opt("fef", 20) * n // 100: [W(("h", 0)), eflag]}
    rb = []
    for i in range(NB, 12):
        rb += b_loads(i)
    cur = []
    k = 0
    nld = sum(1 for i in rb if i.kind == "vload")
    for i in rb:
        cur.append(i)
        if i.kind == "vload":
            ins.setdefault(4 + k * (n * 6 // 10) // max(nld, 1), []).extend(cur)
            cur = []
            k += 1
    ins.setdefault(n * 75 // 100, []).extend(poll_ld(VPE, "pe"))
    for k, i in enumerate(tl):
        o += ins.get(k, [])
        o.append(i)
    o += stamp(9)
    o += check("Fe", poll_ld(VPE), poll_cmp(), "pe", True)
    return o


class Pool:
    def __init__(self, regs):
        self.free = set(regs)

    def get(self, n, align=None):
        align = align or (2 if n > 1 else 1)
        for b in sorted(self.free):
            if b % align == 0 and all(b + i in self.free for i in range(n)):
                for i in range(n):
                    self.free.remove(b + i)
                return b
        raise ValueError("out of registers for %d (free %s)" % (n, sorted(self.free)))

    def put(self, b, n):
        for i in range(n):
            assert b + i not in self.free
            self.free.add(b + i)


def lanemask(f):
    m = 0
    for l in range(64):
        if f(l >> 4, l & 15):
            m |= 1 << l
    return m


A_VWA = 194
A_WB2, A_SEQB = S_R + 3, S_R + 4


def att_wdma(st):
    r = (nib(S_WO, st) if st < 10 else nib(S_WO, 2 * (st - 10), A_SEQB)) + L(f"""
        s_mul_i32 s{S_WO}, s{S_WO}, {64*3840}
        s_add_u32 m0, s{S_WL}, {(st % 4)*20480}
        s_add_u32 s{S_WO}, s{S_WO}, s{S_WB if st < 10 else A_WB2}
    """)
    for j in range(5):
        if j == 4:
            r += L(f"s_add_u32 m0, s{S_WL}, {(st % 4)*20480 + 4096}")
        r.append(I(f"buffer_load_dwordx4 v{A_VWA+j}, {R(R_A)}, s{S_WO} offen offset:{1024*(j % 4)} lds", tag=("w", st)))
    return r


def att_pro():
    VT = 216
    o = L(f"""
        s_mul_i32 s{S_WL}, s{S_W}, 5120
        s_and_b32 s{S_T}, s{S_W}, 1
        s_mul_i32 s{A_WB2}, s{S_T}, {32*3840}
        s_mul_i32 s{S_T}, s{S_CG}, 160
        s_add_u32 s{A_WB2}, s{A_WB2}, s{S_T}
        s_cmp_lt_u32 s{S_W}, 2
        s_cselect_b32 s{S_T}, 1280, 0
        s_add_u32 s{S_WB}, s{A_WB2}, s{S_T}
        s_movk_i32 s{S_T}, 3680
        s_movk_i32 s{S_T+1}, 15360
        v_mul_u32_u24 v{VT+3}, 205, v0
        v_lshlrev_b32 v{VT+4}, 4, v0
    """)
    o += srd(R_A, P_QKV, 640 * 3840)
    for j in range(5):
        o += L(f"""
            v_add_u32 v{VT}, {64*j*205}, v{VT+3}
            v_bfe_u32 v{VT+1}, v{VT}, 13, 1
            v_bfe_u32 v{VT+2}, v{VT}, 14, 1
            v_lshrrev_b32 v{VT}, 11, v{VT}
            v_sub_u32 v{VT+1}, v{VT+1}, v{VT+2}
            v_mad_u32_u24 v{VT}, v{VT}, s{S_T}, v{VT+4}
            v_mad_i32_i24 v{A_VWA+j}, v{VT+1}, s{S_T+1}, v{VT}
        """)
    o += L(f"v_add_u32 v{A_VWA+4}, 4096, v{A_VWA+4}")
    o += att_wdma(0) + stats_loads() + x_dma(1) + att_wdma(1)
    return o


def att():
    AK, AQ, AV = 4, 64, 124
    VWF, VTR, VOS, VNM, VPM, VL = 184, 192, 1, 200, 206, 210
    VT = 168
    S_HG = S_CG
    S_OB = S_R
    S_GM = S_R + 6
    S_SEL = S_R + 12
    S_M = S_R + 28
    sh = int(math.log2(FS))
    STL = 157184
    wbuf = lambda b: ("a", 240 + 8 * b) if b < 2 else ("v", VWF)
    o = L("ATT:")
    o += x_setup2(VT)
    o += L(f"""
        v_lshrrev_b32 v{VT}, 5, v0
        v_lshlrev_b32 v{VT}, 4, v{VT}
        v_bfe_u32 v{VT+1}, v0, 2, 3
        v_add_u32 v{VT}, v{VT}, v{VT+1}
        v_mul_u32_u24 v{VT}, 160, v{VT}
        v_and_b32 v{VT+1}, 3, v0
        v_lshl_add_u32 v{VTR}, v{VT+1}, 3, v{VT}
        v_add_u32 v{VTR+1}, 40960, v{VTR}
    """)

    def gsc(st, g):
        return (g // 5, g % 5) if st < 10 else (g & 1, g >> 1)

    def trread(st, g, b):
        sec, c = gsc(st, g)
        k, r0 = wbuf(b)
        sl = st % 4
        return [I(f"ds_read_b64_tr_b16 {k}[{r0+4*s+2*h}:{r0+4*s+2*h+1}], v{VTR + (sl >> 1)} "
                  f"offset:{(sl & 1)*20480 + sec*10240 + (32*s + 8*h)*160 + c*32}", tag=("t", st, g))
                for s in range(2) for h in range(2)]

    def mfma(st, g, b):
        sec, c = gsc(st, g)
        k, r0 = wbuf(b)
        r = []
        for t in range(3):
            for s in range(2):
                wf = f"{k}[{r0+4*s}:{r0+4*s+3}]"
                if st < 10:
                    d = (AK, AQ)[sec] + t * 20 + c * 4
                    ks = 2 * st + s
                    ab = f"{wf}, {xa(t, ks)}"
                else:
                    d = AV + c * 12 + t * 4
                    ks = 4 * (st - 10) + 2 * sec + s
                    ab = f"{xa(t, ks)}, {wf}"
                cin = "0" if ks == 0 else f"v[{d}:{d+3}]"
                r.append(I(f"v_mfma_f32_16x16x32_bf16 v[{d}:{d+3}], {ab}, {cin}"))
        return r

    pre, mf, waits, tr, dma, bar = gemm_streams(15, 10, att_wdma, trread, mfma, {})
    T = S_T
    pool = Pool([199] + list(range(213, 248)))
    cs = L(f"""
        s_add_u32 s{A_WB2}, s{A_WB2}, 2560
        s_and_b32 s{T}, s{S_W}, 2
        s_lshl_b32 s{T}, s{T}, 1
        s_lshr_b64 s[{A_SEQB}:{A_SEQB+1}], s[{S_SEQ}:{S_SEQ+1}], s{T}
        s_mul_i32 s{T+1}, s{S_RB}, 171
        s_max_i32 s{T+1}, s{T+1}, s{S_PL0}
    """)
    for t in range(3):
        cs += a2_addr(VOS + t, t, VT, T + 1)
    cs += L(f"""
        s_lshr_b32 s{S_OB}, s{S_HG}, 1
        s_mul_i32 s{S_OB}, s{S_OB}, {5*4096}
        s_mul_i32 s{T}, s{S_PAR}, {16*NKB*4096}
        s_add_u32 s{S_OB}, s{S_OB}, s{T}
        s_add_u32 s{S_OB}, s{S_OB}, {hx(WS_A2 + 54*4096)}
        s_and_b32 s{T+1}, s{S_HG}, 1
        s_lshl_b32 s{T+2}, s{T+1}, 3
        s_add_u32 s{S_OB+2}, s{S_OB}, {4*4096}
        s_add_u32 s{S_OB+2}, s{S_OB+2}, s{T+2}
        s_lshl_b32 s{T+1}, s{T+1}, 13
        s_add_u32 s{S_OB}, s{S_OB}, s{T+1}
        s_add_u32 s{S_OB+1}, s{S_OB}, 4096
        s_lshl_b32 s{T}, s{S_HG}, 6
        s_mul_i32 s{T+1}, s{S_PAR}, 24
        s_add_u32 s{T}, s{T}, s{T+1}
        s_lshl_b32 s{T+1}, s{S_RB}, 2
        s_add_u32 s{T}, s{T}, s{T+1}
        s_add_u32 s{T}, s{T}, s{S_W}
        s_lshl_b32 s{T}, s{T}, {sh}
        s_add_u32 s{T}, s{T}, {hx(WS_FO)}
        s_mov_b32 s{S_FO}, 0
    """) + flag_addr(T)
    prevf = lambda geom, r: (lambda g, q: 4 * g + r >= q + (8 if geom == 0 else 9))
    curf = lambda geom, r: (lambda g, q: 0 <= q - (4 * g + r) <= 7 and (geom == 1 or 4 * g + r >= 1))
    smov = lambda s, m: L(f"s_mov_b32 s{s}, {hx(m)}\ns_mov_b32 s{s+1}, {hx(m >> 32)}")
    for geom in range(2):
        for r in range(4):
            cs += smov(S_SEL + 2 * (4 * geom + r), lanemask(prevf(geom, r)))
    for k in range(3):
        cs += smov(S_GM + 2 * k, lanemask(lambda g, q: g <= k))
    sel = lambda geom, r: f"s[{S_SEL+2*(4*geom+r)}:{S_SEL+2*(4*geom+r)+1}]"
    gm = lambda k: f"s[{S_GM+2*k}:{S_GM+2*k+1}]"
    cs += L(f"v_mov_b32 v{VT}, 0xffff\nv_mov_b32 v{VT+1}, 0xffff0000")
    for geom in range(2):
        for pr_ in range(2):
            d = VPM + 2 * geom + pr_
            cs += L(f"""
                v_cndmask_b32 v{d}, 0, v{VT}, {sel(geom, 2*pr_)}
                v_cndmask_b32 v{VT+2}, 0, v{VT+1}, {sel(geom, 2*pr_+1)}
                v_or_b32 v{d}, v{d}, v{VT+2}
            """)
    cs += p2_setup(VT)
    SSO = T + 4
    cs += L(f"""
        v_add_u32 v{VT}, s{S_PL0}, v0
        v_subrev_u32 v{VT}, 16, v{VT}
        v_subrev_u32 v{VT+1}, 1, v{VT}
        v_cmp_gt_u32 vcc, 16, v0
        v_cndmask_b32 v{VT}, v{VT+1}, v{VT}, vcc
        v_cmp_ne_u32 vcc, 16, v0
        v_cndmask_b32 v{VT+1}, -1, v{VT}, vcc
        v_cmp_gt_u32 s[{S_M+2}:{S_M+3}], s{S_PEND}, v{VT+1}
        v_max_i32 v{VT}, 0, v{VT}
        v_min_u32 v{VT}, 0x3ff, v{VT}
        v_lshlrev_b32 v{VT}, 4, v{VT}
        s_lshl_b32 s{T+1}, s{S_W}, 9
        s_add_u32 s{T+1}, s{T+1}, {STL}
        v_lshlrev_b32 v{VT+1}, 2, v0
        v_add_u32 v{VT+1}, s{T+1}, v{VT+1}
        v_and_b32 v{VT+2}, 15, v0
        v_lshlrev_b32 v{VT+2}, 2, v{VT+2}
        v_add_u32 v{VT+2}, s{T+1}, v{VT+2}
        v_lshrrev_b32 v{VL}, 4, v0
        v_lshlrev_b32 v{VL}, 4, v{VL}
        v_add_u32 v{VL}, s{T+1}, v{VL}
        v_lshlrev_b32 v{VL+1}, 3, v0
        s_add_u32 s{T+2}, s{S_W}, 3
        s_and_b32 s{T+2}, s{T+2}, 3
        s_mul_i32 s{T+2}, s{T+2}, {3*XSLOT}
        s_add_u32 s{T+2}, s{T+2}, {XRING}
        v_add_u32 v{VL+2}, s{T+2}, v{VL+1}
        v_add_u32 v{VL+1}, s{S_XL}, v{VL+1}
        s_lshl_b32 s{SSO}, s{S_PAR}, 14
        s_add_u32 s{SSO}, s{SSO}, {WS_STATS}
    """)
    sl = [I(f"buffer_load_dwordx4 v[{VT+4}:{VT+7}], v{VT}, {R(R_WS)}, s{SSO} offen sc1", tag="stat")]
    cm = L(f"""
        v_xor_b32 v{VT+5}, v{VT+5}, v{VTAG}
        v_xor_b32 v{VT+7}, v{VT+7}, v{VTAG}
        v_or_b32 v{VT+5}, v{VT+5}, v{VT+7}
        v_cmp_ne_u32 vcc, 0, v{VT+5}
    """)
    c2 = check("As", sl, cm, "stat") + L(f"""
        v_rcp_f32 v{VT+5}, v{VT+6}
        v_cndmask_b32 v{VT+4}, 0, v{VT+4}, s[{S_M+2}:{S_M+3}]
        v_cndmask_b32 v{VT+5}, 0, v{VT+5}, s[{S_M+2}:{S_M+3}]
    """)
    c2.append(I(f"ds_write_b32 v{VT+1}, v{VT+4}", tag="stw"))
    c2.append(I(f"ds_write_b32 v{VT+1}, v{VT+5} offset:256", tag="stw"))
    c3 = [W("stw")]
    for t in range(3):
        c3.append(I(f"ds_read2_b32 v[{VNM+2*t}:{VNM+2*t+1}], v{VT+2} offset0:{16+16*t} offset1:{64+16+16*t}", tag="str"))
    RS0 = 124
    for t in range(4):
        c3.append(I(f"ds_read_b128 v[{RS0+4*t}:{RS0+4*t+3}], v{VL} offset:{256 + 64*t}", tag="str"))
    c4 = [W("str")]
    CB = {}
    for t in range(3):
        geom = 0 if t == 0 else 1
        cb = CB[t] = pool.get(8, 2)
        c4 += L(f"v_mul_f32 v{VNM+2*t+1}, {hx(f2u(ATT_C))}, v{VNM+2*t+1}")
        for e in range(4):
            c4 += smov(S_M, lanemask(lambda g, q: prevf(geom, e)(g, q) or curf(geom, e)(g, q)))
            c4 += L(f"""
                v_cndmask_b32 v{cb+e}, v{RS0+4*(t+1)+e}, v{RS0+4*t+e}, {sel(geom, e)}
                v_mul_f32 v{cb+e}, v{cb+e}, v{VNM+2*t+1}
                v_cndmask_b32 v{cb+e}, 0, v{cb+e}, s[{S_M}:{S_M+1}]
                v_cmp_lt_f32 vcc, 0, v{cb+e}
                v_mov_b32 v{cb+4+e}, {hx(f2u(-1e30))}
                v_cndmask_b32 v{cb+4+e}, v{cb+4+e}, 0, vcc
            """)

    vs = []
    dppb = "row_newbcast:0 row_mask:0xf bank_mask:0xf"
    KP = {}
    for t in (2, 1, 0):
        for e in range(20):
            vs += L(f"v_fmac_f32_dpp v{AK+20*t+e}, v{AK+e}, v{VNM+2*t} {dppb}")
        for e in range(10):
            vs += L(f"v_cvt_pk_bf16_f32 v{AK+20*t+e}, v{AK+20*t+2*e}, v{AK+20*t+2*e+1}")
        KP[t] = AK + 20 * t
        pool.put(AK + 20 * t + 10, 10)
        if t == 2:
            for c in range(5):
                vs.append(I(f"ds_write_b64 v{VL+1}, v[{KP[2]+2*c}:{KP[2]+2*c+1}] offset:{512*c}", tag="khw"))
            khw_end = len(vs)
    kfix_end = len(vs)
    POP = {}
    marks = {}

    def q_ops(t):
        r = []
        Q = AQ + 20 * t
        for e in range(20):
            r += L(f"v_fmac_f32_dpp v{Q+e}, v{AQ+e}, v{VNM+2*t} {dppb}")
        qo = [pool.get(4, 2) for _ in range(4)]
        for e in range(2):
            r += L(f"v_cvt_pk_bf16_f32 v{qo[0]+e}, v{Q+2*e}, v{Q+2*e+1}")
            r += L(f"v_cvt_pk_bf16_f32 v{qo[3]+2+e}, v{Q+16+2*e}, v{Q+16+2*e+1}")
        for c in (1, 2, 3):
            for e in range(2):
                a, b = qo[c - 1] + 2 + e, qo[c] + e
                r += L(f"""
                    v_cvt_pk_bf16_f32 v{a}, v{Q+4*c+2*e}, v{Q+4*c+2*e+1}
                    v_cndmask_b32 v{b}, v{a}, 0, {gm(c-1)}
                    v_cndmask_b32 v{a}, 0, v{a}, {gm(c-1)}
                """)
        pool.put(Q, 20)
        S = [pool.get(4, 2) for _ in range(8)]
        for h in range(4):
            for w in range(2):
                kp = KP[t - 1 + w] + 2 * h
                r.append(I(f"v_mfma_f32_16x16x32_bf16 v[{S[2*h+w]}:{S[2*h+w]+3}], v[{kp}:{kp+3}], v[{qo[h]}:{qo[h]+3}], 0"))
        for q in qo:
            pool.put(q, 4)
        pool.put(KP[t], 10)
        return r, S

    def xred(op, M):
        return L(f"""
            v_permlane32_swap_b32 v{M}, v{M+1}
            v_permlane32_swap_b32 v{M+2}, v{M+3}
            {op} v{M}, v{M}, v{M+1}
            {op} v{M+2}, v{M+2}, v{M+3}
            v_permlane16_swap_b32 v{M}, v{M+2}
            {op} v{M}, v{M}, v{M+2}
        """)

    def xbc(M):
        return L(f"""
            v_mov_b32 v{M+2}, v{M}
            v_permlane16_swap_b32 v{M}, v{M+2}
            v_mov_b32 v{M+1}, v{M}
            v_mov_b32 v{M+3}, v{M+2}
            v_permlane32_swap_b32 v{M}, v{M+1}
            v_permlane32_swap_b32 v{M+2}, v{M+3}
        """)

    def softmax(t, S):
        geom = 0 if t == 0 else 1
        cb = CB[t]
        r = []
        M = pool.get(4, 2)
        for h in range(4):
            a, b = S[2 * h], S[2 * h + 1]
            for e in range(4):
                r += L(f"v_cndmask_b32 v{b+e}, v{b+e}, v{a+e}, {sel(geom, e)}")
            for e in range(4):
                r += L(f"v_fma_f32 v{b+e}, v{b+e}, v{cb+e}, v{cb+4+e}")
            r += L(f"v_max3_f32 v{M+h}, v{b}, v{b+1}, v{b+2}\nv_max_f32 v{M+h}, v{M+h}, v{b+3}")
        r += xred("v_max_f32", M) + xbc(M)
        for h in range(4):
            b = S[2 * h + 1]
            for e in range(4):
                r += L(f"v_sub_f32 v{b+e}, v{b+e}, v{M+h}")
            for e in range(4):
                r += L(f"v_exp_f32 v{b+e}, v{b+e}")
        for h in range(4):
            a, b = S[2 * h], S[2 * h + 1]
            r += L(f"v_add_f32 v{M+h}, v{b}, v{b+1}\nv_add_f32 v{a}, v{b+2}, v{b+3}\nv_add_f32 v{M+h}, v{M+h}, v{a}")
        r += xred("v_add_f32", M) + L(f"v_rcp_f32 v{M}, v{M}") + xbc(M)
        for h in range(4):
            a, b = S[2 * h], S[2 * h + 1]
            for e in range(4):
                r += L(f"v_mul_f32 v{b+e}, v{b+e}, v{M+h}")
            for e in range(2):
                r += L(f"v_cvt_pk_bf16_f32 v{a+2+e}, v{b+2*e}, v{b+2*e+1}")
            for e in range(2):
                r += L(f"v_and_b32 v{a+e}, v{a+2+e}, v{VPM+2*geom+e}")
            for e in range(2):
                r += L(f"v_xor_b32 v{a+2+e}, v{a+2+e}, v{a+e}")
            POP[t, h] = a
            pool.put(b, 4)
        pool.put(M, 4)
        pool.put(cb, 8)
        return r

    for t in (2, 1, 0):
        if t == 0:
            KP[-1] = pool.get(10, 2)
            marks["khr"] = len(vs)
            for c in range(5):
                vs.append(I(f"ds_read_b64 v[{KP[-1]+2*c}:{KP[-1]+2*c+1}], v{VL+2} offset:{512*c}", tag="khr"))
        a, S = q_ops(t)
        if t == 0:
            k = next(n for n, i in enumerate(a) if i.kind == "mfma")
            a.insert(k, W("khr"))
        vs += a + softmax(t, S)
    pool.put(KP[-1], 10)
    GK = 572
    fv = paced(vs, GK, 899)
    for n, f in enumerate(fv):
        if n >= kfix_end:
            f.lo = max(f.lo, 602)
        f.hi = min(899, f.lo + opt("aslack", 12))
        f.lo -= opt("alead", 30)
        f.lo = max(f.lo, GK if n < kfix_end else 602)
    barB = bar[12]
    assert fv[khw_end].hi < barB - 2
    assert fv[marks["khr"]].lo > barB
    for f in tr:
        if f.ins.mn == "WAIT" and f.lo == barB - 2:
            f.ins.need.append("khw")
    misc = paced(stats_compute(), 46, 170, False) + paced(cs, 170, 400) + [F(i, 402, 410) for i in sl]
    misc += paced(c2, 470, 480) + paced(c3, 486, 494) + paced(c4, 500, 570)
    gB = opt("agb", 590)
    misc += [F(i, gB, gB + 4) for i in poll_ld(VPB, "pb")]
    misc += [F(i, gB + 50, gB + 54) for i in check("Ab", poll_ld(VPB), poll_cmp(), "pb")]
    NB = opt("anb", 9)
    bl = []
    for i in range(NB):
        bl += b_loads(i)
    bs = paced(bl, 660, 898)
    for f in bs:
        if f.ins.kind == "vload":
            f.lo = max(f.lo, 600 + 60 * (f.ins.wr[-1][1] // 48 + 1))
        f.hi = min(899, f.lo + 10)
    misc += bs
    st = {}
    body, left = schedule(mf, [waits, tr, dma, misc, ooo(fv, 28)], st)
    print("ATT sched", st, file=sys.stderr)
    body = stamped(body, {120: 4, 300: 5, 600: 6, 760: 7})
    o += stamp(2) + pre + stamp(3) + body + stamp(8)

    NM2 = [pool.get(4, 2) for _ in range(3)]
    RS2 = [pool.get(4, 2) for _ in range(3)]
    WSV = pool.get(6, 2)
    tl = []
    BA = pool.get(1)
    tl += L(f"v_and_b32 v{BA}, 15, v0\nv_lshlrev_b32 v{BA}, 2, v{BA}")
    for t in range(3):
        tl.append(I(f"ds_read_b128 v[{NM2[t]}:{NM2[t]+3}], v{VL} offset:{64*(t+1)}", tag="nm2"))
        tl.append(I(f"ds_read_b128 v[{RS2[t]}:{RS2[t]+3}], v{VL} offset:{256 + 64*(t+1)}", tag="nm2"))
    for c in range(5):
        tl.append(I(f"ds_bpermute_b32 v{WSV+c}, v{BA}, v{AV+12*c}", tag="nm2"))
    rb = []
    for i in range(NB, 12):
        rb += b_loads(i)
    tl += rb[:7]
    rb = rb[7:]
    tl.append(W("nm2"))
    pr = lambda x: f"v[{x}:{x+1}]"

    def vfix(t):
        r = []
        for c in range(5):
            a = AV + 12 * c + 4 * t
            wb, hi = WSV + (c & ~1), c & 1
            for e in (0, 2):
                r += L(f"v_pk_fma_f32 {pr(a+e)}, {pr(NM2[t]+e)}, {pr(wb)}, {pr(a+e)} op_sel:[0,{hi},0] op_sel_hi:[1,{hi},1]")
            for e in (0, 2):
                r += L(f"v_pk_mul_f32 {pr(a+e)}, {pr(a+e)}, {pr(RS2[t]+e)}")
            for e in ((1, 0) if t == 0 else (0, 1)):
                r += L(f"v_cvt_pk_bf16_f32 v{AV+12*c+2*(t+1)+e}, v{a+2*e}, v{a+2*e+1}")
            while rb and rb[0].scalar:
                r.append(rb.pop(0))
            if rb:
                r.append(rb.pop(0))
        return r

    tl += vfix(1) + vfix(2)
    for c in range(5):
        tl.append(I(f"ds_write_b64 v{VL+1}, v[{AV+12*c+6}:{AV+12*c+7}] offset:{4096 + 512*c}", tag="vhw"))
    tl += vfix(0) + rb
    tl += poll_ld(VPE, "pe")
    tl += [W("vhw"), I("s_barrier")]
    for c in range(5):
        tl.append(I(f"ds_read_b64 v[{AV+12*c}:{AV+12*c+1}], v{VL+2} offset:{4096 + 512*c}", tag="vhr"))
        pool.put(AV + 12 * c + 8, 4)
    for t in range(3):
        pool.put(NM2[t], 4)
        pool.put(RS2[t], 4)
    OD = {}

    def pv(t):
        r = []
        for h in range(4):
            for w in range(2):
                d = OD[t, h, w] = pool.get(4, 2)
                vp = AV + 12 * (h + w) + 2 * t
                r.append(I(f"v_mfma_f32_16x16x32_bf16 v[{d}:{d+3}], v[{vp}:{vp+3}], v[{POP[t, h]}:{POP[t, h]+3}], 0"))
        return r

    def ostore(t):
        r = []
        ob = [POP[t, 0], POP[t, 1], POP[t, 2]]
        for c in range(5):
            if c == 0:
                s = OD[t, 0, 0]
            elif c == 4:
                s = OD[t, 3, 1]
            else:
                s = OD[t, c, 0]
                for e in range(4):
                    r += L(f"v_cndmask_b32 v{s+e}, v{s+e}, v{OD[t, c-1, 1]+e}, {gm(c-1)}")
            for e in range(2):
                r += L(f"v_cvt_pk_bf16_f32 v{ob[c//2]+2*(c % 2)+e}, v{s+2*e}, v{s+2*e+1}")
            if c in (1, 3):
                r.append(I(f"buffer_store_dwordx4 v[{ob[c//2]}:{ob[c//2]+3}], v{VOS+t}, {R(R_WS)}, s{S_OB + c//2} offen sc1"))
            if c == 4:
                r.append(I(f"buffer_store_dwordx2 v[{ob[2]}:{ob[2]+1}], v{VOS+t}, {R(R_WS)}, s{S_OB+2} offen sc1"))
        for h in range(4):
            for w in range(2):
                pool.put(OD[t, h, w], 4)
        return r

    tl += pv(2)
    m1 = pv(1)
    tl += schedule(m1, [[F(i, 1, 7) for i in ostore(2)]])[0]
    tl.append(W("vhr"))
    m0 = pv(0)
    tl += schedule(m0, [[F(i, 0, 7) for i in ostore(1)]])[0]
    tl += ostore(0)
    o += tl
    o += stamp(9)
    o += check("Ae", poll_ld(VPE), poll_cmp(), "pe", True)
    o += L("s_branch JOIN")
    return o


def head(code_bytes):
    T = S_T
    o = L("s_cmp_ge_u32 s2, 256\ns_cbranch_scc1 END")
    if STAMP:
        o += L("s_memrealtime s[42:43]")
    o += L(f"""
        s_load_dwordx16 s[4:19], s[0:1], 0
        s_load_dwordx4 s[20:23], s[0:1], 64
        v_readfirstlane_b32 s{S_W}, v0
        s_lshr_b32 s{T}, s2, 3
    """)
    if opt("cpf", 1):
        per = -(-code_bytes // (32 * 128))
        o += L(f"""
            s_getpc_b64 s[{T+1}:{T+2}]
            s_mul_i32 s{T+3}, s{T}, {per}
            v_min_u32 v1, {per-1}, v0
            v_add_u32 v1, s{T+3}, v1
            v_min_u32 v1, {code_bytes//128 - 1}, v1
            v_lshlrev_b32 v1, 7, v1
            v_mov_b32 v3, s{T+2}
            v_add_co_u32 v2, vcc, s{T+1}, v1
            v_addc_co_u32 v3, vcc, 0, v3, vcc
        """)
        o.append(I("global_load_dword v246, v[2:3], off", tag="cpf"))
    RA, RB_, RC, RD, RE = opt("ra", 2), opt("rb", 3), opt("rc", 2), opt("rd", 5), opt("re", 1)
    o += L(f"""
        s_lshr_b32 s{S_W}, s{S_W}, 6
        v_and_b32 v0, 63, v0
        s_and_b32 s{T+1}, s2, 3
        s_bfe_u32 s{S_PAR}, s2, 0x10002
        s_cmp_lt_u32 s{T}, 12
        s_cbranch_scc0 H_notatt
        s_lshr_b32 s{S_RB}, s{T}, 1
        s_and_b32 s{S_CG}, s{T}, 1
        s_lshl_b32 s{T+1}, s{T+1}, 1
        s_add_u32 s{S_CG}, s{S_CG}, s{T+1}
        s_mul_i32 s{T}, s{S_RB}, 171
        s_mul_i32 s{S_PL0}, s{S_W}, 47
        s_add_u32 s{S_PL0}, s{S_PL0}, s{T}
        s_sub_u32 s{S_PL0}, s{S_PL0}, 7
        s_add_u32 s{S_PEND}, s{T}, 171
        s_mul_i32 s{T}, s{S_RB}, {RC}
        s_mul_i32 s{T+1}, s{S_CG}, {RD}
        s_add_u32 s{T}, s{T}, {RE}
        s_branch H_common
        H_notatt:
        s_cmp_lt_u32 s{T}, 30
        s_cbranch_scc1 H_two
        s_lshl_b32 s{T+1}, s{T+1}, 1
        s_add_u32 s{T+1}, s{T+1}, s{T}
        s_sub_u32 s{T+1}, s{T+1}, 30
        s_mul_i32 s{S_RB}, s{S_PAR}, 6
        s_add_u32 s{S_RB}, s{S_RB}, s{T+1}
        s_mov_b32 s{S_CG}, 13
        s_movk_i32 s{F_UF}, 1000
        s_cmp_lt_u32 s{T+1}, 5
        s_cbranch_scc1 H_ffn
        s_mul_i32 s{S_RB}, s{S_PAR}, 3
        s_add_u32 s{S_RB}, s{S_RB}, s{T+1}
        s_sub_u32 s{S_RB}, s{S_RB}, 5
        s_branch HELPER
        H_two:
        s_mul_i32 s{T+1}, s{T+1}, 18
        s_add_u32 s{T+1}, s{T+1}, s{T}
        s_sub_u32 s{T+1}, s{T+1}, 12
        s_lshl_b32 s{F_UF}, s{T+1}, 1
        s_add_u32 s{F_UF}, s{F_UF}, s{S_PAR}
        s_mul_i32 s{T+2}, s{S_W}, 144
        s_add_u32 s{F_UF}, s{F_UF}, s{T+2}
        s_cmp_eq_u32 s{S_PAR}, 1
        s_cselect_b32 s{T+2}, 35, 42
        s_cmp_ge_u32 s{T+1}, s{T+2}
        s_cselect_b32 s{T+2}, s{T+2}, 0
        s_cselect_b32 s{S_CG}, 7, 0
        s_cselect_b32 s{T+4}, 1, 0
        s_sub_u32 s{T+1}, s{T+1}, s{T+2}
        s_cmp_eq_u32 s{S_PAR}, s{T+4}
        s_cselect_b32 s{T+2}, 43, 52
        s_cselect_b32 s{T+4}, 6, 5
        s_mul_i32 s{T+2}, s{T+2}, s{T+1}
        s_lshr_b32 s{T+2}, s{T+2}, 8
        s_add_u32 s{S_CG}, s{S_CG}, s{T+2}
        s_mul_i32 s{T+2}, s{T+2}, s{T+4}
        s_sub_u32 s{S_RB}, s{T+1}, s{T+2}
        s_sub_u32 s{T+4}, 11, s{T+4}
        s_mul_i32 s{T+4}, s{T+4}, s{S_PAR}
        s_add_u32 s{S_RB}, s{S_RB}, s{T+4}
        H_ffn:
        s_lshl_b32 s{T}, s{S_RB}, 2
        s_add_u32 s{T}, s{T}, s{S_W}
        s_cmp_ge_u32 s{T}, 22
        s_cselect_b32 s{S_PAR}, 1, 0
        s_cselect_b32 s{T+1}, 22, 0
        s_sub_u32 s{T}, s{T}, s{T+1}
        s_mul_i32 s{S_PL0}, s{T}, 47
        s_movk_i32 s{S_PEND}, 1024
        s_mul_i32 s{T}, s{S_RB}, {RA}
        s_mul_i32 s{T+1}, s{S_CG}, {RB_}
        H_common:
        s_add_u32 s{T}, s{T}, s{T+1}
        s_mul_i32 s{T+1}, s{T}, 205
        s_lshr_b32 s{T+1}, s{T+1}, 11
        s_mul_i32 s{T+1}, s{T+1}, 10
        s_sub_u32 s{T}, s{T}, s{T+1}
        s_lshl_b32 s{T}, s{T}, 2
        s_mov_b32 s{T+1}, 0x76543210
        s_movk_i32 s{T+2}, 0x98
        s_lshr_b64 s[{S_SEQ}:{S_SEQ+1}], s[{T+1}:{T+2}], s{T}
        s_sub_u32 s{T}, 40, s{T}
        s_lshl_b64 s[{T+1}:{T+2}], s[{T+1}:{T+2}], s{T}
        s_or_b64 s[{S_SEQ}:{S_SEQ+1}], s[{S_SEQ}:{S_SEQ+1}], s[{T+1}:{T+2}]
        s_add_u32 s{T}, s{S_PL0}, 47
        s_min_u32 s{S_PEND}, s{S_PEND}, s{T}
        s_min_u32 s{S_PEND}, s{S_PEND}, 0x400
    """)
    o += x_addr(4)
    o += L("s_waitcnt lgkmcnt(0)") + (L("s_mov_b32 s3, s42") if STAMP else []) + stamp(1)
    o += srd(R_X, P_X, None)
    o += x_dma(0)
    o += srd(R_XF, P_X, 2048 * 1280) + srd(R_WS, P_WS, WS_SIZE)
    o += L("s_cmp_lt_u32 s2, 96\ns_cbranch_scc0 H_fpro")
    return o


def finish(code, name, vm0=None, skip=0):
    rep = []
    c = resolve_waits(code, vm0=vm0)
    c = fix_hazards(c, rep)
    if skip:
        k = next(n for n, i in enumerate(c) if i.text == skip)
        c = c[k:]
    n = sum(r[0] for r in rep)
    print(f"{name}: {len(c)} instrs, {len(rep)} hazard nops ({n} states)", file=sys.stderr)
    if opt("v", 0):
        for r in rep:
            print("   ", r, file=sys.stderr)
    return text_of(c)


def build(code_bytes):
    del SLOW[:]
    k = NAME + "_kernel"
    out = [f"; @launch grid=(256,1,1) block=(256,1,1) lds={LDS_BYTES}"]
    out.append('.amdgcn_target "amdgcn-amd-amdhsa--gfx950"\n.text')
    out.append(f".globl {k}\n.p2align 8\n.type {k},@function\n{k}:")
    hd = head(code_bytes)
    ap = L("H_apro:") + att_pro() + L("s_branch ATT")
    fp = L("H_fpro:") + ffn_pro()
    out.append(finish(hd + ap, "head"))
    out.append(finish(hd + fp + ffn(), "ffn", skip="H_fpro:"))
    role = I("buffer_inv sc1", tag="role")
    out.append(finish(phase2(), "phase2", vm0=[role]))
    out.append(finish(hd + ap + att(), "att", skip="ATT:"))
    out.append(finish(helper(), "helper"))
    out.append(finish(slowjoin(), "slowjoin"))
    for s in SLOW:
        out.append(finish(s, "slow"))
    out.append("END:\n  s_endpgm\nCODE_END:")
    out.append(f""".section .rodata,"a"
.p2align 6
.amdhsa_kernel {k}
  .amdhsa_next_free_vgpr 512
  .amdhsa_next_free_sgpr 102
  .amdhsa_accum_offset 256
  .amdhsa_group_segment_fixed_size 0
  .amdhsa_kernarg_size 80
  .amdhsa_user_sgpr_count 2
  .amdhsa_user_sgpr_kernarg_segment_ptr 1
  .amdhsa_system_sgpr_workgroup_id_x 1
  .amdhsa_float_denorm_mode_32 3
.end_amdhsa_kernel""")
    return "\n".join(out) + "\n"


def code_size(text):
    import subprocess, tempfile, os
    d = tempfile.mkdtemp()
    open(d + "/a.s", "w").write(text)
    subprocess.run(["clang", "-x", "assembler", "-target", "amdgcn-amd-amdhsa", "-mcpu=gfx950", "-c",
                    d + "/a.s", "-o", d + "/a.o"], check=True)
    r = subprocess.run(["llvm-readelf", "-s", d + "/a.o"], capture_output=True, text=True).stdout
    for ln in r.splitlines():
        if ln.endswith(" CODE_END"):
            return int(ln.split()[1], 16)


if __name__ == "__main__":
    err, sys.stderr = sys.stderr, open("/dev/null", "w")
    n = code_size(build(65536))
    sys.stderr = err
    t = build(n)
    print("code bytes", n, file=sys.stderr)
    sys.stdout.write(t)
```

```python
import math, struct, sys
from asmlib import *

NAME = "recurrent_scan__sliding_local_dilated__glu_gated_geglu__prompt"
OPT = dict(a.lstrip("-").split("=") if "=" in a else (a.lstrip("-"), "1") for a in sys.argv[1:])
opt = lambda k, d: int(OPT.get(k, d))
STAMP = opt("s", 0) or ("amp" in OPT)
AMP = [int(x) for x in OPT["amp"].split(",")] if "amp" in OPT else None

FS = opt("fs", 128)
WS_STATS = 0x1000
WS_FB, WS_FH, WS_FO = 0x10000, 0x40000, 0x80000
WS_A2 = 0x100000
WS_B2 = 0xB00000
WS_STAMP = 0xE00000
WS_SIZE = 0x1000000
NKB = 74
NUNIT = 500
OOB = 0x40000000
LDS_BYTES = 163840
SPIN = 20000


def f2u(x):
    return struct.unpack("<I", struct.pack("<f", x))[0]


def hx(x):
    return "0x%x" % (x & 0xFFFFFFFF)


LOG2E = 1.4426950408889634
GK1 = -2.0 * math.sqrt(2.0 / math.pi) * LOG2E
GK2 = GK1 * 0.044715
ATT_C = (20 ** -0.5) * LOG2E

P_X, P_QKV, P_WO, P_WG, P_WU, P_WD, P_OUT, P_DBG, P_WS = 4, 6, 8, 12, 14, 16, 18, 20, 22
R_X, R_A, R_B, R_WS, R_XF = 24, 28, 32, 36, 40
S_W, S_PL0, S_PAR, S_PEND = 44, 45, 46, 47
S_XL, S_XO, S_WL, S_WO, S_WB = 48, 49, 50, 51, 52
S_RB, S_CG = 53, 54
S_T = 55
S_SEQ = 60
S_TAG, S_FO = 62, 63
S_BE, S_BL, S_BO, S_BT = 64, 65, 66, 67
S_CNT = 68
S_R = 70
VB, VTAG, VFL, VPB, VPE, VPL, VPD, VST = 248, 249, 250, 251, 252, 253, 254, 255
ST_B, ST_U = 124, 140
VXA, VXR = 176, 182
XRING = 81920
XSLOT = 6272
SLOW = []


def srd(r, p, nbytes, bias=0):
    o = []
    if bias:
        o += L(f"s_sub_u32 s{r}, s{p}, {bias}\ns_subb_u32 s{r+1}, s{p+1}, 0")
    else:
        o += L(f"s_mov_b64 s[{r}:{r+1}], s[{p}:{p+1}]")
    if nbytes is not None:
        o += L(f"s_mov_b32 s{r+2}, {hx(nbytes + bias)}")
    o += L(f"s_mov_b32 s{r+3}, 0x20000")
    return o


def R(r):
    return f"s[{r}:{r+3}]"


def stamp(i):
    if not STAMP or (AMP and i not in AMP[1:] and i != 31):
        return []
    return L(f"s_memrealtime s[10:11]\ns_memtime s[0:1]\ns_waitcnt lgkmcnt(0)\n"
             f"v_writelane_b32 v{VST}, s10, {i}\nv_writelane_b32 v{VST}, s0, {i+32}")


def stamped(body, at):
    out, n = [], 0
    for i in body:
        if i.kind == "mfma":
            if n in at:
                out += stamp(at[n])
            n += 1
        out.append(i)
    return out


def stamp_out():
    if not STAMP:
        return []
    return stamp(30) + L("s_waitcnt vmcnt(0)") + stamp(31) + L(f"""
        v_writelane_b32 v{VST}, s3, 0
        s_lshl_b32 s10, s2, 2
        s_add_u32 s10, s10, s{S_W}
        s_lshl_b32 s10, s10, 8
        s_add_u32 s10, s10, {hx(WS_STAMP)}
        v_lshlrev_b32 v1, 2, v0
        buffer_store_dword v{VST}, v1, {R(R_WS)}, s10 offen
    """) + amp_out()


def amp_out():
    if not AMP:
        return []
    o = L(f"""
        s_cmp_lg_u32 s2, {AMP[0]}
        s_cbranch_scc1 AMP_D
        s_cmp_lg_u32 s{S_W}, 0
        s_cbranch_scc1 AMP_D
        v_lshlrev_b32 v1, 4, v0
        s_mov_b32 s10, {hx(WS_STAMP + 0x80000)}
        buffer_load_dwordx4 v[4:7], v1, {R(R_WS)}, s10 offen sc1
        s_waitcnt vmcnt(0)
        v_subrev_u32 v4, s3, v4
        v_subrev_u32 v5, s3, v5
        v_subrev_u32 v6, s3, v6
        v_subrev_u32 v7, s3, v7
        v_min_i32 v8, v4, v5
        v_min3_i32 v8, v8, v6, v7
        v_max_i32 v9, v4, v5
        v_max3_i32 v9, v9, v6, v7
        s_mov_b32 s12, 0
        s_mov_b32 s13, 0
    """)
    for l in range(64):
        o += L(f"v_readlane_b32 s10, v8, {l}\nv_readlane_b32 s11, v9, {l}\ns_nop 1\ns_min_i32 s12, s12, s10\ns_max_i32 s13, s13, s11")
    o += L("s_add_u32 s12, s12, s3\ns_add_u32 s13, s13, s3")
    for d, k in ((14, AMP[1]), (15, AMP[2])):
        o += L(f"s_mov_b32 s{d}, s{12 + k - 100}" if k >= 100 else f"v_readlane_b32 s{d}, v{VST}, {k}")
    o += L(f"""
        v_readlane_b32 s16, v{VST}, 31
        s_nop 2
        s_sub_u32 s14, s15, s14
        s_min_u32 s14, s14, 5000
        s_mul_i32 s14, s14, 10
        s_add_u32 s14, s14, 300
        AMP_L:
        s_memrealtime s[10:11]
        s_waitcnt lgkmcnt(0)
        s_sub_u32 s10, s10, s16
        s_cmp_lt_u32 s10, s14
        s_cbranch_scc1 AMP_L
        AMP_D:
    """)
    return o


def rowof(vd, vp, vt):
    return L(f"""
        v_and_b32 v{vt}, 0x3ff, v{vp}
        v_lshrrev_b32 v{vd}, 10, v{vp}
        v_lshl_add_u32 v{vd}, v{vt}, 1, v{vd}
    """)


def spin(lab, loads, cmpv, back=None):
    o = L(f"{lab}:\ns_mov_b32 s{S_CNT}, {SPIN}\n{lab}_l:")
    o += [I(i.text) for i in loads] + L("s_waitcnt vmcnt(0)") + [I(i.text) for i in cmpv]
    o += L(f"""
        s_cbranch_vccz {lab}_d
        s_sub_u32 s{S_CNT}, s{S_CNT}, 1
        s_cbranch_scc0 {lab}_l
        {lab}_d:
    """)
    if back:
        o += L(f"s_branch {back}")
    return o


def check(lab, loads, cmpv, tag, publish=False):
    sp = spin("S" + lab, loads, cmpv, "B" + lab)
    if publish:
        sp[1:1] = L(f"s_waitcnt vmcnt(0)\nbuffer_store_dword v{VTAG}, v{VFL}, {R(R_WS)}, s{S_FO} offen sc1")
    SLOW.append(sp)
    return [W(tag)] + cmpv + [G(f"s_cbranch_vccnz S{lab}\nB{lab}:")]


def poll_ld(va, tag=None):
    return [I(f"buffer_load_dword v{VPD}, v{va}, {R(R_WS)}, 0 offen sc1", tag=tag)]


def poll_cmp():
    return L(f"v_cmp_ne_u32 vcc, v{VPD}, v{VTAG}")


def stats_loads():
    vb = ST_B
    a, a2, p, t = vb + 12, vb + 13, vb + 14, vb + 15
    o = L(f"""
        s_lshl_b32 s{S_T}, s2, 2
        s_add_u32 s{S_T}, s{S_T}, s{S_W}
        s_lshl_b32 s{S_T}, s{S_T}, 1
        v_lshrrev_b32 v{p}, 5, v0
        v_add_u32 v{p}, s{S_T}, v{p}
        v_mul_u32_u24 v{a}, 1280, v{p}
        v_and_b32 v{t}, 31, v0
        v_lshl_add_u32 v{a}, v{t}, 4, v{a}
        v_and_b32 v{t}, 16, v0
        v_lshl_add_u32 v{a2}, v{t}, 26, v{a}
        v_mov_b32 v{VTAG}, 0
    """)
    o += [I(f"buffer_load_dwordx4 v[{vb}:{vb+3}], v{a}, {R(R_XF)}, 0 offen", tag="st_ld"),
          I(f"buffer_load_dwordx4 v[{vb+4}:{vb+7}], v{a}, {R(R_XF)}, 0 offen offset:512", tag="st_ld"),
          I(f"buffer_load_dwordx4 v[{vb+8}:{vb+11}], v{a2}, {R(R_XF)}, 0 offen offset:1024", tag="st_ld"),
          I(f"buffer_load_dword v{VTAG}, v{VTAG}, {R(R_WS)}, 0 offen sc1", tag="st_ld")]
    return o


def half_reduce(v, t):
    o = []
    for c in ("quad_perm:[1,0,3,2]", "quad_perm:[2,3,0,1]", "row_half_mirror", "row_mirror"):
        o += L(f"v_add_f32_dpp v{v}, v{v}, v{v} {c} row_mask:0xf bank_mask:0xf")
    o += L(f"""
        v_mov_b32 v{t}, v{v}
        v_permlane16_swap_b32 v{v}, v{t}
        v_add_f32 v{v}, v{v}, v{t}
    """)
    return o


def rne_bf16(v):
    return L(f"v_cvt_pk_bf16_f32 v{v}, v{v}, v{v}\nv_lshlrev_b32 v{v}, 16, v{v}")


def stats_compute():
    vb, vu = ST_B, ST_U
    p, t = vb + 14, vb + 15
    s0, s1, q0, q1 = vu + 24, vu + 25, vu + 26, vu + 27
    o = [W("st_ld")]
    o += L(f"""
        s_mov_b32 s{S_T}, 1664525
        v_mul_lo_u32 v{VTAG}, v{VTAG}, s{S_T}
        v_add_u32 v{VTAG}, 1013904223, v{VTAG}
    """)
    for i in range(12):
        o += L(f"v_lshlrev_b32 v{vu+2*i}, 16, v{vb+i}\nv_and_b32 v{vu+2*i+1}, 0xffff0000, v{vb+i}")
    o += L(f"v_add_f32 v{s0}, v{vu}, v{vu+2}\nv_add_f32 v{s1}, v{vu+1}, v{vu+3}")
    for i in range(2, 12):
        o += L(f"v_add_f32 v{s0}, v{s0}, v{vu+2*i}\nv_add_f32 v{s1}, v{s1}, v{vu+2*i+1}")
    o += L(f"v_add_f32 v{s0}, v{s0}, v{s1}")
    o += half_reduce(s0, t)
    o += L(f"""
        v_and_b32 v{t}, 16, v0
        v_cmp_eq_u32 vcc, 0, v{t}
        v_mul_f32 v{s0}, {hx(f2u(-1.0/640))}, v{s0}
    """)
    for i in range(16):
        o += L(f"v_add_f32 v{vu+i}, v{vu+i}, v{s0}")
    o += L(f"v_cndmask_b32 v{s1}, 0, v{s0}, vcc")
    for i in range(16, 24):
        o += L(f"v_add_f32 v{vu+i}, v{vu+i}, v{s1}")
    o += L(f"v_mul_f32 v{q0}, v{vu}, v{vu}\nv_mul_f32 v{q1}, v{vu+1}, v{vu+1}")
    for i in range(1, 12):
        o += L(f"v_fmac_f32 v{q0}, v{vu+2*i}, v{vu+2*i}\nv_fmac_f32 v{q1}, v{vu+2*i+1}, v{vu+2*i+1}")
    o += L(f"v_add_f32 v{q0}, v{q0}, v{q1}")
    o += half_reduce(q0, t)
    o += L(f"v_mul_f32 v{q0}, {hx(f2u(1.0/640))}, v{q0}")
    o += rne_bf16(q0)
    o += L(f"v_add_f32 v{q0}, {hx(f2u(1e-5))}, v{q0}")
    o += rne_bf16(q0)
    o += L(f"v_sqrt_f32 v{q0}, v{q0}")
    d = vb
    o += L(f"""
        v_cvt_pk_bf16_f32 v{s0}, v{s0}, v{s0}
        v_lshlrev_b32 v{d}, 16, v{s0}
        v_cvt_pk_bf16_f32 v{q0}, v{q0}, v{q0}
        v_lshlrev_b32 v{d+2}, 16, v{q0}
        v_mov_b32 v{d+1}, v{VTAG}
        v_mov_b32 v{d+3}, v{VTAG}
        v_and_b32 v{t}, 1, v{p}
        v_lshrrev_b32 v{p}, 1, v{p}
        v_lshl_add_u32 v{p}, v{t}, 10, v{p}
        v_lshlrev_b32 v{p}, 4, v{p}
        v_and_b32 v{t}, 31, v0
        v_lshl_add_u32 v{p}, v{t}, 25, v{p}
        v_add_u32 v{p}, {WS_STATS}, v{p}
    """)
    o.append(I(f"buffer_store_dwordx4 v[{d}:{d+3}], v{p}, {R(R_WS)}, 0 offen sc1", tag="st_st"))
    if AMP:
        o += L(f"""
            s_lshl_b32 s{S_T}, s2, 2
            s_add_u32 s{S_T}, s{S_T}, {hx(WS_STAMP + 0x80000)}
            v_lshlrev_b32 v{t}, 24, v0
            v_mov_b32 v{s0}, s3
            buffer_store_dword v{s0}, v{t}, {R(R_WS)}, s{S_T} offen sc1
        """)
    return o


def p2_setup(vt):
    T = S_T
    sh = int(math.log2(FS))
    o = L(f"""
        v_lshlrev_b32 v{VB}, 4, v0
        s_bfe_u32 s{T}, s2, 0x30003
        s_mul_i32 s{T+1}, s{T}, {NKB*5120}
        s_add_u32 s{T+1}, s{T+1}, {hx(WS_B2)}
        s_mul_i32 s{T+2}, s{S_W}, 7
        s_mul_i32 s{S_BE}, s{T+2}, 5120
        s_add_u32 s{S_BE}, s{S_BE}, s{T+1}
        s_min_u32 s{T+3}, s{T+2}, 20
        s_mul_i32 s{S_BL}, s{T+3}, 5120
        s_add_u32 s{S_BL}, s{S_BL}, s{T+1}
        s_add_u32 s{S_BL}, s{S_BL}, {28*5120}
        s_mul_i32 s{S_BO}, s{S_W}, {5*5120}
        s_add_u32 s{S_BO}, s{S_BO}, s{T+1}
        s_add_u32 s{S_BO}, s{S_BO}, {54*5120}
        s_mul_i32 s{T}, s{T}, 5
        s_lshr_b32 s{T}, s{T}, 2
        v_lshrrev_b32 v{vt}, 1, v0
        v_min_u32 v{vt}, 18, v{vt}
        s_mul_i32 s{T+1}, s{S_W}, 5
        s_add_u32 s{T+1}, s{T+1}, 40
        v_mov_b32 v{vt+1}, s{T+1}
        s_add_u32 s{T+1}, s{T+3}, 21
        v_mov_b32 v{vt+2}, s{T+1}
        v_cmp_gt_u32 vcc, 14, v{vt}
        v_cndmask_b32 v{vt+1}, v{vt+1}, v{vt+2}, vcc
        v_mov_b32 v{vt+2}, s{T+2}
        v_cmp_gt_u32 vcc, 7, v{vt}
        v_cndmask_b32 v{vt+1}, v{vt+1}, v{vt+2}, vcc
        v_add_u32 v{vt}, v{vt}, v{vt+1}
        v_and_b32 v{vt+1}, 1, v0
        v_lshl_add_u32 v{vt}, v{vt}, 4, v{vt+1}
        v_add_u32 v{vt}, s{T}, v{vt}
        v_lshlrev_b32 v{vt}, {sh}, v{vt}
        v_add_u32 v{VPB}, {hx(WS_FB)}, v{vt}
    """)
    o += L(f"""
        s_and_b32 s{T}, s2, 3
        s_lshl_b32 s{T}, s{T}, 2
        s_lshr_b32 s{T+1}, s2, 6
        s_add_u32 s{T}, s{T}, s{T+1}
        s_lshl_b32 s{T}, s{T}, 6
        s_mul_i32 s{T+1}, s{T}, 1395
        s_lshr_b32 s{T+1}, s{T+1}, 16
        v_bfe_u32 v{vt}, v0, 3, 2
        v_add_u32 v{vt+1}, s{T+1}, v{vt}
        s_add_u32 s{T+1}, s{T}, 63
        s_mul_i32 s{T+1}, s{T+1}, 1395
        s_lshr_b32 s{T+1}, s{T+1}, 16
        v_min_u32 v{vt+1}, s{T+1}, v{vt+1}
        s_bfe_u32 s{T+4}, s2, 0x10002
        s_mul_i32 s{T+1}, s{T+4}, 22
        v_add_u32 v{vt+1}, s{T+1}, v{vt+1}
        v_and_b32 v{vt+2}, 7, v0
        v_min_u32 v{VPE}, 6, v{vt+2}
        v_add_u32 v{VPE}, s{T+2}, v{VPE}
        v_lshrrev_b32 v{VPE}, 1, v{VPE}
        v_lshl_add_u32 v{VPE}, v{VPE}, 6, v{vt+1}
        v_lshlrev_b32 v{VPE}, {sh}, v{VPE}
        v_add_u32 v{VPE}, {hx(WS_FH)}, v{VPE}
        s_lshr_b32 s{T+1}, s{S_W}, 1
        s_sub_u32 s{T+1}, 6, s{T+1}
        v_min_u32 v{VPL}, s{T+1}, v{vt+2}
        v_add_u32 v{VPL}, s{T+3}, v{VPL}
        v_lshrrev_b32 v{VPL}, 1, v{VPL}
        v_lshl_add_u32 v{VPL}, v{VPL}, 6, v{vt+1}
        v_lshlrev_b32 v{VPL}, {sh}, v{VPL}
        v_add_u32 v{VPL}, {hx(WS_FH + 16*64*FS)}, v{VPL}
    """)

    def aw(d, x, t):
        return L(f"""
            s_mul_i32 s{d}, s{x}, 3067
            s_lshr_b32 s{d}, s{d}, 19
            s_mul_i32 s{t}, s{d}, 171
            s_sub_u32 s{t}, s{x}, s{t}
            s_add_u32 s{t}, s{t}, 7
            s_mul_i32 s{t}, s{t}, 1395
            s_lshr_b32 s{t}, s{t}, 16
            s_lshl_b32 s{d}, s{d}, 2
            s_add_u32 s{d}, s{d}, s{t}
        """)

    o += aw(T + 1, T, T + 2)
    o += L(f"v_add_u32 v{vt}, s{T+1}, v{vt}\ns_add_u32 s{T}, s{T}, 63")
    o += aw(T + 1, T, T + 2)
    o += L(f"""
        v_min_u32 v{vt}, s{T+1}, v{vt}
        s_mul_i32 s{T+4}, s{T+4}, 24
        s_lshl_b32 s{T+1}, s{S_W}, 7
        s_add_u32 s{T+4}, s{T+4}, s{T+1}
        v_add_u32 v{vt}, s{T+4}, v{vt}
        v_and_b32 v{vt+1}, 1, v0
        v_lshl_add_u32 v{vt}, v{vt+1}, 6, v{vt}
        v_lshlrev_b32 v{vt}, {sh}, v{vt}
        v_add_u32 v{vt}, {hx(WS_FO)}, v{vt}
        v_cmp_gt_u32 vcc, 32, v0
        v_cndmask_b32 v{VPL}, v{vt}, v{VPL}, vcc
    """)
    return o


def flag_addr(sidx):
    return L(f"""
        v_lshlrev_b32 v{VFL}, 24, v0
        v_add_u32 v{VFL}, s{sidx}, v{VFL}
    """)


def b_loads(i):
    base, k = ((S_BE, i), (S_BL, i - 7), (S_BO, i - 14))[0 if i < 7 else 1 if i < 14 else 2]
    b = 20 * (i % 12)
    o = L(f"s_add_u32 s{S_BT}, s{base}, {k*5120}")
    if i == 13:
        o = [G(f"s_add_u32 s{S_BT}, s{base}, {k*5120}\ns_cmp_ge_u32 s{S_W}, 2\ns_cselect_b32 s{S_BT}, {hx(OOB)}, s{S_BT}")]
    for c in range(5):
        if c == 4:
            o += L(f"s_add_u32 s{S_BT}, s{S_BT}, 4096")
        o.append(I(f"buffer_load_dwordx4 a[{b+4*c}:{b+4*c+3}], v{VB}, {R(R_WS)}, s{S_BT} offen offset:{(c % 4)*1024} sc1",
                   tag=("B", i)))
    return o


def side_job(s_kb, lab):
    ra, rb, t, u = S_R, S_R + 1, S_R + 2, S_R + 3
    so = S_R + 4
    lb = S_R + 8
    o = L(f"""
        s_cmp_ge_u32 s{s_kb}, 54
        s_cbranch_scc1 {lab}_o
        s_sub_u32 s{t}, s{s_kb}, 28
        s_lshr_b32 s{ra}, s{t}, 1
        s_lshl_b32 s{ra}, s{ra}, 7
        s_and_b32 s{t}, s{t}, 1
        s_lshl_b32 s{t}, s{t}, 5
        s_add_u32 s{ra}, s{ra}, s{t}
        s_add_u32 s{ra}, s{ra}, 64
        s_add_u32 s{rb}, s{ra}, 16
    """)
    o += srd(R_A, P_WD, 1728 * 1280)
    o += L(f"""
        s_branch {lab}_go
        {lab}_o:
        s_sub_u32 s{t}, s{s_kb}, 54
        s_mul_i32 s{u}, s{t}, 52
        s_lshr_b32 s{u}, s{u}, 8
        s_mul_i32 s{ra}, s{u}, 5
        s_sub_u32 s{t}, s{t}, s{ra}
        s_mul_i32 s{u}, s{u}, 160
        s_lshr_b32 s{ra}, s{t}, 1
        s_mul_i32 s{ra}, s{ra}, 80
        s_and_b32 s{rb}, s{t}, 1
        s_lshl_b32 s{rb}, s{rb}, 5
        s_add_u32 s{ra}, s{ra}, s{rb}
        s_add_u32 s{rb}, s{ra}, 16
        s_cmp_eq_u32 s{t}, 4
        s_cselect_b32 s{ra}, 64, s{ra}
        s_cselect_b32 s{rb}, 0x90, s{rb}
        s_add_u32 s{ra}, s{ra}, s{u}
        s_add_u32 s{rb}, s{rb}, s{u}
    """)
    o += srd(R_A, P_WO, 640 * 1280)
    o += L(f"""
        {lab}_go:
        s_mul_i32 s{so}, s{ra}, 1280
        s_add_u32 s{so+1}, s{so}, {8*1280}
        s_mul_i32 s{so+2}, s{rb}, 1280
        s_add_u32 s{so+3}, s{so+2}, {8*1280}
        s_mul_i32 s{lb}, s{S_W}, 40960
    """)
    o += unit_addr(1, 4, lb, 2)
    dm = []
    for l in range(10):
        for j in range(4):
            dm += L(f"s_add_u32 m0, s{lb}, {l*4096 + j*1024 - 128*l}")
            dm.append(I(f"buffer_load_dwordx4 v1, {R(R_A)}, s{so+j} offen offset:{128*l} lds", tag=(lab, "d", l)))
    o2 = L(f"""
        s_mul_i32 s{t}, s{s_kb}, 5120
        s_add_u32 s{t}, s{t}, {hx(WS_B2)}
        v_lshlrev_b32 v8, 4, v0
        v_add_u32 v8, s{t}, v8
    """)
    for l in range(10):
        b = 16 * l
        o2.append(W((lab, "d", l)))
        for c in range(4):
            for h in range(2):
                o2.append(I(f"ds_read_b64_tr_b16 a[{b+4*c+2*h}:{b+4*c+2*h+1}], v{4+c} offset:{l*4096+h*2048}", tag=(lab, "r", l)))
    for l in range(10):
        b = 16 * l
        o2.append(W((lab, "r", l)))
        for c in range(4):
            ct = 4 * l + c
            o2 += L(f"s_mov_b32 s{u}, {hx((ct//5)*NKB*5120 + (ct % 5)*1024)}")
            o2.append(I(f"buffer_store_dwordx4 a[{b+4*c}:{b+4*c+3}], v8, {R(R_WS)}, s{u} offen sc1", tag=(lab, "s")))
    return o, dm, o2


def unit_addr(vd, vtr, slb, vt):
    o = L(f"""
        v_lshrrev_b32 v{vd}, 3, v0
        v_mul_u32_u24 v{vd}, 1280, v{vd}
        v_bfe_u32 v{vt}, v0, 1, 2
        v_bfe_u32 v{vt+1}, v0, 4, 2
        v_xor_b32 v{vt}, v{vt}, v{vt+1}
        v_lshl_add_u32 v{vd}, v{vt}, 5, v{vd}
        v_and_b32 v{vt}, 1, v0
        v_lshl_add_u32 v{vd}, v{vt}, 4, v{vd}
        v_lshrrev_b32 v{vt}, 2, v0
        v_lshlrev_b32 v{vt}, 7, v{vt}
        v_and_b32 v{vt+1}, 3, v0
        v_lshl_add_u32 v{vt}, v{vt+1}, 3, v{vt}
        v_add_u32 v{vt}, s{slb}, v{vt}
        v_bfe_u32 v{vt+1}, v0, 3, 2
    """)
    for c in range(4):
        o += L(f"v_xor_b32 v{vtr+c}, {c}, v{vt+1}\nv_lshl_add_u32 v{vtr+c}, v{vtr+c}, 5, v{vt}")
    return o


def slowjoin():
    o = L(f"SLOWJOIN:\ns_mov_b32 s{S_FO}, {hx(OOB)}")
    o += spin("SJb", poll_ld(VPB), poll_cmp())
    for i in range(12):
        o += b_loads(i)
    o += stamp(9)
    o += spin("SJe", poll_ld(VPE), poll_cmp())
    o += L("s_branch JOIN")
    return o


def helper():
    KB = S_R + 10
    o = L("HELPER:")
    o += L("s_waitcnt lgkmcnt(0)") + (L("s_mov_b32 s3, s42") if STAMP else [])
    o += srd(R_XF, P_X, 2048 * 1280) + srd(R_WS, P_WS, WS_SIZE)
    o += stats_loads()
    o += L(f"s_lshl_b32 s{KB}, s{S_RB}, 2\ns_add_u32 s{KB}, s{KB}, s{S_W}\ns_add_u32 s{KB}, s{KB}, 50")
    a, dm, b = side_job(KB, "HJ")
    o += a + dm[:16] + stats_compute() + dm[16:] + b
    sh = int(math.log2(FS))
    o += p2_setup(10)
    o += L(f"""
        s_lshl_b32 s{S_T}, s{KB}, {4+sh}
        s_add_u32 s{S_T}, s{S_T}, {hx(WS_FB)}
        v_min_u32 v1, 9, v0
        v_lshlrev_b32 v1, {sh}, v1
        s_waitcnt vmcnt(0)
        buffer_store_dword v{VTAG}, v1, {R(R_WS)}, s{S_T} offen sc1
        v_mov_b32 v{VFL}, 0
    """)
    o += stamp(8)
    o += L(f"""
        s_cmp_lg_u32 s{KB}, 50
        s_cbranch_scc1 HG_done
        v_lshlrev_b32 v1, 4, v0
        v_add_u32 v1, {WS_STATS + 4}, v1
        v_add_u32 v2, 4096, v1
        v_add_u32 v3, 8192, v1
        v_add_u32 v4, 12288, v1
    """)
    lds_ = [I(f"buffer_load_dword v{8+i}, v{1 + i//4}, {R(R_WS)}, 0 offen offset:{1024*(i % 4)} sc1") for i in range(16)]
    cm = []
    for i in range(16):
        cm += L(f"v_xor_b32 v{8+i}, v{8+i}, v{VTAG}")
    for i in range(1, 16):
        cm += L(f"v_or_b32 v8, v8, v{8+i}")
    cm += L("v_cmp_ne_u32 vcc, 0, v8")
    o += spin("HG", lds_, cm)
    o += L(f"""
        v_lshlrev_b32 v1, 24, v0
        buffer_store_dword v{VTAG}, v1, {R(R_WS)}, 0 offen sc1
        HG_done:
        s_waitcnt vmcnt(0) lgkmcnt(0)
        s_branch SLOWJOIN
    """)
    return o


def phase2():
    AD, AS = 100, 4
    VW, VR, VXL, VXC, VG = 236, 239, 240, 241, 242
    VT = 1
    R_OUT = R_A
    sAt = S_R
    sA, sT, sRB = S_R + 4, S_R + 5, S_R + 6
    sE, sL, sO = S_R + 8, S_R + 9, S_R + 10
    XST = 122880
    o = L("JOIN:")
    o += stamp(10)
    o += L(f"""
        s_and_b32 s{sRB}, s2, 7
        s_lshl_b32 s{sRB}, s{sRB}, 2
        s_lshr_b32 s{sT}, s2, 6
        s_add_u32 s{sRB}, s{sRB}, s{sT}
        s_mul_i32 s{sA}, s{sRB}, {NKB*4096}
        s_add_u32 s{sA}, s{sA}, {hx(WS_A2)}
        s_mul_i32 s{sE}, s{S_W}, {7*4096}
        s_min_u32 s{sL}, s{sE}, {20*4096}
        s_add_u32 s{sL}, s{sL}, {28*4096}
        s_mul_i32 s{sO}, s{S_W}, {5*4096}
        s_add_u32 s{sO}, s{sO}, {54*4096}
        s_sub_u32 s{sO}, s{sO}, s{sL}
        s_sub_u32 s{sL}, s{sL}, s{sE}
        s_add_u32 s{sA}, s{sA}, s{sE}
    """)
    for t in range(4):
        o += L(f"""
            s_add_u32 s{sT}, s{S_W}, {t}
            s_and_b32 s{sT}, s{sT}, 3
            s_lshl_b32 s{sT}, s{sT}, 10
            s_add_u32 s{sAt+t}, s{sA}, s{sT}
        """)
    bufs = [("a", 240 + 4 * k) for k in range(4)] + [("v", 84 + 4 * k) for k in range(4)] + [("v", 4 + 4 * k) for k in range(20)]
    obufs = [("v", 180 + 4 * k) for k in range(14)] + bufs[:6]
    RG = lambda b: f"{b[0]}[{b[1]}:{b[1]+3}]"
    TO = (1, 2, 3, 0)
    abuf = {}
    for i in range(7):
        for t in range(4):
            abuf[i, t] = bufs[4 * i + t]
    for k, t in enumerate(TO):
        for i in range(7):
            abuf[7 + i, t] = bufs[7 * k + i]
        for i in range(5):
            abuf[14 + i, t] = obufs[5 * k + i]

    def a_load(i, t):
        k = i if i < 7 else i - 7 if i < 14 else i - 14
        r = L(f"s_add_u32 s{sA}, s{sAt+t}, {k*4096}")
        if i == 13:
            r = [G(f"s_add_u32 s{sA}, s{sAt+t}, {k*4096}\ns_cmp_ge_u32 s{S_W}, 2\ns_cselect_b32 s{sA}, {hx(OOB)}, s{sA}")]
        r.append(I(f"buffer_load_dwordx4 {RG(abuf[i, t])}, v{VB}, {R(R_WS)}, s{sA} offen sc1", tag=("A", i, t)))
        return r

    def adv(s):
        return L("\n".join(f"s_add_u32 s{sAt+t}, s{sAt+t}, s{s}" for t in range(4)))

    def mf(acc, i, t, c, first):
        b = 20 * (i % 12)
        d = acc + (t * 5 + c) * 4
        return I(f"v_mfma_f32_16x16x32_bf16 v[{d}:{d+3}], a[{b+4*c}:{b+4*c+3}], {RG(abuf[i, t])}, "
                 + ("0" if first else f"v[{d}:{d+3}]"))

    for i in range(2):
        for t in range(4):
            o += a_load(i, t)
    su = []
    for t in range(1, 4):
        su += L(f"""
            s_add_u32 s{sT}, s{S_W}, {t}
            s_and_b32 s{sT}, s{sT}, 3
            s_mul_i32 s{sT}, s{sT}, 30720
            s_add_u32 s{sT}, s{sT}, {(t-1)*5120}
            v_add_u32 v{VW+t-1}, s{sT}, v{VB}
        """)
    su += L(f"""
        s_mul_i32 s{sT}, s{S_W}, 30720
        v_add_u32 v{VR}, s{sT}, v{VB}
        s_and_b32 s{sT}, s{sRB}, 15
        s_lshl_b32 s{sT}, s{sT}, 2
        s_add_u32 s{sT}, s{sT}, s{S_W}
        s_mul_i32 s{sT}, s{sT}, {16*2560}
        s_lshr_b32 s{sRB}, s{sRB}, 4
        s_mul_i32 s{sRB}, s{sRB}, 1280
        s_add_u32 s{sT}, s{sT}, s{sRB}
        s_bfe_u32 s{sRB}, s2, 0x30003
        s_mul_i32 s{sRB}, s{sRB}, 160
        s_add_u32 s{sT}, s{sT}, s{sRB}
        s_mul_i32 s{sRB}, s{S_W}, 3072
        s_add_u32 s{sRB}, s{sRB}, {XST}
    """)
    for j in range(3):
        su += L(f"""
            v_add_u32 v{VT}, {64*j}, v0
            v_mul_u32_u24 v{VT+1}, 205, v{VT}
            v_lshrrev_b32 v{VT+1}, 11, v{VT+1}
            v_mul_u32_u24 v{VT+1}, {2560-160}, v{VT+1}
            v_lshl_add_u32 v{VT+1}, v{VT}, 4, v{VT+1}
            v_add_u32 v{VG+j}, s{sT}, v{VT+1}
        """)
    su += L(f"""
        v_and_b32 v{VT}, 32, v0
        v_lshl_add_u32 v{VG+2}, v{VT}, 25, v{VG+2}
        v_and_b32 v{VT}, 15, v0
        v_mul_u32_u24 v{VT}, 160, v{VT}
        v_lshrrev_b32 v{VT+1}, 4, v0
        v_lshl_add_u32 v{VT}, v{VT+1}, 3, v{VT}
        v_add_u32 v{VXL}, s{sRB}, v{VT}
        v_add_u32 v{VXC}, s{sRB}, v{VB}
    """)
    su += srd(R_OUT, P_OUT, 2048 * 1280)
    o += su
    o.append(W("role"))
    o.append(I(f"buffer_store_dword v{VTAG}, v{VFL}, {R(R_WS)}, s{S_FO} offen sc1"))
    o += stamp(11)
    o += L("s_barrier")
    for t in range(4):
        o += a_load(2, t)

    mfl, waits, ld = [], [], []
    for i in range(7):
        g0 = len(mfl)
        waits.append(F(W(*[("A", i, t) for t in range(4)]), g0 - 1, g0 - 1))
        for t in range(4):
            for c in (range(5) if t % 2 == 0 else range(4, -1, -1)):
                mfl.append(mf(AD, i, t, c, i == 0))
        x = []
        if i + 3 < 7:
            for t in range(4):
                x += a_load(i + 3, t)
        if i >= 1:
            x += b_loads(11 + i)
        if i == 5:
            for j in range(3):
                x += L(f"s_add_u32 m0, s{sRB}, {1024*j}")
                x.append(I(f"buffer_load_dwordx4 v{VG+j}, {R(R_XF)}, 0 offen lds", tag="xst"))
        ld += paced(x, g0, g0 + 18)
    st = {}
    body, _ = schedule(mfl, [waits[1:], ld], st)
    o += [waits[0].ins] + body
    o += b_loads(18) + adv(sL)
    o += stamp(12)
    o += spin("PL", poll_ld(VPL), poll_cmp())
    o += stamp(13)

    mfl, waits, ld = [], [], []
    seq = [(7 + i, t) for t in TO for i in range(7)] + [(14 + i, t) for t in TO for i in range(5)]
    NPRE = opt("npre", 10)
    for i, t in seq[:NPRE]:
        o += a_load(i, t)
    rest = []
    for n, (i, t) in enumerate(seq):
        if n == 28:
            rest += adv(sO)
        if n >= NPRE:
            rest += a_load(i, t)
    ld = paced(rest, 0, opt("lend", 150))
    end = {}
    for k, t in enumerate(TO):
        g0 = len(mfl)
        if k == 0:
            for i in range(7, 14):
                waits.append(F(W(("A", i, t)), len(mfl) - 1, len(mfl) - 1))
                for c in range(5):
                    mfl.append(mf(AD, i, t, c, False))
                    end["d", t, c] = len(mfl) - 1
        else:
            waits.append(F(W(*[("A", i, t) for i in range(7, 14)]), g0 - 1, g0 - 1))
            for c in range(5):
                for i in range(7, 14):
                    mfl.append(mf(AD, i, t, c, False))
                end["d", t, c] = len(mfl) - 1
    gS = len(mfl)
    for t in TO:
        g0 = len(mfl)
        waits.append(F(W(*[("A", i, t) for i in range(14, 19)]), g0 - 1, g0 - 1))
        for c in range(5):
            for i in range(14, 19):
                mfl.append(mf(AS, i, t, c, i == 14))
            end["s", t, c] = len(mfl) - 1
    for f in ld:
        if f.ins.kind == "vload" and f.ins.tag[1] >= 14 and abuf[f.ins.tag[1], f.ins.tag[2]] in bufs:
            f.lo = max(f.lo, 35)
    ex = []
    g = 0
    for t in (1, 2, 3):
        for c in range(5):
            d = AD + (t * 5 + c) * 4
            g = max(g + 3, end["d", t, c] + 5)
            ex.append(F(I(f"ds_write_b128 v{VW+t-1}, v[{d}:{d+3}] offset:{c*1024}", tag="xd"), g, g + 2))
    g += 6
    ex.append(F(W("xd"), g, g))
    ex.append(F(I("s_barrier"), g + 1, g + 1))
    VX = 84
    for tt in range(3):
        for c in range(5):
            d = AD + ((tt + 1) * 5 + c) * 4
            g += 1
            ex.append(F(I(f"ds_read_b128 v[{d}:{d+3}], v{VR} offset:{tt*5120 + c*1024}", tag="rd"), g, g + 4))
    gRD = max(g + 6, gS + 2)
    g = gRD
    for t in (1, 2, 3):
        for c in range(5):
            d = AS + (t * 5 + c) * 4
            g = max(g + 3, end["s", t, c] + 5)
            ex.append(F(I(f"ds_write_b128 v{VW+t-1}, v[{d}:{d+3}] offset:{15360 + c*1024}", tag="xs"), g, g + 2))
    g += 6
    ex.append(F(W("xs"), g, g))
    ex.append(F(I("s_barrier"), g + 1, g + 1))
    last = len(mfl) - 1
    for tt in range(3):
        for c in range(5):
            d = AS + ((tt + 1) * 5 + c) * 4
            ex.append(F(I(f"ds_read_b128 v[{d}:{d+3}], v{VR} offset:{15360 + tt*5120 + c*1024}", tag="rs"), g + 1, last))
    va = []
    for e in range(20):
        va += L(f"""
            v_add_f32 v{AD+20+e}, v{AD+20+e}, v{AD+40+e}
            v_add_f32 v{AD+e}, v{AD+e}, v{AD+60+e}
            v_add_f32 v{AD+e}, v{AD+e}, v{AD+20+e}
        """)
    XP = AD + 60
    for c in range(5):
        va.append(I(f"ds_read_b64 v[{XP+2*c}:{XP+2*c+1}], v{VXL} offset:{c*32}", tag="rx"))
    for e in range(20):
        va += L(f"""
            v_mul_f32 v{AD+20+e}, {hx(f2u(-LOG2E))}, v{AD+e}
            v_exp_f32 v{AD+20+e}, v{AD+20+e}
            v_add_f32 v{AD+20+e}, 1.0, v{AD+20+e}
            v_rcp_f32 v{AD+20+e}, v{AD+20+e}
            v_mul_f32 v{AD+e}, v{AD+e}, v{AD+20+e}
        """)
    va.append(W("rx"))
    for e in range(20):
        va += L(f"v_lshlrev_b32 v{AD+40+e}, 16, v{XP+e//2}" if e % 2 == 0 else f"v_and_b32 v{AD+40+e}, 0xffff0000, v{XP+e//2}")
    vs = ooo([F(W("rd"), gRD, gRD)] + [F(i, gRD, last) for i in va], 40)
    st = {}
    body, _ = schedule(mfl, [waits[1:], ex, ld, vs], st)
    print("P2 late sched", st, file=sys.stderr)
    o += [waits[0].ins] + stamp(14) + stamped(body, {gS: 15}) + stamp(16)
    o.append(W("rs"))
    pr = lambda x: f"v[{x}:{x+1}]"
    for e in range(0, 20, 2):
        o += L(f"v_pk_add_f32 {pr(AS+20+e)}, {pr(AS+20+e)}, {pr(AS+40+e)}\nv_pk_add_f32 {pr(AS+e)}, {pr(AS+e)}, {pr(AS+60+e)}")
    for c in range(5):
        for e in (4 * c, 4 * c + 2):
            o += L(f"v_pk_add_f32 {pr(AS+e)}, {pr(AS+e)}, {pr(AS+20+e)}")
        for e in (4 * c, 4 * c + 2):
            o += L(f"v_pk_fma_f32 {pr(AS+e)}, {pr(AS+e)}, {pr(AD+e)}, {pr(AD+40+e)}")
        o += L(f"""
            v_cvt_pk_bf16_f32 v{XP+2*c}, v{AS+4*c}, v{AS+4*c+1}
            v_cvt_pk_bf16_f32 v{XP+2*c+1}, v{AS+4*c+2}, v{AS+4*c+3}
        """)
        o.append(I(f"ds_write_b64 v{VXL}, v[{XP+2*c}:{XP+2*c+1}] offset:{c*32}", tag="ow"))
    o.append(W("ow"))
    for j in range(3):
        o.append(I(f"ds_read_b128 v[{180+4*j}:{183+4*j}], v{VXC} offset:{1024*j}", tag=("or", j)))
    for j in range(3):
        o.append(W(("or", j)))
        o.append(I(f"buffer_store_dwordx4 v[{180+4*j}:{183+4*j}], v{VG+j}, {R(R_OUT)}, 0 offen {OPT.get('ofl', '')}"))
    o += stamp_out()
    o += L("s_endpgm")
    return o


def xa(t, ks):
    b = (ks * 3 + t) * 4
    return f"a[{b}:{b+3}]"


def nib(dst, st, seq=S_SEQ):
    return L(f"s_bfe_u32 s{dst}, s{seq + st//8}, {hx((4 << 16) | (4*(st % 8)))}")


def x_addr(vt):
    o = L(f"""
        s_mul_i32 s{S_XL}, s{S_W}, {3*XSLOT}
        s_add_u32 s{S_XL}, s{S_XL}, {XRING}
        s_mul_i32 s{S_T}, s{S_PL0}, 2560
        s_mul_i32 s{S_T+1}, s{S_PAR}, 1280
        s_add_u32 s{S_T}, s{S_T}, s{S_T+1}
        s_mul_i32 s{R_X+2}, s{S_PEND}, 2560
        v_lshrrev_b32 v{vt}, 3, v0
        v_add_u32 v{vt+1}, 1, v{vt}
        v_lshrrev_b32 v{vt+1}, 1, v{vt+1}
        v_xor_b32 v{vt+1}, v{vt+1}, v0
        v_and_b32 v{vt+1}, 7, v{vt+1}
        v_mul_u32_u24 v{vt}, 2560, v{vt}
        v_lshl_add_u32 v{vt}, v{vt+1}, 4, v{vt}
        v_add_u32 v{VXA}, s{S_T}, v{vt}
        v_xor_b32 v{vt}, 64, v{vt}
        v_add_u32 v{vt}, s{S_T}, v{vt}
        v_add_u32 v{VXA+1}, {20480 - 1024}, v{vt}
        v_add_u32 v{VXA+2}, {40960 - 2048}, v{VXA}
        v_add_u32 v{VXA+3}, {61440 - 3072}, v{vt}
        v_add_u32 v{VXA+4}, {81920}, v{VXA}
        v_add_u32 v{VXA+5}, {102400 - 1024}, v{vt}
        v_min_u32 v{VXA}, {hx(OOB)}, v{VXA}
    """)
    return o


def x_setup2(vt):
    o = L(f"""
        v_and_b32 v{vt}, 15, v0
        v_bfe_u32 v{vt+1}, v0, 1, 3
        v_lshrrev_b32 v{vt+2}, 4, v0
        v_xor_b32 v{vt+1}, v{vt+1}, v{vt+2}
        v_lshlrev_b32 v{vt}, 7, v{vt}
        v_lshl_add_u32 v{vt}, v{vt+1}, 4, v{vt}
        v_add_u32 v{VXR}, s{S_XL}, v{vt}
        v_xor_b32 v{vt}, 64, v{vt}
        v_add_u32 v{VXR+1}, s{S_XL}, v{vt}
        v_and_b32 v{vt}, 31, v0
        v_lshlrev_b32 v{vt}, 2, v{vt}
        v_add_u32 v{vt}, s{S_XL}, v{vt}
        v_mov_b32 v{vt+1}, 0x3f803f80
    """)
    for s in range(3):
        o.append(I(f"ds_write_b32 v{vt}, v{vt+1} offset:{s*XSLOT}", tag="ones"))
    return o


def x_dma(st):
    o = nib(S_XO, st) + L(f"s_lshl_b32 s{S_XO}, s{S_XO}, 7")
    base = (st % 3) * XSLOT + 128
    for j in range(6):
        if j % 4 == 0:
            o.insert(len(o) - (1 if j == 0 else 0), I(f"s_add_u32 m0, s{S_XL}, {base + 1024*j}"))
        o.append(I(f"buffer_load_dwordx4 v{VXA+j}, {R(R_X)}, s{S_XO} offen offset:{1024*(j % 4)} lds", tag=("x", st)))
    return o


def x_read(st):
    return [I(f"ds_read_b128 {xa(t, 2*st+s)}, v{VXR+s} offset:{(st % 3)*XSLOT + t*2048}", tag=("xr", st))
            for s in range(2) for t in range(3)]


def gemm_streams(nst, ng, wdma, trread, mfma, extra):
    per = ng * 6
    mf, waits, tr, dma = [], [], [], []
    total = nst * ng
    pre = [W(("x", 0), "ones")] + x_read(0) + [W(("w", 0)), I("s_barrier")]
    pre += trread(0, 0, 0) + trread(0, 1, 1) + [W(("t", 0, 0), ("xr", 0))]
    bar = {0: -1}

    def window(s, lo, hi):
        x = []
        if s + 2 < 10:
            x += x_dma(s + 2)
        if s + 2 < nst:
            x += wdma(s + 2)
        if s + 2 >= 10:
            hi = lo + (hi - lo) // 2
        return paced(x, lo, hi) + extra.get(s, [])

    dma += window(0, 0, (ng - 2) * 6 - 3)
    for k in range(total):
        st, g = divmod(k, ng)
        g0 = len(mf)
        mf += mfma(st, g, k % 3)
        if k + 1 < total:
            s1, g1 = divmod(k + 1, ng)
            need = [("t", s1, g1)]
            if g1 == 0 and s1 < 10:
                need.append(("xr", s1))
            waits.append(F(W(*need), g0 + 5, g0 + 5))
        if k + 2 < total:
            s2, g2 = divmod(k + 2, ng)
            rd = trread(s2, g2, (k + 2) % 3)
            if g2 == 0:
                need = [("w", s2)] + ([("x", s2)] if s2 < 10 else [])
                tr.append(F(W(*need), g0 - 2, g0 - 2))
                tr.append(F(I("s_barrier"), g0, g0))
                bar[s2] = g0
                if s2 < 10:
                    xr = x_read(s2)
                    rd = [rd[0], xr[0], rd[1], xr[1], rd[2], xr[2], rd[3], xr[3], xr[4], xr[5]]
                    tr += [F(r, g0 + i // 2, g0 + 5) for i, r in enumerate(rd)]
                else:
                    tr += [F(r, g0 + i, g0 + 4) for i, r in enumerate(rd)]
                dma += window(s2, g0 + (5 if s2 < 10 else 1), g0 + per - 3)
            else:
                tr += [F(r, g0 + i, g0 + (3 if g2 == ng - 1 else 4)) for i, r in enumerate(rd)]
    return pre, mf, waits, tr, dma, bar


def a2_addr(vd, t, vt, lo_s=None):
    return L(f"""
        v_and_b32 v{vt}, 15, v0
        v_add_u32 v{vt+1}, {16*t - 1}, v{vt}
        v_add_u32 v{vt+1}, s{S_PL0}, v{vt+1}
        v_lshrrev_b32 v{vt+2}, 6, v{vt+1}
        v_mul_u32_u24 v{vt+2}, {NKB*4096}, v{vt+2}
        v_bfe_u32 v{vt+3}, v{vt+1}, 4, 2
        v_lshl_add_u32 v{vt+2}, v{vt+3}, 10, v{vt+2}
        v_and_b32 v{vt+3}, 15, v{vt+1}
        v_lshl_add_u32 v{vt+2}, v{vt+3}, 4, v{vt+2}
        v_lshrrev_b32 v{vt+3}, 4, v0
        v_lshl_add_u32 v{vt+2}, v{vt+3}, 8, v{vt+2}
        v_mov_b32 v{vt+3}, {hx(OOB)}
        v_cmp_gt_i32 vcc, s{S_PEND}, v{vt+1}
        v_cndmask_b32 v{vd}, v{vt+3}, v{vt+2}, vcc
        v_cmp_le_i32 vcc, s{lo_s}, v{vt+1}
        v_cndmask_b32 v{vd}, v{vt+3}, v{vd}, vcc
    """)


F_VWA = 208
F_UO, F_US, F_UF, F_WB2 = S_R + 4, S_R + 5, S_R + 6, S_R + 7


def ffn_wdma(st):
    r = nib(S_WO, st % 10) + L(f"""
        s_mul_i32 s{S_WO}, s{S_WO}, {64*3456}
        s_add_u32 m0, s{S_WL}, {(st % 4)*16384}
        s_add_u32 s{S_WO}, s{S_WO}, s{S_WB if st < 10 else F_WB2}
    """)
    for j in range(4):
        rr = R_A if j < 2 else R_B
        r.append(I(f"buffer_load_dwordx4 v{F_VWA + (j & 1)}, {R(rr)}, s{S_WO} offen offset:{1024*j} lds", tag=("w", st)))
    return r


def ffn_pro():
    VT, VWA = 224, F_VWA
    o = L(f"""
        s_lshl_b32 s{S_WL}, s{S_W}, 12
        s_mul_i32 s{S_WB}, s{S_W}, {16*3456}
        s_lshl_b32 s{S_T}, s{S_CG}, 8
        s_add_u32 s{S_WB}, s{S_WB}, s{S_T}
        v_lshrrev_b32 v{VT}, 3, v0
        v_mul_u32_u24 v{VT}, 3456, v{VT}
        v_and_b32 v{VT+1}, 1, v0
        v_lshl_add_u32 v{VT}, v{VT+1}, 4, v{VT}
        v_bfe_u32 v{VT+1}, v0, 1, 2
        v_bfe_u32 v{VT+2}, v0, 4, 1
        v_xor_b32 v{VT+1}, v{VT+1}, v{VT+2}
        v_lshl_add_u32 v{VWA}, v{VT+1}, 5, v{VT}
        v_xor_b32 v{VWA+1}, 64, v{VWA}
        v_add_u32 v{VWA+1}, {8*3456 - 1024}, v{VWA+1}
    """)
    o += srd(R_A, P_WG, 640 * 3456) + srd(R_B, P_WU, 640 * 3456, 2048)
    o += ffn_wdma(0) + stats_loads() + x_dma(1) + ffn_wdma(1)
    return o


def ffn():
    ACC = [4, 100]
    VWF, VTR, VHS, VC, VT = 196, 204, 1, 212, 224
    S_KB = S_R
    sh = int(math.log2(FS))
    acc = lambda p, gu, c, t: ACC[p] + (gu * 4 + c) * 12 + t * 4
    wbuf = lambda b: ("a", 240 + 8 * b) if b < 2 else ("v", VWF)
    o = L("FFN:")
    o += x_setup2(VT)
    o += L(f"""
        v_lshrrev_b32 v{VT}, 5, v0
        v_lshlrev_b32 v{VT}, 12, v{VT}
        v_bfe_u32 v{VT+1}, v0, 4, 1
        v_lshl_add_u32 v{VT}, v{VT+1}, 10, v{VT}
        v_bfe_u32 v{VT+1}, v0, 2, 2
        v_lshl_add_u32 v{VT}, v{VT+1}, 7, v{VT}
        v_and_b32 v{VT+1}, 3, v0
        v_lshl_add_u32 v{VT}, v{VT+1}, 3, v{VT}
        v_bfe_u32 v{VT+1}, v0, 3, 2
    """)
    for c in range(4):
        o += L(f"v_xor_b32 v{VTR+c}, {c}, v{VT+1}\nv_lshl_add_u32 v{VTR+c}, v{VTR+c}, 5, v{VT}")

    def trread(st, g, b):
        c, gu = g >> 1, g & 1
        k, r0 = wbuf(b)
        return [I(f"ds_read_b64_tr_b16 {k}[{r0+4*s+2*h}:{r0+4*s+2*h+1}], v{VTR+c} "
                  f"offset:{(st % 4)*16384 + s*8192 + gu*2048 + h*512}", tag=("t", st, g))
                for s in range(2) for h in range(2)]

    def mfma(st, g, b):
        c, gu = g >> 1, g & 1
        p, sl = divmod(st, 10)
        k, r0 = wbuf(b)
        r = []
        for t in range(3):
            d = acc(p, gu, c, t)
            for s in range(2):
                cin = "0" if (sl == 0 and s == 0) else f"v[{d}:{d+3}]"
                r.append(I(f"v_mfma_f32_16x16x32_bf16 v[{d}:{d+3}], {k}[{r0+4*s}:{r0+4*s+3}], {xa(t, 2*sl+s)}, {cin}"))
        return r

    UD, UA, UT = 100, 116, 117
    R_U = S_R + 14
    ULB, UCT, UTm = S_R + 8, S_R + 9, S_R + 10
    T = S_T
    us = L(f"""
        s_mul_i32 s{T}, s{F_UF}, 205
        s_lshr_b32 s{T}, s{T}, 11
        s_mul_i32 s{T+1}, s{T}, 10
        s_sub_u32 s{T+1}, s{F_UF}, s{T+1}
    """)
    us += [G(f"s_cmp_ge_u32 s{T}, 28\ns_cselect_b32 s{T+2}, 28, 0\ns_cselect_b32 s{T+3}, 64, 0")]
    us += L(f"""
        s_sub_u32 s{T+2}, s{T}, s{T+2}
        s_lshr_b32 s{F_UO}, s{T+2}, 1
        s_lshl_b32 s{F_UO}, s{F_UO}, 7
        s_and_b32 s{T+2}, s{T+2}, 1
        s_lshl_b32 s{T+2}, s{T+2}, 5
        s_add_u32 s{F_UO}, s{F_UO}, s{T+2}
        s_add_u32 s{F_UO}, s{F_UO}, s{T+3}
        s_mul_i32 s{F_UO}, s{F_UO}, 1280
        s_lshl_b32 s{T+2}, s{T+1}, 7
        s_add_u32 s{F_UO}, s{F_UO}, s{T+2}
        s_lshl_b32 s{UCT}, s{T+1}, 2
        s_mul_i32 s{F_US}, s{T}, 5120
        s_lshl_b32 s{T+2}, s{T+1}, 12
        s_add_u32 s{F_US}, s{F_US}, s{T+2}
        s_add_u32 s{F_US}, s{F_US}, {hx(WS_B2)}
        s_lshl_b32 s{T}, s{T}, 4
        s_add_u32 s{T}, s{T}, s{T+1}
        s_lshl_b32 s{T}, s{T}, {sh}
        s_add_u32 s{T}, s{T}, {hx(WS_FB)}
    """)
    us += [G(f"s_cmp_ge_u32 s{F_UF}, {NUNIT}\ns_cselect_b32 s{F_UO}, {hx(OOB)}, s{F_UO}\n"
             f"s_cselect_b32 s{F_US}, {hx(OOB)}, s{F_US}\ns_cselect_b32 s{F_UF}, {hx(OOB)}, s{T}")]
    us += L(f"s_add_u32 s{ULB}, s{S_WL}, 65536")
    us += srd(R_U, P_WD, 1728 * 1280)
    us += unit_addr(UA, UT, ULB, VT)
    us += [G(f"s_add_u32 s{F_WB2}, s{S_WB}, 128\ns_cmp_eq_u32 s{S_CG}, 13\ns_cselect_b32 s{F_WB2}, {hx(OOB)}, s{F_WB2}")]
    ud = []
    for j in range(4):
        ud += L(f"s_add_u32 m0, s{ULB}, {1024*j}\ns_add_u32 s{UTm}, s{F_UO}, {10240*j}")
        ud.append(I(f"buffer_load_dwordx4 v{UA}, {R(R_U)}, s{UTm} offen lds", tag="ud"))
    ur = [W("ud")]
    for c in range(4):
        for h in range(2):
            ur.append(I(f"ds_read_b64_tr_b16 v[{UD+4*c+2*h}:{UD+4*c+2*h+1}], v{UT+c} offset:{h*2048}", tag="ur"))
    ust = [W("ur")]
    for c in range(4):
        ust += L(f"""
            s_add_u32 s{T}, s{UCT}, {c}
            s_mul_i32 s{T}, s{T}, 52
            s_lshr_b32 s{T}, s{T}, 8
            s_mul_i32 s{T}, s{T}, {(NKB-1)*5120}
            s_add_u32 s{T}, s{T}, s{F_US}
        """)
        ust.append(I(f"buffer_store_dwordx4 v[{UD+4*c}:{UD+4*c+3}], v{VB}, {R(R_WS)}, s{T} offen offset:{1024*c} sc1", tag="us"))
    ufl = L(f"v_lshlrev_b32 v{VPD}, 24, v0") + [W("us"), I(f"buffer_store_dword v{VTAG}, v{VPD}, {R(R_WS)}, s{F_UF} offen sc1")]

    UW = opt("uw", 5)
    gU = (UW + 1) * 48 - 12 - 3
    extra = {UW: [F(i, gU - 8, gU) for i in ud]}
    pre, mf, waits, tr, dma, bar = gemm_streams(20, 8, ffn_wdma, trread, mfma, extra)

    cs = []
    for t in range(3):
        cs += a2_addr(VHS + t, t, VT, S_PL0)
        cs += L(f"""
            v_max_i32 v{VT+1}, 0, v{VT+1}
            v_min_u32 v{VT+1}, 0x3ff, v{VT+1}
            v_lshlrev_b32 v{VT+5+t}, 4, v{VT+1}
        """)
    cs += L(f"""
        s_mul_i32 s{S_KB}, s{S_PAR}, {16*NKB*4096}
        s_lshl_b32 s{T}, s{S_CG}, 13
        s_add_u32 s{S_KB}, s{S_KB}, s{T}
        s_add_u32 s{S_KB}, s{S_KB}, {hx(WS_A2)}
        s_add_u32 s{S_KB+1}, s{S_KB}, 4096
        s_add_u32 s{S_KB+2}, s{S_KB}, {28*4096}
        s_add_u32 s{S_KB+3}, s{S_KB}, {29*4096}
        s_lshl_b32 s{T}, s{S_CG}, 6
        s_lshl_b32 s{T+1}, s{S_RB}, 2
        s_add_u32 s{T}, s{T}, s{T+1}
        s_add_u32 s{T}, s{T}, s{S_W}
        s_lshl_b32 s{T}, s{T}, {sh}
        s_add_u32 s{T}, s{T}, {hx(WS_FH)}
        s_mov_b32 s{S_FO}, {16*64*FS}
    """) + flag_addr(T)
    SSO = S_R + 11
    cs += L(f"s_lshl_b32 s{SSO}, s{S_PAR}, 14\ns_add_u32 s{SSO}, s{SSO}, {WS_STATS}")
    sl = [I(f"buffer_load_dwordx4 v[{VC+4*t}:{VC+4*t+3}], v{VT+5+t}, {R(R_WS)}, s{SSO} offen sc1", tag="stat") for t in range(3)]
    cm = []
    for t in range(3):
        cm += L(f"v_xor_b32 v{VC+4*t+1}, v{VC+4*t+1}, v{VTAG}\nv_xor_b32 v{VC+4*t+3}, v{VC+4*t+3}, v{VTAG}")
    cm += L(f"""
        v_or3_b32 v{VT}, v{VC+1}, v{VC+3}, v{VC+5}
        v_or3_b32 v{VT}, v{VT}, v{VC+7}, v{VC+9}
        v_or_b32 v{VT}, v{VT}, v{VC+11}
        v_cmp_ne_u32 vcc, 0, v{VT}
    """)
    c2 = check("Fs", sl, cm, "stat")
    for t in range(3):
        b = VC + 4 * t
        c2 += L(f"""
            v_rcp_f32 v{b+1}, v{b+2}
            v_mul_f32 v{b+3}, v{b+2}, v{b+2}
            v_mul_f32 v{b+2}, v{b+1}, v{b+1}
            v_mul_f32 v{b+2}, v{b+2}, v{b+1}
            v_mul_f32 v{b+1}, {hx(f2u(GK1))}, v{b+1}
            v_mul_f32 v{b+2}, {hx(f2u(GK2))}, v{b+2}
        """)

    def epi(p, packed):
        r = []
        q = 0
        dp = "row_newbcast:0 row_mask:0xf bank_mask:0xf"
        pr = lambda x: f"v[{x}:{x+1}]"
        for hb in range(2):
            for t in (1, 2, 0):
                b = VC + 4 * t
                dst = acc(p, 1, 2 * hb, t)
                for ci in range(2):
                    c = 2 * hb + ci
                    Gt, U = acc(p, 0, c, t), acc(p, 1, c, t)
                    G0, U0 = acc(p, 0, c, 0), acc(p, 1, c, 0)
                    tm = VT + 4 * (q % 4)
                    q += 1
                    E4, E2 = range(4), (0, 2)
                    r += [I(f"v_fmac_f32_dpp v{Gt+e}, v{G0+e}, v{b} {dp}") for e in E4]
                    r += [I(f"v_fmac_f32_dpp v{U+e}, v{U0+e}, v{b} {dp}") for e in E4]
                    if not packed:
                        r += [I(f"v_mul_f32 v{tm+e}, v{Gt+e}, v{Gt+e}") for e in E4]
                        r += [I(f"v_fma_f32 v{tm+e}, v{tm+e}, v{b+2}, v{b+1}") for e in E4]
                        r += [I(f"v_mul_f32 v{tm+e}, v{tm+e}, v{Gt+e}") for e in E4]
                        r += [I(f"v_exp_f32 v{tm+e}, v{tm+e}") for e in E4]
                        r += [I(f"v_mul_f32 v{Gt+e}, v{Gt+e}, v{U+e}") for e in E4]
                        r += [I(f"v_fma_f32 v{tm+e}, v{tm+e}, v{b+3}, v{b+3}") for e in E4]
                        r += [I(f"v_rcp_f32 v{tm+e}, v{tm+e}") for e in E4]
                        r += [I(f"v_mul_f32 v{Gt+e}, v{Gt+e}, v{tm+e}") for e in E4]
                    else:
                        r += [I(f"v_pk_mul_f32 {pr(tm+e)}, {pr(Gt+e)}, {pr(Gt+e)}") for e in E2]
                        r += [I(f"v_pk_fma_f32 {pr(tm+e)}, {pr(tm+e)}, {pr(b+2)}, {pr(b)} op_sel:[0,0,1] op_sel_hi:[1,0,1]") for e in E2]
                        r += [I(f"v_pk_mul_f32 {pr(tm+e)}, {pr(tm+e)}, {pr(Gt+e)}") for e in E2]
                        r += [I(f"v_exp_f32 v{tm+e}, v{tm+e}") for e in E4]
                        r += [I(f"v_pk_mul_f32 {pr(Gt+e)}, {pr(Gt+e)}, {pr(U+e)}") for e in E2]
                        r += [I(f"v_pk_fma_f32 {pr(tm+e)}, {pr(tm+e)}, {pr(b+2)}, {pr(b+2)} op_sel:[0,1,1] op_sel_hi:[1,1,1]") for e in E2]
                        r += [I(f"v_rcp_f32 v{tm+e}, v{tm+e}") for e in (0, 2, 1, 3)]
                        r += [I(f"v_pk_mul_f32 {pr(Gt+e)}, {pr(Gt+e)}, {pr(tm+e)}") for e in E2]
                    r += L(f"v_cvt_pk_bf16_f32 v{dst+2*ci}, v{Gt}, v{Gt+1}\nv_cvt_pk_bf16_f32 v{dst+2*ci+1}, v{Gt+2}, v{Gt+3}")
                r.append(I(f"buffer_store_dwordx4 v[{dst}:{dst+3}], v{VHS+t}, {R(R_WS)}, s{S_KB+2*p+hb} offen sc1", tag=("h", p)))
        return r

    eflag = I(f"buffer_store_dword v{VTAG}, v{VFL}, {R(R_WS)}, 0 offen sc1")
    misc = paced(stats_compute(), 34, 190, False) + paced(us, 190, gU - 12) + paced(cs, gU - 30, gU + 50, False)
    misc += [F(i, gU + 50) for i in sl] + paced(p2_setup(VT), gU + 50, gU + 100, False)
    misc += paced(ur, gU + 100, gU + 112, False) + paced(ust, gU + 120, gU + 150, False)
    misc += paced(c2, 440, 474)
    misc.append(F(G(f"s_cmp_eq_u32 s{S_CG}, 13\ns_cbranch_scc1 SINGLE"), 478, 478))
    misc += [F(i, 500, 520) for i in ufl]
    gB = opt("fgb", 580)
    misc += [F(i, gB, gB + 4) for i in poll_ld(VPB, "pb")]
    misc += [F(i, gB + 50, gB + 54) for i in check("Fb", poll_ld(VPB), poll_cmp(), "pb")]
    NB = opt("fnb", 9)
    bl = []
    for i in range(NB):
        bl += b_loads(i)
    bs = paced(bl, gB + 56, 958)
    for f in bs:
        if f.ins.kind == "vload":
            f.lo = max(f.lo, 480 + 48 * (f.ins.wr[-1][1] // 24 + 1))
    misc += bs
    ep = ooo(paced(epi(0, False), 482, opt("fe1", 900)), 28)
    st = {}
    body, left = schedule(mf, [waits, tr, dma, misc, ep], st)
    print("FFN sched", st, file=sys.stderr)
    ib = next(k for k, i in enumerate(body) if "SINGLE" in i.text)
    nxt = next(k for k in range(ib, len(body)) if body[k].kind == "mfma")
    single = L("SINGLE:") + [I(body[nxt].text)] + L("s_waitcnt vmcnt(0) lgkmcnt(0)")
    single += [ufl[0], ufl[2]] + epi(0, True) + L("s_waitcnt vmcnt(0)") + [eflag] + stamp(8) + L("s_branch SLOWJOIN")
    SLOW.append(single)
    body = stamped(body, {96: 4, 240: 5, 480: 6, 720: 7})
    o += stamp(2) + pre + stamp(3) + body + stamp(8)
    tl = epi(1, True)
    n = len(tl)
    ins = {opt("fef", 20) * n // 100: [W(("h", 0)), eflag]}
    rb = []
    for i in range(NB, 12):
        rb += b_loads(i)
    cur = []
    k = 0
    nld = sum(1 for i in rb if i.kind == "vload")
    for i in rb:
        cur.append(i)
        if i.kind == "vload":
            ins.setdefault(4 + k * (n * 6 // 10) // max(nld, 1), []).extend(cur)
            cur = []
            k += 1
    ins.setdefault(n * 75 // 100, []).extend(poll_ld(VPE, "pe"))
    for k, i in enumerate(tl):
        o += ins.get(k, [])
        o.append(i)
    o += stamp(9)
    o += check("Fe", poll_ld(VPE), poll_cmp(), "pe", True)
    return o


class Pool:
    def __init__(self, regs):
        self.free = set(regs)

    def get(self, n, align=None):
        align = align or (2 if n > 1 else 1)
        for b in sorted(self.free):
            if b % align == 0 and all(b + i in self.free for i in range(n)):
                for i in range(n):
                    self.free.remove(b + i)
                return b
        raise ValueError("out of registers for %d (free %s)" % (n, sorted(self.free)))

    def put(self, b, n):
        for i in range(n):
            assert b + i not in self.free
            self.free.add(b + i)


def lanemask(f):
    m = 0
    for l in range(64):
        if f(l >> 4, l & 15):
            m |= 1 << l
    return m


A_VWA = 194
A_WB2, A_SEQB = S_R + 3, S_R + 4


def att_wdma(st):
    r = (nib(S_WO, st) if st < 10 else nib(S_WO, 2 * (st - 10), A_SEQB)) + L(f"""
        s_mul_i32 s{S_WO}, s{S_WO}, {64*3840}
        s_add_u32 m0, s{S_WL}, {(st % 4)*20480}
        s_add_u32 s{S_WO}, s{S_WO}, s{S_WB if st < 10 else A_WB2}
    """)
    for j in range(5):
        if j == 4:
            r += L(f"s_add_u32 m0, s{S_WL}, {(st % 4)*20480 + 4096}")
        r.append(I(f"buffer_load_dwordx4 v{A_VWA+j}, {R(R_A)}, s{S_WO} offen offset:{1024*(j % 4)} lds", tag=("w", st)))
    return r


def att_pro():
    VT = 216
    o = L(f"""
        s_mul_i32 s{S_WL}, s{S_W}, 5120
        s_and_b32 s{S_T}, s{S_W}, 1
        s_mul_i32 s{A_WB2}, s{S_T}, {32*3840}
        s_mul_i32 s{S_T}, s{S_CG}, 160
        s_add_u32 s{A_WB2}, s{A_WB2}, s{S_T}
        s_cmp_lt_u32 s{S_W}, 2
        s_cselect_b32 s{S_T}, 1280, 0
        s_add_u32 s{S_WB}, s{A_WB2}, s{S_T}
        s_movk_i32 s{S_T}, 3680
        s_movk_i32 s{S_T+1}, 15360
        v_mul_u32_u24 v{VT+3}, 205, v0
        v_lshlrev_b32 v{VT+4}, 4, v0
    """)
    o += srd(R_A, P_QKV, 640 * 3840)
    for j in range(5):
        o += L(f"""
            v_add_u32 v{VT}, {64*j*205}, v{VT+3}
            v_bfe_u32 v{VT+1}, v{VT}, 13, 1
            v_bfe_u32 v{VT+2}, v{VT}, 14, 1
            v_lshrrev_b32 v{VT}, 11, v{VT}
            v_sub_u32 v{VT+1}, v{VT+1}, v{VT+2}
            v_mad_u32_u24 v{VT}, v{VT}, s{S_T}, v{VT+4}
            v_mad_i32_i24 v{A_VWA+j}, v{VT+1}, s{S_T+1}, v{VT}
        """)
    o += L(f"v_add_u32 v{A_VWA+4}, 4096, v{A_VWA+4}")
    o += att_wdma(0) + stats_loads() + x_dma(1) + att_wdma(1)
    return o


def att():
    AK, AQ, AV = 4, 64, 124
    VWF, VTR, VOS, VNM, VPM, VL = 184, 192, 1, 200, 206, 210
    VT = 168
    S_HG = S_CG
    S_OB = S_R
    S_GM = S_R + 6
    S_SEL = S_R + 12
    S_M = S_R + 28
    sh = int(math.log2(FS))
    STL = 157184
    wbuf = lambda b: ("a", 240 + 8 * b) if b < 2 else ("v", VWF)
    o = L("ATT:")
    o += x_setup2(VT)
    o += L(f"""
        v_lshrrev_b32 v{VT}, 5, v0
        v_lshlrev_b32 v{VT}, 4, v{VT}
        v_bfe_u32 v{VT+1}, v0, 2, 3
        v_add_u32 v{VT}, v{VT}, v{VT+1}
        v_mul_u32_u24 v{VT}, 160, v{VT}
        v_and_b32 v{VT+1}, 3, v0
        v_lshl_add_u32 v{VTR}, v{VT+1}, 3, v{VT}
        v_add_u32 v{VTR+1}, 40960, v{VTR}
    """)

    def gsc(st, g):
        return (g // 5, g % 5) if st < 10 else (g & 1, g >> 1)

    def trread(st, g, b):
        sec, c = gsc(st, g)
        k, r0 = wbuf(b)
        sl = st % 4
        return [I(f"ds_read_b64_tr_b16 {k}[{r0+4*s+2*h}:{r0+4*s+2*h+1}], v{VTR + (sl >> 1)} "
                  f"offset:{(sl & 1)*20480 + sec*10240 + (32*s + 8*h)*160 + c*32}", tag=("t", st, g))
                for s in range(2) for h in range(2)]

    def mfma(st, g, b):
        sec, c = gsc(st, g)
        k, r0 = wbuf(b)
        r = []
        for t in range(3):
            for s in range(2):
                wf = f"{k}[{r0+4*s}:{r0+4*s+3}]"
                if st < 10:
                    d = (AK, AQ)[sec] + t * 20 + c * 4
                    ks = 2 * st + s
                    ab = f"{wf}, {xa(t, ks)}"
                else:
                    d = AV + c * 12 + t * 4
                    ks = 4 * (st - 10) + 2 * sec + s
                    ab = f"{xa(t, ks)}, {wf}"
                cin = "0" if ks == 0 else f"v[{d}:{d+3}]"
                r.append(I(f"v_mfma_f32_16x16x32_bf16 v[{d}:{d+3}], {ab}, {cin}"))
        return r

    pre, mf, waits, tr, dma, bar = gemm_streams(15, 10, att_wdma, trread, mfma, {})
    T = S_T
    pool = Pool([199] + list(range(213, 248)))
    cs = L(f"""
        s_add_u32 s{A_WB2}, s{A_WB2}, 2560
        s_and_b32 s{T}, s{S_W}, 2
        s_lshl_b32 s{T}, s{T}, 1
        s_lshr_b64 s[{A_SEQB}:{A_SEQB+1}], s[{S_SEQ}:{S_SEQ+1}], s{T}
        s_mul_i32 s{T+1}, s{S_RB}, 171
        s_max_i32 s{T+1}, s{T+1}, s{S_PL0}
    """)
    for t in range(3):
        cs += a2_addr(VOS + t, t, VT, T + 1)
    cs += L(f"""
        s_lshr_b32 s{S_OB}, s{S_HG}, 1
        s_mul_i32 s{S_OB}, s{S_OB}, {5*4096}
        s_mul_i32 s{T}, s{S_PAR}, {16*NKB*4096}
        s_add_u32 s{S_OB}, s{S_OB}, s{T}
        s_add_u32 s{S_OB}, s{S_OB}, {hx(WS_A2 + 54*4096)}
        s_and_b32 s{T+1}, s{S_HG}, 1
        s_lshl_b32 s{T+2}, s{T+1}, 3
        s_add_u32 s{S_OB+2}, s{S_OB}, {4*4096}
        s_add_u32 s{S_OB+2}, s{S_OB+2}, s{T+2}
        s_lshl_b32 s{T+1}, s{T+1}, 13
        s_add_u32 s{S_OB}, s{S_OB}, s{T+1}
        s_add_u32 s{S_OB+1}, s{S_OB}, 4096
        s_lshl_b32 s{T}, s{S_HG}, 6
        s_mul_i32 s{T+1}, s{S_PAR}, 24
        s_add_u32 s{T}, s{T}, s{T+1}
        s_lshl_b32 s{T+1}, s{S_RB}, 2
        s_add_u32 s{T}, s{T}, s{T+1}
        s_add_u32 s{T}, s{T}, s{S_W}
        s_lshl_b32 s{T}, s{T}, {sh}
        s_add_u32 s{T}, s{T}, {hx(WS_FO)}
        s_mov_b32 s{S_FO}, 0
    """) + flag_addr(T)
    prevf = lambda geom, r: (lambda g, q: 4 * g + r >= q + (8 if geom == 0 else 9))
    curf = lambda geom, r: (lambda g, q: 0 <= q - (4 * g + r) <= 7 and (geom == 1 or 4 * g + r >= 1))
    smov = lambda s, m: L(f"s_mov_b32 s{s}, {hx(m)}\ns_mov_b32 s{s+1}, {hx(m >> 32)}")
    for geom in range(2):
        for r in range(4):
            cs += smov(S_SEL + 2 * (4 * geom + r), lanemask(prevf(geom, r)))
    for k in range(3):
        cs += smov(S_GM + 2 * k, lanemask(lambda g, q: g <= k))
    sel = lambda geom, r: f"s[{S_SEL+2*(4*geom+r)}:{S_SEL+2*(4*geom+r)+1}]"
    gm = lambda k: f"s[{S_GM+2*k}:{S_GM+2*k+1}]"
    cs += L(f"v_mov_b32 v{VT}, 0xffff\nv_mov_b32 v{VT+1}, 0xffff0000")
    for geom in range(2):
        for pr_ in range(2):
            d = VPM + 2 * geom + pr_
            cs += L(f"""
                v_cndmask_b32 v{d}, 0, v{VT}, {sel(geom, 2*pr_)}
                v_cndmask_b32 v{VT+2}, 0, v{VT+1}, {sel(geom, 2*pr_+1)}
                v_or_b32 v{d}, v{d}, v{VT+2}
            """)
    cs += p2_setup(VT)
    SSO = T + 4
    cs += L(f"""
        v_add_u32 v{VT}, s{S_PL0}, v0
        v_subrev_u32 v{VT}, 16, v{VT}
        v_subrev_u32 v{VT+1}, 1, v{VT}
        v_cmp_gt_u32 vcc, 16, v0
        v_cndmask_b32 v{VT}, v{VT+1}, v{VT}, vcc
        v_cmp_ne_u32 vcc, 16, v0
        v_cndmask_b32 v{VT+1}, -1, v{VT}, vcc
        v_cmp_gt_u32 s[{S_M+2}:{S_M+3}], s{S_PEND}, v{VT+1}
        v_max_i32 v{VT}, 0, v{VT}
        v_min_u32 v{VT}, 0x3ff, v{VT}
        v_lshlrev_b32 v{VT}, 4, v{VT}
        s_lshl_b32 s{T+1}, s{S_W}, 9
        s_add_u32 s{T+1}, s{T+1}, {STL}
        v_lshlrev_b32 v{VT+1}, 2, v0
        v_add_u32 v{VT+1}, s{T+1}, v{VT+1}
        v_and_b32 v{VT+2}, 15, v0
        v_lshlrev_b32 v{VT+2}, 2, v{VT+2}
        v_add_u32 v{VT+2}, s{T+1}, v{VT+2}
        v_lshrrev_b32 v{VL}, 4, v0
        v_lshlrev_b32 v{VL}, 4, v{VL}
        v_add_u32 v{VL}, s{T+1}, v{VL}
        v_lshlrev_b32 v{VL+1}, 3, v0
        s_add_u32 s{T+2}, s{S_W}, 3
        s_and_b32 s{T+2}, s{T+2}, 3
        s_mul_i32 s{T+2}, s{T+2}, {3*XSLOT}
        s_add_u32 s{T+2}, s{T+2}, {XRING}
        v_add_u32 v{VL+2}, s{T+2}, v{VL+1}
        v_add_u32 v{VL+1}, s{S_XL}, v{VL+1}
        s_lshl_b32 s{SSO}, s{S_PAR}, 14
        s_add_u32 s{SSO}, s{SSO}, {WS_STATS}
    """)
    sl = [I(f"buffer_load_dwordx4 v[{VT+4}:{VT+7}], v{VT}, {R(R_WS)}, s{SSO} offen sc1", tag="stat")]
    cm = L(f"""
        v_xor_b32 v{VT+5}, v{VT+5}, v{VTAG}
        v_xor_b32 v{VT+7}, v{VT+7}, v{VTAG}
        v_or_b32 v{VT+5}, v{VT+5}, v{VT+7}
        v_cmp_ne_u32 vcc, 0, v{VT+5}
    """)
    c2 = check("As", sl, cm, "stat") + L(f"""
        v_rcp_f32 v{VT+5}, v{VT+6}
        v_cndmask_b32 v{VT+4}, 0, v{VT+4}, s[{S_M+2}:{S_M+3}]
        v_cndmask_b32 v{VT+5}, 0, v{VT+5}, s[{S_M+2}:{S_M+3}]
    """)
    c2.append(I(f"ds_write_b32 v{VT+1}, v{VT+4}", tag="stw"))
    c2.append(I(f"ds_write_b32 v{VT+1}, v{VT+5} offset:256", tag="stw"))
    c3 = [W("stw")]
    for t in range(3):
        c3.append(I(f"ds_read2_b32 v[{VNM+2*t}:{VNM+2*t+1}], v{VT+2} offset0:{16+16*t} offset1:{64+16+16*t}", tag="str"))
    RS0 = 124
    for t in range(4):
        c3.append(I(f"ds_read_b128 v[{RS0+4*t}:{RS0+4*t+3}], v{VL} offset:{256 + 64*t}", tag="str"))
    c4 = [W("str")]
    CB = {}
    for t in range(3):
        geom = 0 if t == 0 else 1
        cb = CB[t] = pool.get(8, 2)
        c4 += L(f"v_mul_f32 v{VNM+2*t+1}, {hx(f2u(ATT_C))}, v{VNM+2*t+1}")
        for e in range(4):
            c4 += smov(S_M, lanemask(lambda g, q: prevf(geom, e)(g, q) or curf(geom, e)(g, q)))
            c4 += L(f"""
                v_cndmask_b32 v{cb+e}, v{RS0+4*(t+1)+e}, v{RS0+4*t+e}, {sel(geom, e)}
                v_mul_f32 v{cb+e}, v{cb+e}, v{VNM+2*t+1}
                v_cndmask_b32 v{cb+e}, 0, v{cb+e}, s[{S_M}:{S_M+1}]
                v_cmp_lt_f32 vcc, 0, v{cb+e}
                v_mov_b32 v{cb+4+e}, {hx(f2u(-1e30))}
                v_cndmask_b32 v{cb+4+e}, v{cb+4+e}, 0, vcc
            """)

    vs = []
    dppb = "row_newbcast:0 row_mask:0xf bank_mask:0xf"
    KP = {}
    for t in (2, 1, 0):
        for e in range(20):
            vs += L(f"v_fmac_f32_dpp v{AK+20*t+e}, v{AK+e}, v{VNM+2*t} {dppb}")
        for e in range(10):
            vs += L(f"v_cvt_pk_bf16_f32 v{AK+20*t+e}, v{AK+20*t+2*e}, v{AK+20*t+2*e+1}")
        KP[t] = AK + 20 * t
        pool.put(AK + 20 * t + 10, 10)
        if t == 2:
            for c in range(5):
                vs.append(I(f"ds_write_b64 v{VL+1}, v[{KP[2]+2*c}:{KP[2]+2*c+1}] offset:{512*c}", tag="khw"))
            khw_end = len(vs)
    kfix_end = len(vs)
    POP = {}
    marks = {}

    def q_ops(t):
        r = []
        Q = AQ + 20 * t
        for e in range(20):
            r += L(f"v_fmac_f32_dpp v{Q+e}, v{AQ+e}, v{VNM+2*t} {dppb}")
        qo = [pool.get(4, 2) for _ in range(4)]
        for e in range(2):
            r += L(f"v_cvt_pk_bf16_f32 v{qo[0]+e}, v{Q+2*e}, v{Q+2*e+1}")
            r += L(f"v_cvt_pk_bf16_f32 v{qo[3]+2+e}, v{Q+16+2*e}, v{Q+16+2*e+1}")
        for c in (1, 2, 3):
            for e in range(2):
                a, b = qo[c - 1] + 2 + e, qo[c] + e
                r += L(f"""
                    v_cvt_pk_bf16_f32 v{a}, v{Q+4*c+2*e}, v{Q+4*c+2*e+1}
                    v_cndmask_b32 v{b}, v{a}, 0, {gm(c-1)}
                    v_cndmask_b32 v{a}, 0, v{a}, {gm(c-1)}
                """)
        pool.put(Q, 20)
        S = [pool.get(4, 2) for _ in range(8)]
        for h in range(4):
            for w in range(2):
                kp = KP[t - 1 + w] + 2 * h
                r.append(I(f"v_mfma_f32_16x16x32_bf16 v[{S[2*h+w]}:{S[2*h+w]+3}], v[{kp}:{kp+3}], v[{qo[h]}:{qo[h]+3}], 0"))
        for q in qo:
            pool.put(q, 4)
        pool.put(KP[t], 10)
        return r, S

    def xred(op, M):
        return L(f"""
            v_permlane32_swap_b32 v{M}, v{M+1}
            v_permlane32_swap_b32 v{M+2}, v{M+3}
            {op} v{M}, v{M}, v{M+1}
            {op} v{M+2}, v{M+2}, v{M+3}
            v_permlane16_swap_b32 v{M}, v{M+2}
            {op} v{M}, v{M}, v{M+2}
        """)

    def xbc(M):
        return L(f"""
            v_mov_b32 v{M+2}, v{M}
            v_permlane16_swap_b32 v{M}, v{M+2}
            v_mov_b32 v{M+1}, v{M}
            v_mov_b32 v{M+3}, v{M+2}
            v_permlane32_swap_b32 v{M}, v{M+1}
            v_permlane32_swap_b32 v{M+2}, v{M+3}
        """)

    def softmax(t, S):
        geom = 0 if t == 0 else 1
        cb = CB[t]
        r = []
        M = pool.get(4, 2)
        for h in range(4):
            a, b = S[2 * h], S[2 * h + 1]
            for e in range(4):
                r += L(f"v_cndmask_b32 v{b+e}, v{b+e}, v{a+e}, {sel(geom, e)}")
            for e in range(4):
                r += L(f"v_fma_f32 v{b+e}, v{b+e}, v{cb+e}, v{cb+4+e}")
            r += L(f"v_max3_f32 v{M+h}, v{b}, v{b+1}, v{b+2}\nv_max_f32 v{M+h}, v{M+h}, v{b+3}")
        r += xred("v_max_f32", M) + xbc(M)
        for h in range(4):
            b = S[2 * h + 1]
            for e in range(4):
                r += L(f"v_sub_f32 v{b+e}, v{b+e}, v{M+h}")
            for e in range(4):
                r += L(f"v_exp_f32 v{b+e}, v{b+e}")
        for h in range(4):
            a, b = S[2 * h], S[2 * h + 1]
            r += L(f"v_add_f32 v{M+h}, v{b}, v{b+1}\nv_add_f32 v{a}, v{b+2}, v{b+3}\nv_add_f32 v{M+h}, v{M+h}, v{a}")
        r += xred("v_add_f32", M) + L(f"v_rcp_f32 v{M}, v{M}") + xbc(M)
        for h in range(4):
            a, b = S[2 * h], S[2 * h + 1]
            for e in range(4):
                r += L(f"v_mul_f32 v{b+e}, v{b+e}, v{M+h}")
            for e in range(2):
                r += L(f"v_cvt_pk_bf16_f32 v{a+2+e}, v{b+2*e}, v{b+2*e+1}")
            for e in range(2):
                r += L(f"v_and_b32 v{a+e}, v{a+2+e}, v{VPM+2*geom+e}")
            for e in range(2):
                r += L(f"v_xor_b32 v{a+2+e}, v{a+2+e}, v{a+e}")
            POP[t, h] = a
            pool.put(b, 4)
        pool.put(M, 4)
        pool.put(cb, 8)
        return r

    for t in (2, 1, 0):
        if t == 0:
            KP[-1] = pool.get(10, 2)
            marks["khr"] = len(vs)
            for c in range(5):
                vs.append(I(f"ds_read_b64 v[{KP[-1]+2*c}:{KP[-1]+2*c+1}], v{VL+2} offset:{512*c}", tag="khr"))
        a, S = q_ops(t)
        if t == 0:
            k = next(n for n, i in enumerate(a) if i.kind == "mfma")
            a.insert(k, W("khr"))
        vs += a + softmax(t, S)
    pool.put(KP[-1], 10)
    GK = 572
    fv = paced(vs, GK, 899)
    for n, f in enumerate(fv):
        if n >= kfix_end:
            f.lo = max(f.lo, 602)
        f.hi = min(899, f.lo + opt("aslack", 12))
        f.lo -= opt("alead", 30)
        f.lo = max(f.lo, GK if n < kfix_end else 602)
    barB = bar[12]
    assert fv[khw_end].hi < barB - 2
    assert fv[marks["khr"]].lo > barB
    for f in tr:
        if f.ins.mn == "WAIT" and f.lo == barB - 2:
            f.ins.need.append("khw")
    misc = paced(stats_compute(), 46, 170, False) + paced(cs, 170, 400) + [F(i, 402, 410) for i in sl]
    misc += paced(c2, 470, 480) + paced(c3, 486, 494) + paced(c4, 500, 570)
    gB = opt("agb", 590)
    misc += [F(i, gB, gB + 4) for i in poll_ld(VPB, "pb")]
    misc += [F(i, gB + 50, gB + 54) for i in check("Ab", poll_ld(VPB), poll_cmp(), "pb")]
    NB = opt("anb", 9)
    bl = []
    for i in range(NB):
        bl += b_loads(i)
    bs = paced(bl, 660, 898)
    for f in bs:
        if f.ins.kind == "vload":
            f.lo = max(f.lo, 600 + 60 * (f.ins.wr[-1][1] // 48 + 1))
        f.hi = min(899, f.lo + 10)
    misc += bs
    st = {}
    body, left = schedule(mf, [waits, tr, dma, misc, ooo(fv, 28)], st)
    print("ATT sched", st, file=sys.stderr)
    body = stamped(body, {120: 4, 300: 5, 600: 6, 760: 7})
    o += stamp(2) + pre + stamp(3) + body + stamp(8)

    NM2 = [pool.get(4, 2) for _ in range(3)]
    RS2 = [pool.get(4, 2) for _ in range(3)]
    WSV = pool.get(6, 2)
    tl = []
    BA = pool.get(1)
    tl += L(f"v_and_b32 v{BA}, 15, v0\nv_lshlrev_b32 v{BA}, 2, v{BA}")
    for t in range(3):
        tl.append(I(f"ds_read_b128 v[{NM2[t]}:{NM2[t]+3}], v{VL} offset:{64*(t+1)}", tag="nm2"))
        tl.append(I(f"ds_read_b128 v[{RS2[t]}:{RS2[t]+3}], v{VL} offset:{256 + 64*(t+1)}", tag="nm2"))
    for c in range(5):
        tl.append(I(f"ds_bpermute_b32 v{WSV+c}, v{BA}, v{AV+12*c}", tag="nm2"))
    rb = []
    for i in range(NB, 12):
        rb += b_loads(i)
    tl += rb[:7]
    rb = rb[7:]
    tl.append(W("nm2"))
    pr = lambda x: f"v[{x}:{x+1}]"

    def vfix(t):
        r = []
        for c in range(5):
            a = AV + 12 * c + 4 * t
            wb, hi = WSV + (c & ~1), c & 1
            for e in (0, 2):
                r += L(f"v_pk_fma_f32 {pr(a+e)}, {pr(NM2[t]+e)}, {pr(wb)}, {pr(a+e)} op_sel:[0,{hi},0] op_sel_hi:[1,{hi},1]")
            for e in (0, 2):
                r += L(f"v_pk_mul_f32 {pr(a+e)}, {pr(a+e)}, {pr(RS2[t]+e)}")
            for e in ((1, 0) if t == 0 else (0, 1)):
                r += L(f"v_cvt_pk_bf16_f32 v{AV+12*c+2*(t+1)+e}, v{a+2*e}, v{a+2*e+1}")
            while rb and rb[0].scalar:
                r.append(rb.pop(0))
            if rb:
                r.append(rb.pop(0))
        return r

    tl += vfix(1) + vfix(2)
    for c in range(5):
        tl.append(I(f"ds_write_b64 v{VL+1}, v[{AV+12*c+6}:{AV+12*c+7}] offset:{4096 + 512*c}", tag="vhw"))
    tl += vfix(0) + rb
    tl += poll_ld(VPE, "pe")
    tl += [W("vhw"), I("s_barrier")]
    for c in range(5):
        tl.append(I(f"ds_read_b64 v[{AV+12*c}:{AV+12*c+1}], v{VL+2} offset:{4096 + 512*c}", tag="vhr"))
        pool.put(AV + 12 * c + 8, 4)
    for t in range(3):
        pool.put(NM2[t], 4)
        pool.put(RS2[t], 4)
    OD = {}

    def pv(t):
        r = []
        for h in range(4):
            for w in range(2):
                d = OD[t, h, w] = pool.get(4, 2)
                vp = AV + 12 * (h + w) + 2 * t
                r.append(I(f"v_mfma_f32_16x16x32_bf16 v[{d}:{d+3}], v[{vp}:{vp+3}], v[{POP[t, h]}:{POP[t, h]+3}], 0"))
        return r

    def ostore(t):
        r = []
        ob = [POP[t, 0], POP[t, 1], POP[t, 2]]
        for c in range(5):
            if c == 0:
                s = OD[t, 0, 0]
            elif c == 4:
                s = OD[t, 3, 1]
            else:
                s = OD[t, c, 0]
                for e in range(4):
                    r += L(f"v_cndmask_b32 v{s+e}, v{s+e}, v{OD[t, c-1, 1]+e}, {gm(c-1)}")
            for e in range(2):
                r += L(f"v_cvt_pk_bf16_f32 v{ob[c//2]+2*(c % 2)+e}, v{s+2*e}, v{s+2*e+1}")
            if c in (1, 3):
                r.append(I(f"buffer_store_dwordx4 v[{ob[c//2]}:{ob[c//2]+3}], v{VOS+t}, {R(R_WS)}, s{S_OB + c//2} offen sc1"))
            if c == 4:
                r.append(I(f"buffer_store_dwordx2 v[{ob[2]}:{ob[2]+1}], v{VOS+t}, {R(R_WS)}, s{S_OB+2} offen sc1"))
        for h in range(4):
            for w in range(2):
                pool.put(OD[t, h, w], 4)
        return r

    tl += pv(2)
    m1 = pv(1)
    tl += schedule(m1, [[F(i, 1, 7) for i in ostore(2)]])[0]
    tl.append(W("vhr"))
    m0 = pv(0)
    tl += schedule(m0, [[F(i, 0, 7) for i in ostore(1)]])[0]
    tl += ostore(0)
    o += tl
    o += stamp(9)
    o += check("Ae", poll_ld(VPE), poll_cmp(), "pe", True)
    o += L("s_branch JOIN")
    return o


def head(code_bytes):
    T = S_T
    o = L("s_cmp_ge_u32 s2, 256\ns_cbranch_scc1 END")
    if STAMP:
        o += L("s_memrealtime s[42:43]")
    o += L(f"""
        s_load_dwordx16 s[4:19], s[0:1], 0
        s_load_dwordx4 s[20:23], s[0:1], 64
        v_readfirstlane_b32 s{S_W}, v0
        s_lshr_b32 s{T}, s2, 3
    """)
    if opt("cpf", 1):
        per = -(-code_bytes // (32 * 128))
        o += L(f"""
            s_getpc_b64 s[{T+1}:{T+2}]
            s_mul_i32 s{T+3}, s{T}, {per}
            v_min_u32 v1, {per-1}, v0
            v_add_u32 v1, s{T+3}, v1
            v_min_u32 v1, {code_bytes//128 - 1}, v1
            v_lshlrev_b32 v1, 7, v1
            v_mov_b32 v3, s{T+2}
            v_add_co_u32 v2, vcc, s{T+1}, v1
            v_addc_co_u32 v3, vcc, 0, v3, vcc
        """)
        o.append(I("global_load_dword v246, v[2:3], off", tag="cpf"))
    RA, RB_, RC, RD, RE = opt("ra", 2), opt("rb", 3), opt("rc", 2), opt("rd", 5), opt("re", 1)
    o += L(f"""
        s_lshr_b32 s{S_W}, s{S_W}, 6
        v_and_b32 v0, 63, v0
        s_and_b32 s{T+1}, s2, 3
        s_bfe_u32 s{S_PAR}, s2, 0x10002
        s_cmp_lt_u32 s{T}, 12
        s_cbranch_scc0 H_notatt
        s_lshr_b32 s{S_RB}, s{T}, 1
        s_and_b32 s{S_CG}, s{T}, 1
        s_lshl_b32 s{T+1}, s{T+1}, 1
        s_add_u32 s{S_CG}, s{S_CG}, s{T+1}
        s_mul_i32 s{T}, s{S_RB}, 171
        s_mul_i32 s{S_PL0}, s{S_W}, 47
        s_add_u32 s{S_PL0}, s{S_PL0}, s{T}
        s_sub_u32 s{S_PL0}, s{S_PL0}, 7
        s_add_u32 s{S_PEND}, s{T}, 171
        s_mul_i32 s{T}, s{S_RB}, {RC}
        s_mul_i32 s{T+1}, s{S_CG}, {RD}
        s_add_u32 s{T}, s{T}, {RE}
        s_branch H_common
        H_notatt:
        s_cmp_lt_u32 s{T}, 30
        s_cbranch_scc1 H_two
        s_lshl_b32 s{T+1}, s{T+1}, 1
        s_add_u32 s{T+1}, s{T+1}, s{T}
        s_sub_u32 s{T+1}, s{T+1}, 30
        s_mul_i32 s{S_RB}, s{S_PAR}, 6
        s_add_u32 s{S_RB}, s{S_RB}, s{T+1}
        s_mov_b32 s{S_CG}, 13
        s_movk_i32 s{F_UF}, 1000
        s_cmp_lt_u32 s{T+1}, 5
        s_cbranch_scc1 H_ffn
        s_mul_i32 s{S_RB}, s{S_PAR}, 3
        s_add_u32 s{S_RB}, s{S_RB}, s{T+1}
        s_sub_u32 s{S_RB}, s{S_RB}, 5
        s_branch HELPER
        H_two:
        s_mul_i32 s{T+1}, s{T+1}, 18
        s_add_u32 s{T+1}, s{T+1}, s{T}
        s_sub_u32 s{T+1}, s{T+1}, 12
        s_lshl_b32 s{F_UF}, s{T+1}, 1
        s_add_u32 s{F_UF}, s{F_UF}, s{S_PAR}
        s_mul_i32 s{T+2}, s{S_W}, 144
        s_add_u32 s{F_UF}, s{F_UF}, s{T+2}
        s_cmp_eq_u32 s{S_PAR}, 1
        s_cselect_b32 s{T+2}, 35, 42
        s_cmp_ge_u32 s{T+1}, s{T+2}
        s_cselect_b32 s{T+2}, s{T+2}, 0
        s_cselect_b32 s{S_CG}, 7, 0
        s_cselect_b32 s{T+4}, 1, 0
        s_sub_u32 s{T+1}, s{T+1}, s{T+2}
        s_cmp_eq_u32 s{S_PAR}, s{T+4}
        s_cselect_b32 s{T+2}, 43, 52
        s_cselect_b32 s{T+4}, 6, 5
        s_mul_i32 s{T+2}, s{T+2}, s{T+1}
        s_lshr_b32 s{T+2}, s{T+2}, 8
        s_add_u32 s{S_CG}, s{S_CG}, s{T+2}
        s_mul_i32 s{T+2}, s{T+2}, s{T+4}
        s_sub_u32 s{S_RB}, s{T+1}, s{T+2}
        s_sub_u32 s{T+4}, 11, s{T+4}
        s_mul_i32 s{T+4}, s{T+4}, s{S_PAR}
        s_add_u32 s{S_RB}, s{S_RB}, s{T+4}
        H_ffn:
        s_lshl_b32 s{T}, s{S_RB}, 2
        s_add_u32 s{T}, s{T}, s{S_W}
        s_cmp_ge_u32 s{T}, 22
        s_cselect_b32 s{S_PAR}, 1, 0
        s_cselect_b32 s{T+1}, 22, 0
        s_sub_u32 s{T}, s{T}, s{T+1}
        s_mul_i32 s{S_PL0}, s{T}, 47
        s_movk_i32 s{S_PEND}, 1024
        s_mul_i32 s{T}, s{S_RB}, {RA}
        s_mul_i32 s{T+1}, s{S_CG}, {RB_}
        H_common:
        s_add_u32 s{T}, s{T}, s{T+1}
        s_mul_i32 s{T+1}, s{T}, 205
        s_lshr_b32 s{T+1}, s{T+1}, 11
        s_mul_i32 s{T+1}, s{T+1}, 10
        s_sub_u32 s{T}, s{T}, s{T+1}
        s_lshl_b32 s{T}, s{T}, 2
        s_mov_b32 s{T+1}, 0x76543210
        s_movk_i32 s{T+2}, 0x98
        s_lshr_b64 s[{S_SEQ}:{S_SEQ+1}], s[{T+1}:{T+2}], s{T}
        s_sub_u32 s{T}, 40, s{T}
        s_lshl_b64 s[{T+1}:{T+2}], s[{T+1}:{T+2}], s{T}
        s_or_b64 s[{S_SEQ}:{S_SEQ+1}], s[{S_SEQ}:{S_SEQ+1}], s[{T+1}:{T+2}]
        s_add_u32 s{T}, s{S_PL0}, 47
        s_min_u32 s{S_PEND}, s{S_PEND}, s{T}
        s_min_u32 s{S_PEND}, s{S_PEND}, 0x400
    """)
    o += x_addr(4)
    o += L("s_waitcnt lgkmcnt(0)") + (L("s_mov_b32 s3, s42") if STAMP else []) + stamp(1)
    o += srd(R_X, P_X, None)
    o += x_dma(0)
    o += srd(R_XF, P_X, 2048 * 1280) + srd(R_WS, P_WS, WS_SIZE)
    o += L("s_cmp_lt_u32 s2, 96\ns_cbranch_scc0 H_fpro")
    return o


def finish(code, name, vm0=None, skip=0):
    rep = []
    c = resolve_waits(code, vm0=vm0)
    c = fix_hazards(c, rep)
    if skip:
        k = next(n for n, i in enumerate(c) if i.text == skip)
        c = c[k:]
    n = sum(r[0] for r in rep)
    print(f"{name}: {len(c)} instrs, {len(rep)} hazard nops ({n} states)", file=sys.stderr)
    if opt("v", 0):
        for r in rep:
            print("   ", r, file=sys.stderr)
    return text_of(c)


def build(code_bytes):
    del SLOW[:]
    k = NAME + "_kernel"
    out = [f"; @launch grid=(256,1,1) block=(256,1,1) lds={LDS_BYTES}"]
    out.append('.amdgcn_target "amdgcn-amd-amdhsa--gfx950"\n.text')
    out.append(f".globl {k}\n.p2align 8\n.type {k},@function\n{k}:")
    hd = head(code_bytes)
    ap = L("H_apro:") + att_pro() + L("s_branch ATT")
    fp = L("H_fpro:") + ffn_pro()
    out.append(finish(hd + ap, "head"))
    out.append(finish(hd + fp + ffn(), "ffn", skip="H_fpro:"))
    role = I("buffer_inv sc1", tag="role")
    out.append(finish(phase2(), "phase2", vm0=[role]))
    out.append(finish(hd + ap + att(), "att", skip="ATT:"))
    out.append(finish(helper(), "helper"))
    out.append(finish(slowjoin(), "slowjoin"))
    for s in SLOW:
        out.append(finish(s, "slow"))
    out.append("END:\n  s_endpgm\nCODE_END:")
    out.append(f""".section .rodata,"a"
.p2align 6
.amdhsa_kernel {k}
  .amdhsa_next_free_vgpr 512
  .amdhsa_next_free_sgpr 102
  .amdhsa_accum_offset 256
  .amdhsa_group_segment_fixed_size 0
  .amdhsa_kernarg_size 80
  .amdhsa_user_sgpr_count 2
  .amdhsa_user_sgpr_kernarg_segment_ptr 1
  .amdhsa_system_sgpr_workgroup_id_x 1
  .amdhsa_float_denorm_mode_32 3
.end_amdhsa_kernel""")
    return "\n".join(out) + "\n"


def code_size(text):
    import subprocess, tempfile, os
    d = tempfile.mkdtemp()
    open(d + "/a.s", "w").write(text)
    subprocess.run(["clang", "-x", "assembler", "-target", "amdgcn-amd-amdhsa", "-mcpu=gfx950", "-c",
                    d + "/a.s", "-o", d + "/a.o"], check=True)
    r = subprocess.run(["llvm-readelf", "-s", d + "/a.o"], capture_output=True, text=True).stdout
    for ln in r.splitlines():
        if ln.endswith(" CODE_END"):
            return int(ln.split()[1], 16)


if __name__ == "__main__":
    err, sys.stderr = sys.stderr, open("/dev/null", "w")
    n = code_size(build(65536))
    sys.stderr = err
    t = build(n)
    print("code bytes", n, file=sys.stderr)
    sys.stdout.write(t)
```

```python
import re

_REG = re.compile(r"(?<![\w.])([vas])(?:\[(\d+):(\d+)\]|(\d+))(?![\w])")
TRANS = ("v_exp_f32", "v_log_f32", "v_rcp_f32", "v_rsq_f32", "v_sqrt_f32")


def regs_of(op):
    out = []
    for m in _REG.finditer(op):
        k = m.group(1)
        if m.group(4) is not None:
            out.append((k, int(m.group(4))))
        else:
            out += [(k, i) for i in range(int(m.group(2)), int(m.group(3)) + 1)]
    for special in ("vcc", "exec", "m0"):
        if re.search(r"(?<![\w])" + special + r"(?![a-z0-9])", op):
            out.append(("x", special))
    return out


def split_ops(s):
    ops, depth, cur = [], 0, ""
    for ch in s:
        if ch == "[":
            depth += 1
        if ch == "]":
            depth -= 1
        if ch == "," and depth == 0:
            ops.append(cur.strip())
            cur = ""
        else:
            cur += ch
    if cur.strip():
        ops.append(cur.strip())
    return ops


class I:
    def __init__(self, text, tag=None, need=None):
        self.text = text.strip()
        self.tag = tag
        self.need = need
        self.rd, self.wr = [], []
        self.srcc = []
        self.dpp = False
        t = self.text
        if t.endswith(":") or t.startswith(".") or t.startswith(";") or not t:
            self.mn, self.kind = "", "label" if t.endswith(":") else "dir"
            return
        sp = t.split(None, 1)
        mn = self.mn = sp[0]
        ops = split_ops(sp[1]) if len(sp) > 1 else []
        R = [regs_of(o) for o in ops]
        allr = lambda a: [r for x in R[a:] for r in x]
        if mn == "WAIT":
            self.kind = "wait"
        elif mn.startswith("v_mfma"):
            self.kind = "mfma"
            self.wr = R[0]
            self.rd = allr(1)
            self.srcc = R[3]
        elif mn.startswith("v_permlane"):
            self.kind = "perm"
            self.wr = allr(0)
            self.rd = allr(0)
        elif mn.startswith("v_"):
            base = mn.replace("_e32", "").replace("_e64", "").replace("_dpp", "").replace("_sdwa", "")
            self.kind = "trans" if base in TRANS else "valu"
            if mn.startswith("v_pk_") or mn.startswith("v_dot2"):
                self.kind = "pk"
            self.dpp = "_dpp" in mn
            self.wr = list(R[0])
            self.rd = allr(1)
            if base.startswith("v_fmac") or base.startswith("v_dot2c") or (self.dpp and "row_mask:0xf" not in t):
                self.rd += R[0]
            if base in ("v_add_co_u32", "v_addc_co_u32", "v_sub_co_u32"):
                self.wr += R[1]
                self.rd = allr(2)
        elif mn.startswith("ds_read") or mn.startswith("ds_bpermute") or mn.startswith("ds_swizzle"):
            self.kind = "ldsr"
            self.wr = R[0]
            self.rd = allr(1)
        elif mn.startswith("ds_write"):
            self.kind = "ldsw"
            self.rd = allr(0)
        elif mn.startswith("buffer_load") or mn.startswith("global_load"):
            if re.search(r"\blds\b", t):
                self.kind = "dma"
                self.rd = allr(0) + [("x", "m0")]
            else:
                self.kind = "vload"
                self.wr = R[0]
                self.rd = allr(1)
        elif mn.startswith("buffer_store") or mn.startswith("global_store"):
            self.kind = "vstore"
            self.rd = allr(0)
            self.data = R[0]
        elif mn.startswith("buffer_atomic"):
            self.kind = "vload" if "sc0" in t else "vstore"
            self.rd = allr(0)
            self.data = R[0]
            if "sc0" in t:
                self.wr = R[0]
        elif mn.startswith("buffer_inv") or mn.startswith("buffer_wbl2"):
            self.kind = "vstore"
            self.data = []
        elif mn.startswith("s_load") or mn in ("s_memtime", "s_memrealtime"):
            self.kind = "smem"
            self.wr = R[0]
            self.rd = allr(1)
        elif mn in ("s_waitcnt",):
            self.kind = "wait"
        elif mn == "s_barrier":
            self.kind = "bar"
        elif mn == "s_nop":
            self.kind = "nop"
        elif mn.startswith("s_cbranch") or mn in ("s_branch", "s_endpgm", "s_sleep", "s_setprio"):
            self.kind = "ctl"
        elif mn.startswith("s_cmp") or mn.startswith("s_bitcmp"):
            self.kind = "salu"
            self.rd = allr(0)
        elif mn.startswith("s_"):
            self.kind = "salu"
            self.wr = list(R[0])
            self.rd = allr(1)
            if "saveexec" in mn:
                self.wr.append(("x", "exec"))
        else:
            raise ValueError("unknown instr " + t)

    @property
    def scalar(self):
        return self.kind in ("salu", "wait", "bar", "nop", "ctl", "smem")

    @property
    def slots(self):
        if self.kind in ("trans", "perm"):
            return 2
        if self.kind == "ldsw":
            return 2
        if self.kind in ("label", "dir"):
            return 0
        return 1

    def states(self):
        if self.kind in ("label", "dir"):
            return 0
        if self.kind == "nop":
            return int(self.text.split()[1], 0) + 1
        return 1

    def __repr__(self):
        return self.text


def G(text):
    parts = L(text)
    g = I("s_nop 0")
    g.kind, g.mn = "ctl", "glue"
    g.text = "\n".join(p.text if p.kind == "label" else "  " + p.text for p in parts).strip()
    g.rd = [r for p in parts for r in p.rd]
    g.wr = [r for p in parts for r in p.wr]
    if any(p.mn in ("s_cbranch_vccnz", "s_cbranch_vccz") for p in parts):
        g.rd.append(("x", "vcc"))
    return g


def W(*tags):
    return I("WAIT", need=list(tags))


def L(text):
    out = []
    for ln in text.split("\n"):
        ln = ln.split(";")[0].strip()
        if ln:
            out.append(I(ln))
    return out


VM = ("dma", "vload", "vstore")
LG = ("ldsr", "ldsw")


def resolve_waits(code, check=True, vm0=None):
    vm, lg = list(vm0 or []), []
    smem = []
    out = []
    seen = set(i.tag for i in vm)
    for ins in code:
        if ins.kind == "wait":
            if ins.mn == "WAIT":
                nv = nl = None
                for t in ins.need:
                    if t not in seen:
                        raise ValueError("wait for unknown tag %s" % (t,))
                idx = [k for k, o in enumerate(vm) if o.tag in ins.need]
                if idx:
                    nv = len(vm) - 1 - max(idx)
                idx = [k for k, o in enumerate(lg) if o.tag in ins.need]
                if idx:
                    nl = len(lg) - 1 - max(idx)
                    if smem:
                        nl = 0
                if any(o.tag in ins.need for o in smem):
                    nl = 0
                parts = []
                if nv is not None:
                    nv = min(nv, 63)
                    parts.append("vmcnt(%d)" % nv)
                if nl is not None:
                    nl = min(nl, 15)
                    parts.append("lgkmcnt(%d)" % nl)
                if not parts:
                    continue
                ins = I("s_waitcnt " + " ".join(parts))
            m = re.search(r"vmcnt\((\d+)\)", ins.text)
            if m:
                n = int(m.group(1))
                vm = vm[len(vm) - n:] if n < len(vm) else vm
                if n == 0:
                    vm = []
            m = re.search(r"lgkmcnt\((\d+)\)", ins.text)
            if m:
                n = int(m.group(1))
                if n == 0:
                    lg, smem = [], []
                elif not smem:
                    lg = lg[len(lg) - n:] if n < len(lg) else lg
            out.append(ins)
            continue
        if check and ins.kind not in ("label", "dir"):
            pend = {}
            for o in vm + lg + smem:
                for r in o.wr:
                    pend[r] = o
            for r in ins.rd + ins.wr:
                if r in pend:
                    raise ValueError("register %s of pending '%s' touched by '%s'" % (r, pend[r].text, ins.text))
        if ins.kind in VM:
            vm.append(ins)
            if len(vm) > 63 and check:
                pass
        elif ins.kind in LG:
            lg.append(ins)
        elif ins.kind == "smem":
            smem.append(ins)
        if ins.tag is not None:
            seen.add(ins.tag)
        out.append(ins)
    return out


def fix_hazards(code, report=None):
    out = []
    VAL = ("valu", "trans", "perm", "pk")

    def dist_need(prev, cur):
        n = 0
        pw, pr = set(prev.wr), set(prev.rd)
        cr, cw = set(cur.rd), set(cur.wr)
        vec = lambda s: {r for r in s if r[0] in "va"}
        sg = lambda s: {r for r in s if r[0] == "s" or r == ("x", "vcc")}
        if prev.kind == "mfma":
            d = pw
            if cur.kind == "mfma":
                ab = set(cur.rd) - set(cur.srcc)
                c = set(cur.srcc)
                if d & ab:
                    n = max(n, 8)
                if d & c and c != d:
                    n = max(n, 6)
                if d & cw and c != d:
                    n = max(n, 8)
            elif d & (cr | cw):
                n = max(n, 8)
            if cur.kind in VAL and set(prev.srcc) & cw:
                n = max(n, 3)
        if prev.kind in VAL:
            if cur.kind == "mfma" and vec(pw) & cr:
                n = max(n, 2)
            if cur.kind == "mfma" and ("x", "exec") in pw:
                n = max(n, 4)
            if cur.kind in VAL and cur.dpp and vec(pw) & cr:
                n = max(n, 2)
            if cur.kind == "perm" and vec(pw) & cr:
                n = max(n, 2)
            if prev.kind == "trans" and cur.kind in ("valu", "perm", "pk") and pw & cr:
                n = max(n, 1)
            if cur.mn.startswith("v_readfirstlane") or cur.mn.startswith("v_readlane"):
                if vec(pw) & cr:
                    n = max(n, 1)
            if sg(pw) & cr:
                if cur.kind in VM:
                    n = max(n, 5)
                elif cur.kind in VAL:
                    n = max(n, 2)
                elif cur.kind in ("salu", "smem"):
                    n = max(n, 1)
            if prev.kind == "pk" and prev.mn.startswith("v_dot2") and vec(pw) & (cr | cw):
                if not (cur.mn == prev.mn):
                    n = max(n, 3)
            if "sdwa" in prev.mn and cur.kind in VAL and pw & cr:
                n = max(n, 1)
        if prev.kind == "vstore" and len(getattr(prev, "data", [])) >= 3 and set(prev.data) & cw:
            n = max(n, 2)
        if prev.kind == "salu" and ("x", "m0") in pw and cur.kind == "dma":
            n = max(n, 1)
        return n

    for ins in code:
        if ins.kind in ("label", "dir"):
            out.append(ins)
            continue
        need = 0
        dist = 0
        for prev in reversed(out):
            if dist >= 8:
                break
            if prev.kind in ("label", "dir"):
                continue
            n = dist_need(prev, ins)
            if n - dist > need:
                need = n - dist
                why = prev
            dist += prev.states()
        if need > 0:
            if report is not None:
                report.append((need, why.text, ins.text))
            out.append(I("s_nop %d" % (need - 1)))
        out.append(ins)
    return out


class F:
    def __init__(self, ins, lo=-10 ** 9, hi=10 ** 9):
        self.ins, self.lo, self.hi = ins, lo, hi


def paced(instrs, g0, g1, hard_end=True):
    tot = sum(0 if i.scalar else i.slots for i in instrs) or 1
    out, acc = [], 0
    for i in instrs:
        lo = g0 + int((g1 - g0 + 1) * acc / tot)
        if i.kind == "salu":
            lo = max(g0, lo - 2)
        out.append(F(i, min(lo, g1), g1 if hard_end else 10 ** 9))
        acc += 0 if i.scalar else i.slots
    return out


class Stream(list):
    ooo = 0


def ooo(items, window=24):
    s = Stream(items)
    s.ooo = window
    return s


def _indep(a, b):
    if a.scalar or b.scalar:
        return False
    mem = VM + LG
    if a.kind in mem and b.kind in mem:
        return False
    aw, ar, bw, br = set(a.wr), set(a.rd), set(b.wr), set(b.rd)
    return not (aw & br or aw & bw or ar & bw)


def schedule(mfmas, streams, stats=None):
    out = []
    pend = []
    for s in streams:
        hi = 10 ** 9
        for f in reversed(s):
            hi = min(hi, f.hi)
            f.ehi = hi
        pend.append(list(s))
    win = [getattr(s, "ooo", 0) for s in streams]
    over = 0
    waste = 0

    def cands(g):
        c = []
        for k, s in enumerate(pend):
            if not s:
                continue
            if s[0].lo <= g:
                c.append((s[0].ehi, 0, k, 0))
                for x in range(1, min(len(s), win[k])):
                    if s[x].ins.kind == "mfma" or s[x].ins.scalar:
                        break
                    if s[x].lo <= g + 3 and all(_indep(s[y].ins, s[x].ins) for y in range(x)):
                        c.append((s[x].ehi, x, k, x))
        c.sort()
        return c

    def take(c):
        f = pend[c[2]].pop(c[3])
        out.append(f.ins)
        return f

    def fill(g):
        nonlocal over, waste
        cap, first = 2, True
        while True:
            cand = cands(g)
            ins = lambda c: pend[c[2]][c[3]].ins
            if first:
                first = False
                sc = [c for c in cand if ins(c).scalar]
                if sc:
                    take(sc[0])
                    continue
            pick = None
            for c in cand:
                if ins(c).kind == "dma" and c[0] > g and ("x", "m0") in out[-1].wr:
                    continue
                if ins(c).kind != "mfma" and ins(c).slots <= cap:
                    if ins(c).scalar and c[0] > g and any(
                            (not ins(d).scalar) and ins(d).kind != "mfma" and ins(d).slots <= cap for d in cand):
                        continue
                    pick = c
                    break
            if pick is None:
                mm = [c for c in cand if ins(c).kind == "mfma"]
                if mm:
                    take(mm[0])
                    waste += max(cap, 0)
                    cap, first = 2, True
                    continue
                forced = [c for c in cand if c[0] <= g and c[3] == 0]
                if not forced:
                    waste += max(cap, 0)
                    return
                pick = forced[0]
            f = take(pick)
            if f.ins.slots > cap:
                over += f.ins.slots - max(cap, 0)
            cap -= f.ins.slots

    for g, m in enumerate(mfmas):
        out.append(m)
        fill(g)
    if stats is not None:
        stats["over"] = over
        stats["waste"] = waste
        stats["left"] = [len(x) for x in pend]
    return out, pend


def text_of(code):
    o = []
    for i in code:
        o.append(i.text if i.kind in ("label",) else "  " + i.text)
    return "\n".join(o)


def check_chains(code):
    touched = {}
    for ins in code:
        if ins.kind == "mfma":
            for r in ins.srcc:
                if r in touched:
                    raise ValueError("accumulator %s touched by '%s' before '%s'" % (r, touched[r].text, ins.text))
            for r in ins.rd:
                if r not in ins.srcc:
                    touched[r] = ins
            for r in ins.wr:
                touched.pop(r, None)
        else:
            for r in ins.rd + ins.wr:
                touched[r] = ins
```

```python
import math, struct, sys
from asmlib import *

NAME = "recurrent_scan__sliding_local_dilated__glu_gated_geglu__prompt"
OPT = dict(a.lstrip("-").split("=") if "=" in a else (a.lstrip("-"), "1") for a in sys.argv[1:])
opt = lambda k, d: int(OPT.get(k, d))
STAMP = opt("s", 0) or ("amp" in OPT) or opt("fine", 0)
AMP = [int(x) for x in OPT["amp"].split(",")] if "amp" in OPT else None

FS = opt("fs", 128)
WS_STATS = 0x1000
WS_FB, WS_FH, WS_FO = 0x10000, 0x40000, 0x80000
WS_A2 = 0x100000
WS_B2 = 0xB00000
WS_STAMP = 0xE00000
WS_SIZE = 0x1000000
NKB = 74
NUNIT = 500
OOB = 0x40000000
LDS_BYTES = 163840
SPIN = 20000


def f2u(x):
    return struct.unpack("<I", struct.pack("<f", x))[0]


def hx(x):
    return "0x%x" % (x & 0xFFFFFFFF)


LOG2E = 1.4426950408889634
GK1 = -2.0 * math.sqrt(2.0 / math.pi) * LOG2E
GK2 = GK1 * 0.044715
ATT_C = (20 ** -0.5) * LOG2E

P_X, P_QKV, P_WO, P_WG, P_WU, P_WD, P_OUT, P_DBG, P_WS = 4, 6, 8, 12, 14, 16, 18, 20, 22
R_X, R_A, R_B, R_WS, R_XF = 24, 28, 32, 36, 40
S_W, S_PL0, S_PAR, S_PEND = 44, 45, 46, 47
S_XL, S_XO, S_WL, S_WO, S_WB = 48, 49, 50, 51, 52
S_RB, S_CG = 53, 54
S_T = 55
S_SEQ = 60
S_TAG, S_FO = 62, 63
S_BE, S_BL, S_BO, S_BT = 64, 65, 66, 67
S_CNT = 68
S_R = 70
VB, VTAG, VFL, VPB, VPE, VPL, VPD, VST = 248, 249, 250, 251, 252, 253, 254, 255
ST_B, ST_U = 124, 140
VXA, VXR = 176, 182
XRING = 81920
XSLOT = 6272
SLOW = []
SINGLE = []


def srd(r, p, nbytes, bias=0):
    o = []
    if bias:
        o += L(f"s_sub_u32 s{r}, s{p}, {bias}\ns_subb_u32 s{r+1}, s{p+1}, 0")
    else:
        o += L(f"s_mov_b64 s[{r}:{r+1}], s[{p}:{p+1}]")
    if nbytes is not None:
        o += L(f"s_mov_b32 s{r+2}, {hx(nbytes + bias)}")
    o += L(f"s_mov_b32 s{r+3}, 0x20000")
    return o


def R(r):
    return f"s[{r}:{r+3}]"


FINE = opt("fine", 0)
FMAP = {1: 0, 2: 1, 8: 24, 9: 25, 10: 26, 11: 27, 16: 52, 30: 53, 31: 54}


def fine(body, step, lane0):
    out, n, pend = [], 0, None
    for i in body:
        if i.kind == "mfma" and pend is not None and n == pend[0]:
            out += [W("fst"), I(f"v_writelane_b32 v{VST}, s0, {pend[1]}")]
            pend = None
        out.append(i)
        if i.kind == "mfma" and any(r[0] == "a" for r in i.rd):
            if n % step == 0:
                out.append(I("s_memtime s[0:1]", tag="fst"))
                pend = (n + 6, lane0 + n // step)
            n += 1
    return out


def stamp(i):
    if FINE:
        return L(f"s_memtime s[0:1]\ns_waitcnt lgkmcnt(0)\nv_writelane_b32 v{VST}, s0, {FMAP[i]}") if i in FMAP else []
    if not STAMP or (AMP and i not in AMP[1:] and i != 31):
        return []
    return L(f"s_memrealtime s[10:11]\ns_memtime s[0:1]\ns_waitcnt lgkmcnt(0)\n"
             f"v_writelane_b32 v{VST}, s10, {i}\nv_writelane_b32 v{VST}, s0, {i+32}")


def stamped(body, at, step=None, lane0=None):
    if FINE:
        return fine(body, step, lane0)
    out, n = [], 0
    for i in body:
        if i.kind == "mfma":
            if n in at:
                out += stamp(at[n])
            n += 1
        out.append(i)
    return out


def stamp_out():
    if not STAMP:
        return []
    return stamp(30) + L("s_waitcnt vmcnt(0)") + stamp(31) + L(f"""
        v_writelane_b32 v{VST}, s3, {63 if FINE else 0}
        s_lshl_b32 s10, s2, 2
        s_add_u32 s10, s10, s{S_W}
        s_lshl_b32 s10, s10, 8
        s_add_u32 s10, s10, {hx(WS_STAMP)}
        v_lshlrev_b32 v1, 2, v0
        buffer_store_dword v{VST}, v1, {R(R_WS)}, s10 offen
    """) + amp_out()


def amp_out():
    if not AMP:
        return []
    o = L(f"""
        s_cmp_lg_u32 s2, {AMP[0]}
        s_cbranch_scc1 AMP_D
        s_cmp_lg_u32 s{S_W}, 0
        s_cbranch_scc1 AMP_D
        v_lshlrev_b32 v1, 4, v0
        s_mov_b32 s10, {hx(WS_STAMP + 0x80000)}
        buffer_load_dwordx4 v[4:7], v1, {R(R_WS)}, s10 offen sc1
        s_waitcnt vmcnt(0)
        v_subrev_u32 v4, s3, v4
        v_subrev_u32 v5, s3, v5
        v_subrev_u32 v6, s3, v6
        v_subrev_u32 v7, s3, v7
        v_min_i32 v8, v4, v5
        v_min3_i32 v8, v8, v6, v7
        v_max_i32 v9, v4, v5
        v_max3_i32 v9, v9, v6, v7
        s_mov_b32 s12, 0
        s_mov_b32 s13, 0
    """)
    for l in range(64):
        o += L(f"v_readlane_b32 s10, v8, {l}\nv_readlane_b32 s11, v9, {l}\ns_nop 1\ns_min_i32 s12, s12, s10\ns_max_i32 s13, s13, s11")
    o += L("s_add_u32 s12, s12, s3\ns_add_u32 s13, s13, s3")
    for d, k in ((14, AMP[1]), (15, AMP[2])):
        o += L(f"s_mov_b32 s{d}, s{12 + k - 100}" if k >= 100 else f"v_readlane_b32 s{d}, v{VST}, {k}")
    o += L(f"""
        v_readlane_b32 s16, v{VST}, 31
        s_nop 2
        s_sub_u32 s14, s15, s14
        s_min_u32 s14, s14, 5000
        s_mul_i32 s14, s14, 10
        s_add_u32 s14, s14, 300
        AMP_L:
        s_memrealtime s[10:11]
        s_waitcnt lgkmcnt(0)
        s_sub_u32 s10, s10, s16
        s_cmp_lt_u32 s10, s14
        s_cbranch_scc1 AMP_L
        AMP_D:
    """)
    return o


def rowof(vd, vp, vt):
    return L(f"""
        v_and_b32 v{vt}, 0x3ff, v{vp}
        v_lshrrev_b32 v{vd}, 10, v{vp}
        v_lshl_add_u32 v{vd}, v{vt}, 1, v{vd}
    """)


def spin(lab, loads, cmpv, back=None):
    o = L(f"{lab}:\ns_mov_b32 s{S_CNT}, {SPIN}\n{lab}_l:")
    o += [I(i.text) for i in loads] + L("s_waitcnt vmcnt(0)") + [I(i.text) for i in cmpv]
    o += L(f"""
        s_cbranch_vccz {lab}_d
        s_sub_u32 s{S_CNT}, s{S_CNT}, 1
        s_cbranch_scc0 {lab}_l
        {lab}_d:
    """)
    if back:
        o += L(f"s_branch {back}")
    return o


def check(lab, loads, cmpv, tag, publish=False):
    sp = spin("S" + lab, loads, cmpv, "B" + lab)
    if publish:
        sp[1:1] = L(f"s_waitcnt vmcnt(0)\nbuffer_store_dword v{VTAG}, v{VFL}, {R(R_WS)}, s{S_FO} offen sc1")
    SLOW.append(sp)
    return [W(tag)] + cmpv + [G(f"s_cbranch_vccnz S{lab}\nB{lab}:")]


def poll_ld(va, tag=None):
    return [I(f"buffer_load_dword v{VPD}, v{va}, {R(R_WS)}, 0 offen sc1", tag=tag)]


def poll_cmp():
    return L(f"v_cmp_ne_u32 vcc, v{VPD}, v{VTAG}")


def stats_loads():
    vb = ST_B
    a, a2, p, t = vb + 12, vb + 13, vb + 14, vb + 15
    o = L(f"""
        s_lshl_b32 s{S_T}, s2, 2
        s_add_u32 s{S_T}, s{S_T}, s{S_W}
        s_lshl_b32 s{S_T}, s{S_T}, 1
        v_lshrrev_b32 v{p}, 5, v0
        v_add_u32 v{p}, s{S_T}, v{p}
        v_mul_u32_u24 v{a}, 1280, v{p}
        v_and_b32 v{t}, 31, v0
        v_lshl_add_u32 v{a}, v{t}, 4, v{a}
        v_and_b32 v{t}, 16, v0
        v_lshl_add_u32 v{a2}, v{t}, 26, v{a}
        v_mov_b32 v{VTAG}, 0
    """)
    o += [I(f"buffer_load_dwordx4 v[{vb}:{vb+3}], v{a}, {R(R_XF)}, 0 offen", tag="st_ld"),
          I(f"buffer_load_dwordx4 v[{vb+4}:{vb+7}], v{a}, {R(R_XF)}, 0 offen offset:512", tag="st_ld"),
          I(f"buffer_load_dwordx4 v[{vb+8}:{vb+11}], v{a2}, {R(R_XF)}, 0 offen offset:1024", tag="st_ld"),
          I(f"buffer_load_dword v{VTAG}, v{VTAG}, {R(R_WS)}, 0 offen sc1", tag="st_ld")]
    return o


def half_reduce(v, t):
    o = []
    for c in ("quad_perm:[1,0,3,2]", "quad_perm:[2,3,0,1]", "row_half_mirror", "row_mirror"):
        o += L(f"v_add_f32_dpp v{v}, v{v}, v{v} {c} row_mask:0xf bank_mask:0xf")
    o += L(f"""
        v_mov_b32 v{t}, v{v}
        v_permlane16_swap_b32 v{v}, v{t}
        v_add_f32 v{v}, v{v}, v{t}
    """)
    return o


def rne_bf16(v):
    return L(f"v_cvt_pk_bf16_f32 v{v}, v{v}, v{v}\nv_lshlrev_b32 v{v}, 16, v{v}")


def stats_compute():
    vb, vu = ST_B, ST_U
    p, t = vb + 14, vb + 15
    s0, s1, q0, q1 = vu + 24, vu + 25, vu + 26, vu + 27
    o = [W("st_ld")]
    o += L(f"""
        s_mov_b32 s{S_T}, 1664525
        v_mul_lo_u32 v{VTAG}, v{VTAG}, s{S_T}
        v_add_u32 v{VTAG}, 1013904223, v{VTAG}
    """)
    for i in range(12):
        o += L(f"v_lshlrev_b32 v{vu+2*i}, 16, v{vb+i}\nv_and_b32 v{vu+2*i+1}, 0xffff0000, v{vb+i}")
    o += L(f"v_add_f32 v{s0}, v{vu}, v{vu+2}\nv_add_f32 v{s1}, v{vu+1}, v{vu+3}")
    for i in range(2, 12):
        o += L(f"v_add_f32 v{s0}, v{s0}, v{vu+2*i}\nv_add_f32 v{s1}, v{s1}, v{vu+2*i+1}")
    o += L(f"v_add_f32 v{s0}, v{s0}, v{s1}")
    o += half_reduce(s0, t)
    o += L(f"""
        v_and_b32 v{t}, 16, v0
        v_cmp_eq_u32 vcc, 0, v{t}
        v_mul_f32 v{s0}, {hx(f2u(-1.0/640))}, v{s0}
    """)
    for i in range(16):
        o += L(f"v_add_f32 v{vu+i}, v{vu+i}, v{s0}")
    o += L(f"v_cndmask_b32 v{s1}, 0, v{s0}, vcc")
    for i in range(16, 24):
        o += L(f"v_add_f32 v{vu+i}, v{vu+i}, v{s1}")
    o += L(f"v_mul_f32 v{q0}, v{vu}, v{vu}\nv_mul_f32 v{q1}, v{vu+1}, v{vu+1}")
    for i in range(1, 12):
        o += L(f"v_fmac_f32 v{q0}, v{vu+2*i}, v{vu+2*i}\nv_fmac_f32 v{q1}, v{vu+2*i+1}, v{vu+2*i+1}")
    o += L(f"v_add_f32 v{q0}, v{q0}, v{q1}")
    o += half_reduce(q0, t)
    o += L(f"v_mul_f32 v{q0}, {hx(f2u(1.0/640))}, v{q0}")
    o += rne_bf16(q0)
    o += L(f"v_add_f32 v{q0}, {hx(f2u(1e-5))}, v{q0}")
    o += rne_bf16(q0)
    o += L(f"v_sqrt_f32 v{q0}, v{q0}")
    d = vb
    o += L(f"""
        v_cvt_pk_bf16_f32 v{s0}, v{s0}, v{s0}
        v_lshlrev_b32 v{d}, 16, v{s0}
        v_cvt_pk_bf16_f32 v{q0}, v{q0}, v{q0}
        v_lshlrev_b32 v{d+2}, 16, v{q0}
        v_mov_b32 v{d+1}, v{VTAG}
        v_mov_b32 v{d+3}, v{VTAG}
        v_and_b32 v{t}, 1, v{p}
        v_lshrrev_b32 v{p}, 1, v{p}
        v_lshl_add_u32 v{p}, v{t}, 10, v{p}
        v_lshlrev_b32 v{p}, 4, v{p}
        v_and_b32 v{t}, 31, v0
        v_lshl_add_u32 v{p}, v{t}, 25, v{p}
        v_add_u32 v{p}, {WS_STATS}, v{p}
    """)
    o.append(I(f"buffer_store_dwordx4 v[{d}:{d+3}], v{p}, {R(R_WS)}, 0 offen sc1", tag="st_st"))
    if AMP:
        o += L(f"""
            s_lshl_b32 s{S_T}, s2, 2
            s_add_u32 s{S_T}, s{S_T}, {hx(WS_STAMP + 0x80000)}
            v_lshlrev_b32 v{t}, 24, v0
            v_mov_b32 v{s0}, s3
            buffer_store_dword v{s0}, v{t}, {R(R_WS)}, s{S_T} offen sc1
        """)
    return o


def p2_setup(vt):
    T = S_T
    sh = int(math.log2(FS))
    o = L(f"""
        v_lshlrev_b32 v{VB}, 4, v0
        s_bfe_u32 s{T}, s2, 0x30003
        s_mul_i32 s{T+1}, s{T}, {NKB*5120}
        s_add_u32 s{T+1}, s{T+1}, {hx(WS_B2)}
        s_mul_i32 s{T+2}, s{S_W}, 7
        s_mul_i32 s{S_BE}, s{T+2}, 5120
        s_add_u32 s{S_BE}, s{S_BE}, s{T+1}
        s_min_u32 s{T+3}, s{T+2}, 20
        s_mul_i32 s{S_BL}, s{T+3}, 5120
        s_add_u32 s{S_BL}, s{S_BL}, s{T+1}
        s_add_u32 s{S_BL}, s{S_BL}, {28*5120}
        s_mul_i32 s{S_BO}, s{S_W}, {5*5120}
        s_add_u32 s{S_BO}, s{S_BO}, s{T+1}
        s_add_u32 s{S_BO}, s{S_BO}, {54*5120}
        s_mul_i32 s{T}, s{T}, 5
        s_lshr_b32 s{T}, s{T}, 2
        v_lshrrev_b32 v{vt}, 1, v0
        v_min_u32 v{vt}, 18, v{vt}
        s_mul_i32 s{T+1}, s{S_W}, 5
        s_add_u32 s{T+1}, s{T+1}, 40
        v_mov_b32 v{vt+1}, s{T+1}
        s_add_u32 s{T+1}, s{T+3}, 21
        v_mov_b32 v{vt+2}, s{T+1}
        v_cmp_gt_u32 vcc, 14, v{vt}
        v_cndmask_b32 v{vt+1}, v{vt+1}, v{vt+2}, vcc
        v_mov_b32 v{vt+2}, s{T+2}
        v_cmp_gt_u32 vcc, 7, v{vt}
        v_cndmask_b32 v{vt+1}, v{vt+1}, v{vt+2}, vcc
        v_add_u32 v{vt}, v{vt}, v{vt+1}
        v_and_b32 v{vt+1}, 1, v0
        v_lshl_add_u32 v{vt}, v{vt}, 4, v{vt+1}
        v_add_u32 v{vt}, s{T}, v{vt}
        v_lshlrev_b32 v{vt}, {sh}, v{vt}
        v_add_u32 v{VPB}, {hx(WS_FB)}, v{vt}
    """)
    o += L(f"""
        s_and_b32 s{T}, s2, 3
        s_lshl_b32 s{T}, s{T}, 2
        s_lshr_b32 s{T+1}, s2, 6
        s_add_u32 s{T}, s{T}, s{T+1}
        s_lshl_b32 s{T}, s{T}, 6
        s_mul_i32 s{T+1}, s{T}, 1395
        s_lshr_b32 s{T+1}, s{T+1}, 16
        v_bfe_u32 v{vt}, v0, 3, 2
        v_add_u32 v{vt+1}, s{T+1}, v{vt}
        s_add_u32 s{T+1}, s{T}, 63
        s_mul_i32 s{T+1}, s{T+1}, 1395
        s_lshr_b32 s{T+1}, s{T+1}, 16
        v_min_u32 v{vt+1}, s{T+1}, v{vt+1}
        s_bfe_u32 s{T+4}, s2, 0x10002
        s_mul_i32 s{T+1}, s{T+4}, 22
        v_add_u32 v{vt+1}, s{T+1}, v{vt+1}
        v_and_b32 v{vt+2}, 7, v0
        v_min_u32 v{VPE}, 6, v{vt+2}
        v_add_u32 v{VPE}, s{T+2}, v{VPE}
        v_lshrrev_b32 v{VPE}, 1, v{VPE}
        v_lshl_add_u32 v{VPE}, v{VPE}, 6, v{vt+1}
        v_lshlrev_b32 v{VPE}, {sh}, v{VPE}
        v_add_u32 v{VPE}, {hx(WS_FH)}, v{VPE}
        s_lshr_b32 s{T+1}, s{S_W}, 1
        s_sub_u32 s{T+1}, 6, s{T+1}
        v_min_u32 v{VPL}, s{T+1}, v{vt+2}
        v_add_u32 v{VPL}, s{T+3}, v{VPL}
        v_lshrrev_b32 v{VPL}, 1, v{VPL}
        v_lshl_add_u32 v{VPL}, v{VPL}, 6, v{vt+1}
        v_lshlrev_b32 v{VPL}, {sh}, v{VPL}
        v_add_u32 v{VPL}, {hx(WS_FH + 16*64*FS)}, v{VPL}
    """)

    def aw(d, x, t):
        return L(f"""
            s_mul_i32 s{d}, s{x}, 3067
            s_lshr_b32 s{d}, s{d}, 19
            s_mul_i32 s{t}, s{d}, 171
            s_sub_u32 s{t}, s{x}, s{t}
            s_add_u32 s{t}, s{t}, 7
            s_mul_i32 s{t}, s{t}, 1395
            s_lshr_b32 s{t}, s{t}, 16
            s_lshl_b32 s{d}, s{d}, 2
            s_add_u32 s{d}, s{d}, s{t}
        """)

    o += aw(T + 1, T, T + 2)
    o += L(f"v_add_u32 v{vt}, s{T+1}, v{vt}\ns_add_u32 s{T}, s{T}, 63")
    o += aw(T + 1, T, T + 2)
    o += L(f"""
        v_min_u32 v{vt}, s{T+1}, v{vt}
        s_mul_i32 s{T+4}, s{T+4}, 24
        s_lshl_b32 s{T+1}, s{S_W}, 7
        s_add_u32 s{T+4}, s{T+4}, s{T+1}
        v_add_u32 v{vt}, s{T+4}, v{vt}
        v_and_b32 v{vt+1}, 1, v0
        v_lshl_add_u32 v{vt}, v{vt+1}, 6, v{vt}
        v_lshlrev_b32 v{vt}, {sh}, v{vt}
        v_add_u32 v{vt}, {hx(WS_FO)}, v{vt}
        v_cmp_gt_u32 vcc, 32, v0
        v_cndmask_b32 v{VPL}, v{vt}, v{VPL}, vcc
    """)
    return o


def flag_addr(sidx):
    return L(f"""
        v_lshlrev_b32 v{VFL}, 24, v0
        v_add_u32 v{VFL}, s{sidx}, v{VFL}
    """)


def b_loads(i):
    base, k = ((S_BE, i), (S_BL, i - 7), (S_BO, i - 14))[0 if i < 7 else 1 if i < 14 else 2]
    b = 20 * (i % 12)
    o = L(f"s_add_u32 s{S_BT}, s{base}, {k*5120}")
    if i == 13:
        o = [G(f"s_add_u32 s{S_BT}, s{base}, {k*5120}\ns_cmp_ge_u32 s{S_W}, 2\ns_cselect_b32 s{S_BT}, {hx(OOB)}, s{S_BT}")]
    for c in range(5):
        if c == 4:
            o += L(f"s_add_u32 s{S_BT}, s{S_BT}, 4096")
        o.append(I(f"buffer_load_dwordx4 a[{b+4*c}:{b+4*c+3}], v{VB}, {R(R_WS)}, s{S_BT} offen offset:{(c % 4)*1024} sc1",
                   tag=("B", i)))
    return o


def side_job(s_kb, lab):
    ra, rb, t, u = S_R, S_R + 1, S_R + 2, S_R + 3
    so = S_R + 4
    lb = S_R + 8
    o = L(f"""
        s_cmp_ge_u32 s{s_kb}, 54
        s_cbranch_scc1 {lab}_o
        s_sub_u32 s{t}, s{s_kb}, 28
        s_lshr_b32 s{ra}, s{t}, 1
        s_lshl_b32 s{ra}, s{ra}, 7
        s_and_b32 s{t}, s{t}, 1
        s_lshl_b32 s{t}, s{t}, 5
        s_add_u32 s{ra}, s{ra}, s{t}
        s_add_u32 s{ra}, s{ra}, 64
        s_add_u32 s{rb}, s{ra}, 16
    """)
    o += srd(R_A, P_WD, 1728 * 1280)
    o += L(f"""
        s_branch {lab}_go
        {lab}_o:
        s_sub_u32 s{t}, s{s_kb}, 54
        s_mul_i32 s{u}, s{t}, 52
        s_lshr_b32 s{u}, s{u}, 8
        s_mul_i32 s{ra}, s{u}, 5
        s_sub_u32 s{t}, s{t}, s{ra}
        s_mul_i32 s{u}, s{u}, 160
        s_lshr_b32 s{ra}, s{t}, 1
        s_mul_i32 s{ra}, s{ra}, 80
        s_and_b32 s{rb}, s{t}, 1
        s_lshl_b32 s{rb}, s{rb}, 5
        s_add_u32 s{ra}, s{ra}, s{rb}
        s_add_u32 s{rb}, s{ra}, 16
        s_cmp_eq_u32 s{t}, 4
        s_cselect_b32 s{ra}, 64, s{ra}
        s_cselect_b32 s{rb}, 0x90, s{rb}
        s_add_u32 s{ra}, s{ra}, s{u}
        s_add_u32 s{rb}, s{rb}, s{u}
    """)
    o += srd(R_A, P_WO, 640 * 1280)
    o += L(f"""
        {lab}_go:
        s_mul_i32 s{so}, s{ra}, 1280
        s_add_u32 s{so+1}, s{so}, {8*1280}
        s_mul_i32 s{so+2}, s{rb}, 1280
        s_add_u32 s{so+3}, s{so+2}, {8*1280}
        s_mul_i32 s{lb}, s{S_W}, 40960
    """)
    o += unit_addr(1, 4, lb, 2)
    dm = []
    for l in range(10):
        for j in range(4):
            dm += L(f"s_add_u32 m0, s{lb}, {l*4096 + j*1024 - 128*l}")
            dm.append(I(f"buffer_load_dwordx4 v1, {R(R_A)}, s{so+j} offen offset:{128*l} lds", tag=(lab, "d", l)))
    o2 = L(f"""
        s_mul_i32 s{t}, s{s_kb}, 5120
        s_add_u32 s{t}, s{t}, {hx(WS_B2)}
        v_lshlrev_b32 v8, 4, v0
        v_add_u32 v8, s{t}, v8
    """)
    for l in range(10):
        b = 16 * l
        o2.append(W((lab, "d", l)))
        for c in range(4):
            for h in range(2):
                o2.append(I(f"ds_read_b64_tr_b16 a[{b+4*c+2*h}:{b+4*c+2*h+1}], v{4+c} offset:{l*4096+h*2048}", tag=(lab, "r", l)))
    for l in range(10):
        b = 16 * l
        o2.append(W((lab, "r", l)))
        for c in range(4):
            ct = 4 * l + c
            o2 += L(f"s_mov_b32 s{u}, {hx((ct//5)*NKB*5120 + (ct % 5)*1024)}")
            o2.append(I(f"buffer_store_dwordx4 a[{b+4*c}:{b+4*c+3}], v8, {R(R_WS)}, s{u} offen sc1", tag=(lab, "s")))
    return o, dm, o2


def unit_addr(vd, vtr, slb, vt):
    o = L(f"""
        v_lshrrev_b32 v{vd}, 3, v0
        v_mul_u32_u24 v{vd}, 1280, v{vd}
        v_bfe_u32 v{vt}, v0, 1, 2
        v_bfe_u32 v{vt+1}, v0, 4, 2
        v_xor_b32 v{vt}, v{vt}, v{vt+1}
        v_lshl_add_u32 v{vd}, v{vt}, 5, v{vd}
        v_and_b32 v{vt}, 1, v0
        v_lshl_add_u32 v{vd}, v{vt}, 4, v{vd}
        v_lshrrev_b32 v{vt}, 2, v0
        v_lshlrev_b32 v{vt}, 7, v{vt}
        v_and_b32 v{vt+1}, 3, v0
        v_lshl_add_u32 v{vt}, v{vt+1}, 3, v{vt}
        v_add_u32 v{vt}, s{slb}, v{vt}
        v_bfe_u32 v{vt+1}, v0, 3, 2
    """)
    for c in range(4):
        o += L(f"v_xor_b32 v{vtr+c}, {c}, v{vt+1}\nv_lshl_add_u32 v{vtr+c}, v{vtr+c}, 5, v{vt}")
    return o


def slowjoin():
    o = L(f"SLOWJOIN:\ns_mov_b32 s{S_FO}, {hx(OOB)}")
    o += spin("SJb", poll_ld(VPB), poll_cmp())
    for i in range(12):
        o += b_loads(i)
    o += stamp(9)
    o += spin("SJe", poll_ld(VPE), poll_cmp())
    o += L("s_branch JOIN")
    return o


def helper():
    KB = S_R + 10
    o = L("HELPER:")
    o += L("s_waitcnt lgkmcnt(0)") + (L("s_mov_b32 s3, s42") if STAMP else [])
    o += srd(R_XF, P_X, 2048 * 1280) + srd(R_WS, P_WS, WS_SIZE)
    o += stats_loads()
    o += L(f"s_lshl_b32 s{KB}, s{S_RB}, 2\ns_add_u32 s{KB}, s{KB}, s{S_W}\ns_add_u32 s{KB}, s{KB}, 50")
    a, dm, b = side_job(KB, "HJ")
    o += a + dm[:16] + stats_compute() + dm[16:] + b
    sh = int(math.log2(FS))
    o += p2_setup(10)
    o += L(f"""
        s_lshl_b32 s{S_T}, s{KB}, {4+sh}
        s_add_u32 s{S_T}, s{S_T}, {hx(WS_FB)}
        v_min_u32 v1, 9, v0
        v_lshlrev_b32 v1, {sh}, v1
        s_waitcnt vmcnt(0)
        buffer_store_dword v{VTAG}, v1, {R(R_WS)}, s{S_T} offen sc1
        v_mov_b32 v{VFL}, 0
    """)
    o += stamp(8)
    o += L(f"""
        s_cmp_lg_u32 s{KB}, 50
        s_cbranch_scc1 HG_done
        v_lshlrev_b32 v1, 4, v0
        v_add_u32 v1, {WS_STATS + 4}, v1
        v_add_u32 v2, 4096, v1
        v_add_u32 v3, 8192, v1
        v_add_u32 v4, 12288, v1
    """)
    lds_ = [I(f"buffer_load_dword v{8+i}, v{1 + i//4}, {R(R_WS)}, 0 offen offset:{1024*(i % 4)} sc1") for i in range(16)]
    cm = []
    for i in range(16):
        cm += L(f"v_xor_b32 v{8+i}, v{8+i}, v{VTAG}")
    for i in range(1, 16):
        cm += L(f"v_or_b32 v8, v8, v{8+i}")
    cm += L("v_cmp_ne_u32 vcc, 0, v8")
    o += spin("HG", lds_, cm)
    o += L(f"""
        v_lshlrev_b32 v1, 24, v0
        buffer_store_dword v{VTAG}, v1, {R(R_WS)}, 0 offen sc1
        HG_done:
        s_waitcnt vmcnt(0) lgkmcnt(0)
        s_branch SLOWJOIN
    """)
    return o


def phase2():
    AD, AS = 100, 4
    VW, VR, VXL, VXC, VG = 236, 239, 240, 241, 242
    VT = 1
    R_OUT = R_A
    sAt = S_R
    sA, sT, sRB = S_R + 4, S_R + 5, S_R + 6
    sE, sL, sO = S_R + 8, S_R + 9, S_R + 10
    XST = 122880
    o = L("JOIN:")
    o += stamp(10)
    o += L(f"""
        s_and_b32 s{sRB}, s2, 7
        s_lshl_b32 s{sRB}, s{sRB}, 2
        s_lshr_b32 s{sT}, s2, 6
        s_add_u32 s{sRB}, s{sRB}, s{sT}
        s_mul_i32 s{sA}, s{sRB}, {NKB*4096}
        s_add_u32 s{sA}, s{sA}, {hx(WS_A2)}
        s_mul_i32 s{sE}, s{S_W}, {7*4096}
        s_min_u32 s{sL}, s{sE}, {20*4096}
        s_add_u32 s{sL}, s{sL}, {28*4096}
        s_mul_i32 s{sO}, s{S_W}, {5*4096}
        s_add_u32 s{sO}, s{sO}, {54*4096}
        s_sub_u32 s{sO}, s{sO}, s{sL}
        s_sub_u32 s{sL}, s{sL}, s{sE}
        s_add_u32 s{sA}, s{sA}, s{sE}
    """)
    for t in range(4):
        o += L(f"""
            s_add_u32 s{sT}, s{S_W}, {t}
            s_and_b32 s{sT}, s{sT}, 3
            s_lshl_b32 s{sT}, s{sT}, 10
            s_add_u32 s{sAt+t}, s{sA}, s{sT}
        """)
    bufs = [("a", 240 + 4 * k) for k in range(4)] + [("v", 84 + 4 * k) for k in range(4)] + [("v", 4 + 4 * k) for k in range(20)]
    sp = [("v", 180 + 4 * k) for k in range(14)]
    RG = lambda b: f"{b[0]}[{b[1]}:{b[1]+3}]"
    TO = (1, 2, 3, 0)
    abuf = {}
    lb_ = sp + bufs[8:22]
    ob_ = bufs[:8] + sp[:12]
    for i in range(7):
        for t in range(4):
            abuf[i, t] = bufs[4 * i + t]
    for k, t in enumerate(TO):
        for i in range(7):
            abuf[7 + i, t] = lb_[7 * k + i]
        for i in range(5):
            abuf[14 + i, t] = ob_[5 * k + i]

    def a_load(i, t):
        k = i if i < 7 else i - 7 if i < 14 else i - 14
        r = L(f"s_add_u32 s{sA}, s{sAt+t}, {k*4096}")
        if i == 13:
            r = [G(f"s_add_u32 s{sA}, s{sAt+t}, {k*4096}\ns_cmp_ge_u32 s{S_W}, 2\ns_cselect_b32 s{sA}, {hx(OOB)}, s{sA}")]
        r.append(I(f"buffer_load_dwordx4 {RG(abuf[i, t])}, v{VB}, {R(R_WS)}, s{sA} offen sc1", tag=("A", i, t)))
        return r

    def adv(s):
        return L("\n".join(f"s_add_u32 s{sAt+t}, s{sAt+t}, s{s}" for t in range(4)))

    def mf(acc, i, t, c, first):
        b = 20 * (i % 12)
        d = acc + (t * 5 + c) * 4
        return I(f"v_mfma_f32_16x16x32_bf16 v[{d}:{d+3}], a[{b+4*c}:{b+4*c+3}], {RG(abuf[i, t])}, "
                 + ("0" if first else f"v[{d}:{d+3}]"))

    NP0, NP1 = opt("np0", 8), opt("np1", 12)
    eseq = [(i, t) for i in range(7) for t in range(4)]
    for i, t in eseq[:NP0]:
        o += a_load(i, t)
    su = []
    for t in range(1, 4):
        su += L(f"""
            s_add_u32 s{sT}, s{S_W}, {t}
            s_and_b32 s{sT}, s{sT}, 3
            s_mul_i32 s{sT}, s{sT}, 30720
            s_add_u32 s{sT}, s{sT}, {(t-1)*5120}
            v_add_u32 v{VW+t-1}, s{sT}, v{VB}
        """)
    su += L(f"""
        s_mul_i32 s{sT}, s{S_W}, 30720
        v_add_u32 v{VR}, s{sT}, v{VB}
        s_and_b32 s{sT}, s{sRB}, 15
        s_lshl_b32 s{sT}, s{sT}, 2
        s_add_u32 s{sT}, s{sT}, s{S_W}
        s_mul_i32 s{sT}, s{sT}, {16*2560}
        s_lshr_b32 s{sRB}, s{sRB}, 4
        s_mul_i32 s{sRB}, s{sRB}, 1280
        s_add_u32 s{sT}, s{sT}, s{sRB}
        s_bfe_u32 s{sRB}, s2, 0x30003
        s_mul_i32 s{sRB}, s{sRB}, 160
        s_add_u32 s{sT}, s{sT}, s{sRB}
        s_mul_i32 s{sRB}, s{S_W}, 3072
        s_add_u32 s{sRB}, s{sRB}, {XST}
    """)
    for j in range(3):
        su += L(f"""
            v_add_u32 v{VT}, {64*j}, v0
            v_mul_u32_u24 v{VT+1}, 205, v{VT}
            v_lshrrev_b32 v{VT+1}, 11, v{VT+1}
            v_mul_u32_u24 v{VT+1}, {2560-160}, v{VT+1}
            v_lshl_add_u32 v{VT+1}, v{VT}, 4, v{VT+1}
            v_add_u32 v{VG+j}, s{sT}, v{VT+1}
        """)
    su += L(f"""
        v_and_b32 v{VT}, 32, v0
        v_lshl_add_u32 v{VG+2}, v{VT}, 25, v{VG+2}
        v_and_b32 v{VT}, 15, v0
        v_mul_u32_u24 v{VT}, 160, v{VT}
        v_lshrrev_b32 v{VT+1}, 4, v0
        v_lshl_add_u32 v{VT}, v{VT+1}, 3, v{VT}
        v_add_u32 v{VXL}, s{sRB}, v{VT}
        v_add_u32 v{VXC}, s{sRB}, v{VB}
    """)
    su += srd(R_OUT, P_OUT, 2048 * 1280)
    o += su
    o.append(W("role"))
    o.append(I(f"buffer_store_dword v{VTAG}, v{VFL}, {R(R_WS)}, s{S_FO} offen sc1"))
    o += stamp(11)
    o += L("s_barrier")
    for i, t in eseq[NP0:NP1]:
        o += a_load(i, t)

    mfl, waits = [], []
    end, use, bfree = {}, {}, {}

    def emit(acc, i, t, c, first):
        use.setdefault(("A", i, t), len(mfl))
        use.setdefault(("B", i), len(mfl))
        bfree[("A", i, t)] = bfree[("B", i)] = len(mfl)
        mfl.append(mf(acc, i, t, c, first))

    def need(*tags):
        waits.append(F(W(*tags), len(mfl) - 1, len(mfl) - 1))

    for i in range(7):
        for tt in (0, 2):
            need(("A", i, tt), ("A", i, tt + 1))
            for c in range(5):
                emit(AD, i, tt, c, i == 0)
            for c in range(4, -1, -1):
                emit(AD, i, tt + 1, c, i == 0)
    for k, t in enumerate(TO):
        if k == 0:
            for i in range(7, 14):
                need(*([("A", i, t)] + ([("B", i)] if i >= 12 else [])))
                for c in range(5):
                    emit(AD, i, t, c, False)
                    end["d", t, c] = len(mfl) - 1
        else:
            need(*[("A", i, t) for i in range(7, 14)])
            for c in range(5):
                for i in range(7, 14):
                    emit(AD, i, t, c, False)
                end["d", t, c] = len(mfl) - 1
    gS = len(mfl)
    for k, t in enumerate(TO):
        need(*([("A", i, t) for i in range(14, 19)] + ([("B", i) for i in range(14, 19)] if k == 0 else [])))
        for c in range(5):
            for i in range(14, 19):
                emit(AS, i, t, c, i == 14)
            end["s", t, c] = len(mfl) - 1
    xs_ = []
    for j in range(3):
        xs_ += L(f"s_add_u32 m0, s{sRB}, {1024*j}")
        xs_.append(I(f"buffer_load_dwordx4 v{VG+j}, {R(R_XF)}, 0 offen lds", tag="xst"))
    al = lambda lst: [x for i, t in lst for x in a_load(i, t)]
    lt = lambda k: al([(7 + i, TO[k]) for i in range(7)])
    ot = lambda k: al([(14 + i, TO[k]) for i in range(5)])
    GC = opt("gc", 85)
    q1 = al(eseq[NP1:]) + b_loads(12) + poll_ld(VPL, "pl") + b_loads(13) + xs_ + b_loads(14) + adv(sL)
    q2 = lt(0) + lt(1) + b_loads(15) + lt(2) + b_loads(16) + lt(3) + adv(sO) + b_loads(17) + b_loads(18) + ot(0) + ot(1) + ot(2) + ot(3)
    ld = paced(q1, 0, GC - 1) + [F(i, GC, GC + 1) for i in stamp(12) + check("Pl", poll_ld(VPL), poll_cmp(), "pl") + stamp(13)]
    ld += paced(q2, GC + 2, opt("lend", 320))
    prevb = {}
    for i, t in eseq:
        prevb[abuf[i, t]] = ("A", i, t)
    for f in ld:
        f.hi = f.lo + 3
        tg = f.ins.tag
        if f.ins.kind == "vload" and isinstance(tg, tuple):
            if tg[0] == "B":
                fr = bfree["B", tg[1] - 12]
            else:
                p_ = prevb.get(abuf[tg[1], tg[2]])
                fr = bfree[p_] if p_ and p_ != tg else -1
                prevb[abuf[tg[1], tg[2]]] = tg
            f.lo = max(min(f.lo, use[tg] - opt("lead", 30)), fr, 0)
            f.hi = f.lo + 3
            assert f.hi < use[tg] - 1, (tg, f.lo, use[tg])
    for k in range(1, len(ld)):
        if ld[k].lo < ld[k - 1].lo and not ld[k].ins.scalar:
            pass
    lo = 10 ** 9
    for f in reversed(ld):
        if f.ins.kind == "salu" or f.ins.mn == "glue" and "cbranch" not in f.ins.text:
            f.lo = min(f.lo, lo)
        lo = f.lo
    hi = -1
    for f in ld:
        hi = max(hi, f.lo)
        f.hi = max(f.hi, hi)
    ex = []
    g = 0
    for t in (1, 2, 3):
        for c in range(5):
            d = AD + (t * 5 + c) * 4
            g = max(g + 3, end["d", t, c] + 5)
            ex.append(F(I(f"ds_write_b128 v{VW+t-1}, v[{d}:{d+3}] offset:{c*1024}", tag="xd"), g, g + 2))
    g += 6
    ex.append(F(W("xd", "xst"), g, g))
    ex.append(F(I("s_barrier"), g + 1, g + 1))
    VX = 84
    for tt in range(3):
        for c in range(5):
            d = AD + ((tt + 1) * 5 + c) * 4
            g += 1
            ex.append(F(I(f"ds_read_b128 v[{d}:{d+3}], v{VR} offset:{tt*5120 + c*1024}", tag="rd"), g, g + 4))
    gRD = max(g + 6, gS + 2)
    g = gRD
    for t in (1, 2, 3):
        for c in range(5):
            d = AS + (t * 5 + c) * 4
            g = max(g + 3, end["s", t, c] + 5)
            ex.append(F(I(f"ds_write_b128 v{VW+t-1}, v[{d}:{d+3}] offset:{15360 + c*1024}", tag="xs"), g, g + 2))
    g += 6
    ex.append(F(W("xs"), g, g))
    ex.append(F(I("s_barrier"), g + 1, g + 1))
    last = len(mfl) - 1
    for tt in range(3):
        for c in range(5):
            d = AS + ((tt + 1) * 5 + c) * 4
            ex.append(F(I(f"ds_read_b128 v[{d}:{d+3}], v{VR} offset:{15360 + tt*5120 + c*1024}", tag="rs"), g + 1, last))
    va = []
    for e in range(20):
        va += L(f"""
            v_add_f32 v{AD+20+e}, v{AD+20+e}, v{AD+40+e}
            v_add_f32 v{AD+e}, v{AD+e}, v{AD+60+e}
            v_add_f32 v{AD+e}, v{AD+e}, v{AD+20+e}
        """)
    XP = AD + 60
    for c in range(5):
        va.append(I(f"ds_read_b64 v[{XP+2*c}:{XP+2*c+1}], v{VXL} offset:{c*32}", tag="rx"))
    for e in range(20):
        va += L(f"""
            v_mul_f32 v{AD+20+e}, {hx(f2u(-LOG2E))}, v{AD+e}
            v_exp_f32 v{AD+20+e}, v{AD+20+e}
            v_add_f32 v{AD+20+e}, 1.0, v{AD+20+e}
            v_rcp_f32 v{AD+20+e}, v{AD+20+e}
            v_mul_f32 v{AD+e}, v{AD+e}, v{AD+20+e}
        """)
    va.append(W("rx"))
    for e in range(20):
        va += L(f"v_lshlrev_b32 v{AD+40+e}, 16, v{XP+e//2}" if e % 2 == 0 else f"v_and_b32 v{AD+40+e}, 0xffff0000, v{XP+e//2}")
    vs = ooo([F(W("rd"), gRD, gRD)] + [F(i, gRD, last) for i in va], 40)
    st = {}
    body, _ = schedule(mfl, [waits[1:], ex, ld, vs], st)
    print("P2 late sched", st, file=sys.stderr)
    o += [waits[0].ins] + stamped(body, {140: 14, gS: 15}, 20, 32) + stamp(16)
    o.append(W("rs"))
    pr = lambda x: f"v[{x}:{x+1}]"
    for e in range(0, 20, 2):
        o += L(f"v_pk_add_f32 {pr(AS+20+e)}, {pr(AS+20+e)}, {pr(AS+40+e)}\nv_pk_add_f32 {pr(AS+e)}, {pr(AS+e)}, {pr(AS+60+e)}")
    for c in range(5):
        for e in (4 * c, 4 * c + 2):
            o += L(f"v_pk_add_f32 {pr(AS+e)}, {pr(AS+e)}, {pr(AS+20+e)}")
        for e in (4 * c, 4 * c + 2):
            o += L(f"v_pk_fma_f32 {pr(AS+e)}, {pr(AS+e)}, {pr(AD+e)}, {pr(AD+40+e)}")
        o += L(f"""
            v_cvt_pk_bf16_f32 v{XP+2*c}, v{AS+4*c}, v{AS+4*c+1}
            v_cvt_pk_bf16_f32 v{XP+2*c+1}, v{AS+4*c+2}, v{AS+4*c+3}
        """)
        o.append(I(f"ds_write_b64 v{VXL}, v[{XP+2*c}:{XP+2*c+1}] offset:{c*32}", tag="ow"))
    o.append(W("ow"))
    for j in range(3):
        o.append(I(f"ds_read_b128 v[{180+4*j}:{183+4*j}], v{VXC} offset:{1024*j}", tag=("or", j)))
    for j in range(3):
        o.append(W(("or", j)))
        o.append(I(f"buffer_store_dwordx4 v[{180+4*j}:{183+4*j}], v{VG+j}, {R(R_OUT)}, 0 offen {OPT.get('ofl', '')}"))
    o += stamp_out()
    o += L("s_endpgm")
    return o


def xa(t, ks):
    b = (ks * 3 + t) * 4
    return f"a[{b}:{b+3}]"


def nib(dst, st, seq=S_SEQ):
    return L(f"s_bfe_u32 s{dst}, s{seq + st//8}, {hx((4 << 16) | (4*(st % 8)))}")


def x_addr(vt):
    o = L(f"""
        s_mul_i32 s{S_XL}, s{S_W}, {3*XSLOT}
        s_add_u32 s{S_XL}, s{S_XL}, {XRING}
        s_mul_i32 s{S_T}, s{S_PL0}, 2560
        s_mul_i32 s{S_T+1}, s{S_PAR}, 1280
        s_add_u32 s{S_T}, s{S_T}, s{S_T+1}
        s_mul_i32 s{R_X+2}, s{S_PEND}, 2560
        v_lshrrev_b32 v{vt}, 3, v0
        v_add_u32 v{vt+1}, 1, v{vt}
        v_lshrrev_b32 v{vt+1}, 1, v{vt+1}
        v_xor_b32 v{vt+1}, v{vt+1}, v0
        v_and_b32 v{vt+1}, 7, v{vt+1}
        v_mul_u32_u24 v{vt}, 2560, v{vt}
        v_lshl_add_u32 v{vt}, v{vt+1}, 4, v{vt}
        v_add_u32 v{VXA}, s{S_T}, v{vt}
        v_xor_b32 v{vt}, 64, v{vt}
        v_add_u32 v{vt}, s{S_T}, v{vt}
        v_add_u32 v{VXA+1}, {20480 - 1024}, v{vt}
        v_add_u32 v{VXA+2}, {40960 - 2048}, v{VXA}
        v_add_u32 v{VXA+3}, {61440 - 3072}, v{vt}
        v_add_u32 v{VXA+4}, {81920}, v{VXA}
        v_add_u32 v{VXA+5}, {102400 - 1024}, v{vt}
        v_min_u32 v{VXA}, {hx(OOB)}, v{VXA}
    """)
    return o


def x_setup2(vt):
    o = L(f"""
        v_and_b32 v{vt}, 15, v0
        v_bfe_u32 v{vt+1}, v0, 1, 3
        v_lshrrev_b32 v{vt+2}, 4, v0
        v_xor_b32 v{vt+1}, v{vt+1}, v{vt+2}
        v_lshlrev_b32 v{vt}, 7, v{vt}
        v_lshl_add_u32 v{vt}, v{vt+1}, 4, v{vt}
        v_add_u32 v{VXR}, s{S_XL}, v{vt}
        v_xor_b32 v{vt}, 64, v{vt}
        v_add_u32 v{VXR+1}, s{S_XL}, v{vt}
        v_and_b32 v{vt}, 31, v0
        v_lshlrev_b32 v{vt}, 2, v{vt}
        v_add_u32 v{vt}, s{S_XL}, v{vt}
        v_mov_b32 v{vt+1}, 0x3f803f80
    """)
    for s in range(3):
        o.append(I(f"ds_write_b32 v{vt}, v{vt+1} offset:{s*XSLOT}", tag="ones"))
    return o


def x_dma(st):
    o = nib(S_XO, st) + L(f"s_lshl_b32 s{S_XO}, s{S_XO}, 7")
    base = (st % 3) * XSLOT + 128
    for j in range(6):
        if j % 4 == 0:
            o.insert(len(o) - (1 if j == 0 else 0), I(f"s_add_u32 m0, s{S_XL}, {base + 1024*j}"))
        o.append(I(f"buffer_load_dwordx4 v{VXA+j}, {R(R_X)}, s{S_XO} offen offset:{1024*(j % 4)} lds", tag=("x", st)))
    return o


def x_read(st):
    return [I(f"ds_read_b128 {xa(t, 2*st+s)}, v{VXR+s} offset:{(st % 3)*XSLOT + t*2048}", tag=("xr", st))
            for s in range(2) for t in range(3)]


def gemm_streams(nst, ng, wdma, trread, mfma, extra, first):
    per = ng * 6
    mf, waits, tr, dma = [], [], [], []
    total = nst * ng
    pre = [W(("x", 0), "ones")] + x_read(0) + [W(("w", 0)), I("s_barrier")]
    pre += trread(0, 0, 0) + trread(0, 1, 1) + [W(("t", 0, 0), ("xr", 0))]
    bar = {0: -1}

    def window(s, lo, hi):
        x = list(first.get(s, []))
        if s + 2 < 10:
            x += x_dma(s + 2)
        if s + 2 < nst:
            x += wdma(s + 2)
        if s + 2 >= 10:
            hi = lo + (hi - lo) // 2
        return paced(x, lo, hi) + extra.get(s, [])

    dma += window(0, 0, (ng - 2) * 6 - 3)
    for k in range(total):
        st, g = divmod(k, ng)
        g0 = len(mf)
        mf += mfma(st, g, k % 3)
        if k + 1 < total:
            s1, g1 = divmod(k + 1, ng)
            need = [("t", s1, g1)]
            if g1 == 0 and s1 < 10:
                need.append(("xr", s1))
            waits.append(F(W(*need), g0 + 5, g0 + 5))
        if k + 2 < total:
            s2, g2 = divmod(k + 2, ng)
            rd = trread(s2, g2, (k + 2) % 3)
            if g2 == 0:
                need = [("w", s2)] + ([("x", s2)] if s2 < 10 else [])
                tr.append(F(W(*need), g0 - 2, g0 - 2))
                tr.append(F(I("s_barrier"), g0, g0))
                bar[s2] = g0
                if s2 < 10:
                    xr = x_read(s2)
                    rd = [rd[0], xr[0], rd[1], xr[1], rd[2], xr[2], rd[3], xr[3], xr[4], xr[5]]
                    tr += [F(r, g0 + i // 2, g0 + 5) for i, r in enumerate(rd)]
                else:
                    tr += [F(r, g0 + i, g0 + 4) for i, r in enumerate(rd)]
                dma += window(s2, g0 + (5 if s2 < 10 else 1), g0 + per - 3)
            else:
                tr += [F(r, g0 + i, g0 + (3 if g2 == ng - 1 else 4)) for i, r in enumerate(rd)]
    return pre, mf, waits, tr, dma, bar


def pf(va, r, lane0, n):
    i = I(f"buffer_load_dword v246, v{va}, {R(r)}, 0 offen")
    i.wr = []
    i.text = f"s_bfm_b64 exec, {n}, {lane0}\n  {i.text}\n  s_mov_b64 exec, -1"
    return [i] if opt("pf", 1) else []


def pf_addr(vd, sq, step, n0, mg, rowk, sh_, add1, vt):
    if not opt("pf", 1):
        return []
    return L(f"""
        v_and_b32 v{vt}, 31, v0
        v_mul_u32_u24 v{vt}, {step}, v{vt}
        v_add_u32 v{vt}, s{sq}, v{vt}
        v_lshrrev_b32 v{vt+1}, 5, v0
        v_mul_i32_i24 v{vt+2}, {-n0}, v{vt+1}
        v_add3_u32 v{vt}, v{vt}, v{vt+2}, 0
        v_add_u32 v{vt}, {n0}, v{vt}
        v_mul_i32_i24 v{vt+2}, {mg[1]-mg[0]}, v{vt+1}
        v_add_u32 v{vt+2}, {mg[0]}, v{vt+2}
        v_mul_u32_u24 v{vt+2}, v{vt+2}, v{vt}
        v_lshrrev_b32 v{vt+2}, 18, v{vt+2}
        v_mul_i32_i24 v{vd}, {rowk[1]-rowk[0]}, v{vt+1}
        v_add_u32 v{vd}, {rowk[0]}, v{vd}
        v_mul_i32_i24 v{vd}, v{vd}, v{vt+2}
        v_lshl_add_u32 v{vd}, v{vt}, {sh_}, v{vd}
        v_mul_u32_u24 v{vt+1}, {add1}, v{vt+1}
        v_add_u32 v{vd}, v{vd}, v{vt+1}
    """)


PRO = OPT.get("pro", "x0,w0,st,pf,x1,w1").split(",")


def prologue(wdma, pfi):
    d = {"x0": x_dma(0), "w0": wdma(0), "st": stats_loads(), "pf": pfi, "x1": x_dma(1), "w1": wdma(1)}
    return [i for k in PRO[(1 if PRO[0] == "x0" else 0):] for i in d[k]]


def a2_addr(vd, t, vt, lo_s=None):
    return L(f"""
        v_and_b32 v{vt}, 15, v0
        v_add_u32 v{vt+1}, {16*t - 1}, v{vt}
        v_add_u32 v{vt+1}, s{S_PL0}, v{vt+1}
        v_lshrrev_b32 v{vt+2}, 6, v{vt+1}
        v_mul_u32_u24 v{vt+2}, {NKB*4096}, v{vt+2}
        v_bfe_u32 v{vt+3}, v{vt+1}, 4, 2
        v_lshl_add_u32 v{vt+2}, v{vt+3}, 10, v{vt+2}
        v_and_b32 v{vt+3}, 15, v{vt+1}
        v_lshl_add_u32 v{vt+2}, v{vt+3}, 4, v{vt+2}
        v_lshrrev_b32 v{vt+3}, 4, v0
        v_lshl_add_u32 v{vt+2}, v{vt+3}, 8, v{vt+2}
        v_mov_b32 v{vt+3}, {hx(OOB)}
        v_cmp_gt_i32 vcc, s{S_PEND}, v{vt+1}
        v_cndmask_b32 v{vd}, v{vt+3}, v{vt+2}, vcc
        v_cmp_le_i32 vcc, s{lo_s}, v{vt+1}
        v_cndmask_b32 v{vd}, v{vt+3}, v{vd}, vcc
    """)


F_VWA = 208
F_VPF, F_RPF = 121, S_R + 18
PFW = [int(x) for x in OPT.get("pfw", "0,2,4,6").split(",")]
F_UO, F_US, F_UF, F_WB2 = S_R + 4, S_R + 5, S_R + 6, S_R + 7


def ffn_wdma(st):
    r = nib(S_WO, st % 10) + L(f"""
        s_mul_i32 s{S_WO}, s{S_WO}, {64*3456}
        s_add_u32 m0, s{S_WL}, {(st % 4)*16384}
        s_add_u32 s{S_WO}, s{S_WO}, s{S_WB if st < 10 else F_WB2}
    """)
    for j in range(4):
        rr = R_A if j < 2 else R_B
        r.append(I(f"buffer_load_dwordx4 v{F_VWA + (j & 1)}, {R(rr)}, s{S_WO} offen offset:{1024*j} lds", tag=("w", st)))
    return r


def ffn_pro():
    VT, VWA = 224, F_VWA
    o = L(f"""
        s_lshl_b32 s{S_WL}, s{S_W}, 12
        s_mul_i32 s{S_WB}, s{S_W}, {16*3456}
        s_lshl_b32 s{S_T}, s{S_CG}, 8
        s_add_u32 s{S_WB}, s{S_WB}, s{S_T}
        v_lshrrev_b32 v{VT}, 3, v0
        v_mul_u32_u24 v{VT}, 3456, v{VT}
        v_and_b32 v{VT+1}, 1, v0
        v_lshl_add_u32 v{VT}, v{VT+1}, 4, v{VT}
        v_bfe_u32 v{VT+1}, v0, 1, 2
        v_bfe_u32 v{VT+2}, v0, 4, 1
        v_xor_b32 v{VT+1}, v{VT+1}, v{VT+2}
        v_lshl_add_u32 v{VWA}, v{VT+1}, 5, v{VT}
        v_xor_b32 v{VWA+1}, 64, v{VWA}
        v_add_u32 v{VWA+1}, {8*3456 - 1024}, v{VWA+1}
    """)
    o += srd(R_A, P_WG, 640 * 3456) + srd(R_B, P_WU, 640 * 3456, 2048)
    pfi = L(f"""
        s_cmp_lt_u32 s{S_W}, 2
        s_cselect_b64 s[{F_RPF}:{F_RPF+1}], s[{P_WG}:{P_WG+1}], s[{P_WU}:{P_WU+1}]
        s_cselect_b32 s{S_T}, 0, 288
        s_sub_u32 s{S_T}, s{F_UF}, s{S_T}
        s_mov_b32 s{F_RPF+2}, {640*3456}
        s_mov_b32 s{F_RPF+3}, 0x20000
    """) + pf_addr(F_VPF, S_T, 288, 0, (18725, 20165), (-128, 128), 8, 128, VT) + pf(F_VPF, F_RPF, 3, 7)
    o += prologue(ffn_wdma, pfi)
    return o


def ffn():
    ACC = [4, 100]
    VWF, VTR, VHS, VC, VT = 196, 204, 1, 212, 224
    S_KB = S_R
    sh = int(math.log2(FS))
    acc = lambda p, gu, c, t: ACC[p] + (gu * 4 + c) * 12 + t * 4
    wbuf = lambda b: ("a", 240 + 8 * b) if b < 2 else ("v", VWF)
    o = L("FFN:")
    o += x_setup2(VT)
    o += L(f"""
        v_lshrrev_b32 v{VT}, 5, v0
        v_lshlrev_b32 v{VT}, 12, v{VT}
        v_bfe_u32 v{VT+1}, v0, 4, 1
        v_lshl_add_u32 v{VT}, v{VT+1}, 10, v{VT}
        v_bfe_u32 v{VT+1}, v0, 2, 2
        v_lshl_add_u32 v{VT}, v{VT+1}, 7, v{VT}
        v_and_b32 v{VT+1}, 3, v0
        v_lshl_add_u32 v{VT}, v{VT+1}, 3, v{VT}
        v_bfe_u32 v{VT+1}, v0, 3, 2
    """)
    for c in range(4):
        o += L(f"v_xor_b32 v{VTR+c}, {c}, v{VT+1}\nv_lshl_add_u32 v{VTR+c}, v{VTR+c}, 5, v{VT}")

    def trread(st, g, b):
        c, gu = g >> 1, g & 1
        k, r0 = wbuf(b)
        return [I(f"ds_read_b64_tr_b16 {k}[{r0+4*s+2*h}:{r0+4*s+2*h+1}], v{VTR+c} "
                  f"offset:{(st % 4)*16384 + s*8192 + gu*2048 + h*512}", tag=("t", st, g))
                for s in range(2) for h in range(2)]

    def mfma(st, g, b):
        c, gu = g >> 1, g & 1
        p, sl = divmod(st, 10)
        k, r0 = wbuf(b)
        r = []
        for t in range(3):
            d = acc(p, gu, c, t)
            for s in range(2):
                cin = "0" if (sl == 0 and s == 0) else f"v[{d}:{d+3}]"
                r.append(I(f"v_mfma_f32_16x16x32_bf16 v[{d}:{d+3}], {k}[{r0+4*s}:{r0+4*s+3}], {xa(t, 2*sl+s)}, {cin}"))
        return r

    UD, UA, UT = 100, 116, 117
    R_U = S_R + 14
    ULB, UCT, UTm = S_R + 8, S_R + 9, S_R + 10
    T = S_T
    us = L(f"""
        s_mul_i32 s{T}, s{F_UF}, 205
        s_lshr_b32 s{T}, s{T}, 11
        s_mul_i32 s{T+1}, s{T}, 10
        s_sub_u32 s{T+1}, s{F_UF}, s{T+1}
    """)
    us += [G(f"s_cmp_ge_u32 s{T}, 28\ns_cselect_b32 s{T+2}, 28, 0\ns_cselect_b32 s{T+3}, 64, 0")]
    us += L(f"""
        s_sub_u32 s{T+2}, s{T}, s{T+2}
        s_lshr_b32 s{F_UO}, s{T+2}, 1
        s_lshl_b32 s{F_UO}, s{F_UO}, 7
        s_and_b32 s{T+2}, s{T+2}, 1
        s_lshl_b32 s{T+2}, s{T+2}, 5
        s_add_u32 s{F_UO}, s{F_UO}, s{T+2}
        s_add_u32 s{F_UO}, s{F_UO}, s{T+3}
        s_mul_i32 s{F_UO}, s{F_UO}, 1280
        s_lshl_b32 s{T+2}, s{T+1}, 7
        s_add_u32 s{F_UO}, s{F_UO}, s{T+2}
        s_lshl_b32 s{UCT}, s{T+1}, 2
        s_mul_i32 s{F_US}, s{T}, 5120
        s_lshl_b32 s{T+2}, s{T+1}, 12
        s_add_u32 s{F_US}, s{F_US}, s{T+2}
        s_add_u32 s{F_US}, s{F_US}, {hx(WS_B2)}
        s_lshl_b32 s{T}, s{T}, 4
        s_add_u32 s{T}, s{T}, s{T+1}
        s_lshl_b32 s{T}, s{T}, {sh}
        s_add_u32 s{T}, s{T}, {hx(WS_FB)}
    """)
    us += [G(f"s_cmp_ge_u32 s{F_UF}, {NUNIT}\ns_cselect_b32 s{F_UO}, {hx(OOB)}, s{F_UO}\n"
             f"s_cselect_b32 s{F_US}, {hx(OOB)}, s{F_US}\ns_cselect_b32 s{F_UF}, {hx(OOB)}, s{T}")]
    us += L(f"s_add_u32 s{ULB}, s{S_WL}, 65536")
    us += srd(R_U, P_WD, 1728 * 1280)
    us += unit_addr(UA, UT, ULB, VT)
    us += [G(f"s_add_u32 s{F_WB2}, s{S_WB}, 128\ns_cmp_eq_u32 s{S_CG}, 13\ns_cselect_b32 s{F_WB2}, {hx(OOB)}, s{F_WB2}")]
    ud = []
    for j in range(4):
        ud += L(f"s_add_u32 m0, s{ULB}, {1024*j}\ns_add_u32 s{UTm}, s{F_UO}, {10240*j}")
        ud.append(I(f"buffer_load_dwordx4 v{UA}, {R(R_U)}, s{UTm} offen lds", tag="ud"))
    ur = [W("ud")]
    for c in range(4):
        for h in range(2):
            ur.append(I(f"ds_read_b64_tr_b16 v[{UD+4*c+2*h}:{UD+4*c+2*h+1}], v{UT+c} offset:{h*2048}", tag="ur"))
    ust = [W("ur")]
    for c in range(4):
        ust += L(f"""
            s_add_u32 s{T}, s{UCT}, {c}
            s_mul_i32 s{T}, s{T}, 52
            s_lshr_b32 s{T}, s{T}, 8
            s_mul_i32 s{T}, s{T}, {(NKB-1)*5120}
            s_add_u32 s{T}, s{T}, s{F_US}
        """)
        ust.append(I(f"buffer_store_dwordx4 v[{UD+4*c}:{UD+4*c+3}], v{VB}, {R(R_WS)}, s{T} offen offset:{1024*c} sc1", tag="us"))
    ufl = L(f"v_lshlrev_b32 v{VPD}, 24, v0") + [W("us"), I(f"buffer_store_dword v{VTAG}, v{VPD}, {R(R_WS)}, s{F_UF} offen sc1")]

    UW = opt("uw", 5)
    gU = (UW + 1) * 48 - 12 - 3
    extra = {UW: [F(i, gU - 8, gU) for i in ud]}
    first = {w: pf(F_VPF, F_RPF, *x) for w, x in zip(PFW, ((10, 9), (19, 13), (32, 16), (48, 13)))}
    pre, mf, waits, tr, dma, bar = gemm_streams(20, 8, ffn_wdma, trread, mfma, extra, first)

    cs = []
    for t in range(3):
        cs += a2_addr(VHS + t, t, VT, S_PL0)
        cs += L(f"""
            v_max_i32 v{VT+1}, 0, v{VT+1}
            v_min_u32 v{VT+1}, 0x3ff, v{VT+1}
            v_lshlrev_b32 v{VT+5+t}, 4, v{VT+1}
        """)
    cs += L(f"""
        s_mul_i32 s{S_KB}, s{S_PAR}, {16*NKB*4096}
        s_lshl_b32 s{T}, s{S_CG}, 13
        s_add_u32 s{S_KB}, s{S_KB}, s{T}
        s_add_u32 s{S_KB}, s{S_KB}, {hx(WS_A2)}
        s_add_u32 s{S_KB+1}, s{S_KB}, 4096
        s_add_u32 s{S_KB+2}, s{S_KB}, {28*4096}
        s_add_u32 s{S_KB+3}, s{S_KB}, {29*4096}
        s_lshl_b32 s{T}, s{S_CG}, 6
        s_lshl_b32 s{T+1}, s{S_RB}, 2
        s_add_u32 s{T}, s{T}, s{T+1}
        s_add_u32 s{T}, s{T}, s{S_W}
        s_lshl_b32 s{T}, s{T}, {sh}
        s_add_u32 s{T}, s{T}, {hx(WS_FH)}
        s_mov_b32 s{S_FO}, {16*64*FS}
    """) + flag_addr(T)
    SSO = S_R + 11
    cs += L(f"s_lshl_b32 s{SSO}, s{S_PAR}, 14\ns_add_u32 s{SSO}, s{SSO}, {WS_STATS}")
    sl = [I(f"buffer_load_dwordx4 v[{VC+4*t}:{VC+4*t+3}], v{VT+5+t}, {R(R_WS)}, s{SSO} offen sc1", tag="stat") for t in range(3)]
    cm = []
    for t in range(3):
        cm += L(f"v_xor_b32 v{VC+4*t+1}, v{VC+4*t+1}, v{VTAG}\nv_xor_b32 v{VC+4*t+3}, v{VC+4*t+3}, v{VTAG}")
    cm += L(f"""
        v_or3_b32 v{VT}, v{VC+1}, v{VC+3}, v{VC+5}
        v_or3_b32 v{VT}, v{VT}, v{VC+7}, v{VC+9}
        v_or_b32 v{VT}, v{VT}, v{VC+11}
        v_cmp_ne_u32 vcc, 0, v{VT}
    """)
    c2 = check("Fs", sl, cm, "stat")
    for t in range(3):
        b = VC + 4 * t
        c2 += L(f"""
            v_rcp_f32 v{b+1}, v{b+2}
            v_mul_f32 v{b+3}, v{b+2}, v{b+2}
            v_mul_f32 v{b+2}, v{b+1}, v{b+1}
            v_mul_f32 v{b+2}, v{b+2}, v{b+1}
            v_mul_f32 v{b+1}, {hx(f2u(GK1))}, v{b+1}
            v_mul_f32 v{b+2}, {hx(f2u(GK2))}, v{b+2}
        """)

    def epi(p, packed):
        r = []
        q = 0
        dp = "row_newbcast:0 row_mask:0xf bank_mask:0xf"
        pr = lambda x: f"v[{x}:{x+1}]"
        for hb in range(2):
            for t in (1, 2, 0):
                b = VC + 4 * t
                dst = acc(p, 1, 2 * hb, t)
                for ci in range(2):
                    c = 2 * hb + ci
                    Gt, U = acc(p, 0, c, t), acc(p, 1, c, t)
                    G0, U0 = acc(p, 0, c, 0), acc(p, 1, c, 0)
                    tm = VT + 4 * (q % 4)
                    q += 1
                    E4, E2 = range(4), (0, 2)
                    r += [I(f"v_fmac_f32_dpp v{Gt+e}, v{G0+e}, v{b} {dp}") for e in E4]
                    r += [I(f"v_fmac_f32_dpp v{U+e}, v{U0+e}, v{b} {dp}") for e in E4]
                    if not packed:
                        r += [I(f"v_mul_f32 v{tm+e}, v{Gt+e}, v{Gt+e}") for e in E4]
                        r += [I(f"v_fma_f32 v{tm+e}, v{tm+e}, v{b+2}, v{b+1}") for e in E4]
                        r += [I(f"v_mul_f32 v{tm+e}, v{tm+e}, v{Gt+e}") for e in E4]
                        r += [I(f"v_exp_f32 v{tm+e}, v{tm+e}") for e in E4]
                        r += [I(f"v_mul_f32 v{Gt+e}, v{Gt+e}, v{U+e}") for e in E4]
                        r += [I(f"v_fma_f32 v{tm+e}, v{tm+e}, v{b+3}, v{b+3}") for e in E4]
                        r += [I(f"v_rcp_f32 v{tm+e}, v{tm+e}") for e in E4]
                        r += [I(f"v_mul_f32 v{Gt+e}, v{Gt+e}, v{tm+e}") for e in E4]
                    else:
                        r += [I(f"v_pk_mul_f32 {pr(tm+e)}, {pr(Gt+e)}, {pr(Gt+e)}") for e in E2]
                        r += [I(f"v_pk_fma_f32 {pr(tm+e)}, {pr(tm+e)}, {pr(b+2)}, {pr(b)} op_sel:[0,0,1] op_sel_hi:[1,0,1]") for e in E2]
                        r += [I(f"v_pk_mul_f32 {pr(tm+e)}, {pr(tm+e)}, {pr(Gt+e)}") for e in E2]
                        r += [I(f"v_exp_f32 v{tm+e}, v{tm+e}") for e in E4]
                        r += [I(f"v_pk_mul_f32 {pr(Gt+e)}, {pr(Gt+e)}, {pr(U+e)}") for e in E2]
                        r += [I(f"v_pk_fma_f32 {pr(tm+e)}, {pr(tm+e)}, {pr(b+2)}, {pr(b+2)} op_sel:[0,1,1] op_sel_hi:[1,1,1]") for e in E2]
                        r += [I(f"v_rcp_f32 v{tm+e}, v{tm+e}") for e in (0, 2, 1, 3)]
                        r += [I(f"v_pk_mul_f32 {pr(Gt+e)}, {pr(Gt+e)}, {pr(tm+e)}") for e in E2]
                    r += L(f"v_cvt_pk_bf16_f32 v{dst+2*ci}, v{Gt}, v{Gt+1}\nv_cvt_pk_bf16_f32 v{dst+2*ci+1}, v{Gt+2}, v{Gt+3}")
                r.append(I(f"buffer_store_dwordx4 v[{dst}:{dst+3}], v{VHS+t}, {R(R_WS)}, s{S_KB+2*p+hb} offen sc1", tag=("h", p)))
        return r

    eflag = I(f"buffer_store_dword v{VTAG}, v{VFL}, {R(R_WS)}, 0 offen sc1")
    misc = paced(stats_compute(), 34, 190, False) + paced(us, 190, gU - 12) + paced(cs, gU - 30, gU + 50, False)
    misc += [F(i, gU + 50) for i in sl] + paced(p2_setup(VT), gU + 50, gU + 100, False)
    misc += paced(ur, gU + 100, gU + 112, False) + paced(ust, gU + 120, gU + 150, False)
    GE = 446
    misc += paced(c2, GE - 34, GE - 2)
    misc.append(F(G(f"s_cmp_eq_u32 s{S_CG}, 13\ns_cbranch_scc1 SINGLE"), GE - 1, GE - 1))
    gF = opt("fuf", 490)
    misc += [F(i, gF, gF + 4) for i in ufl]
    gB = opt("fgb", 570)
    misc += [F(i, gB, gB + 4) for i in poll_ld(VPB, "pb")]
    misc += [F(i, gB + 46, gB + 50) for i in check("Fb", poll_ld(VPB), poll_cmp(), "pb")]
    NB = opt("fnb", 9)
    bl = []
    for i in range(NB):
        bl += b_loads(i)
    bs = paced(bl, gB + 52, 958)
    for f in bs:
        if f.ins.kind == "vload":
            f.lo = max(f.lo, 480 + 48 * (f.ins.wr[-1][1] // 24 + 1))
        f.hi = min(959, f.lo + 4)
    misc += bs
    FE1 = opt("fe1", 910)
    e1 = epi(0, False)
    ep = paced(e1, GE, FE1)
    for f in ep:
        f.hi = min(FE1, f.lo + opt("fslack", 24))
        f.lo = max(GE, f.lo - 40)
        if any(r[0] == "v" and (r[1] - 4) % 48 >= 12 and r[1] < 100 for r in f.ins.rd if r[1] != 0 and isinstance(r[1], int) and r[1] > 3):
            f.lo = max(f.lo, GE + 12)
    st = {}
    body, left = schedule(mf, [waits, tr, dma, misc, ooo(ep, 28)], st)
    print("FFN sched", st, file=sys.stderr)
    ib = next(k for k, i in enumerate(body) if "SINGLE" in i.text)
    il = [k for k, i in enumerate(body) if i.kind == "mfma"][479]
    e1s = set(id(i) for i in e1)
    single = L("SINGLE:") + [i for i in body[ib + 1:il + 1] if id(i) not in e1s] + L("s_waitcnt vmcnt(0) lgkmcnt(0)")
    single += [ufl[0], ufl[2]] + epi(0, True) + L("s_waitcnt vmcnt(0)") + [eflag] + stamp(8) + L("s_branch SLOWJOIN")
    SINGLE[:] = [o + pre + body[:ib + 1] + single]
    body = stamped(body, {96: 4, 240: 5, 480: 6, 720: 7}, 48, 2)
    o += stamp(2) + pre + stamp(3) + body + stamp(8)
    tl = epi(1, True)
    n = len(tl)
    ins = {opt("fef", 5) * n // 100: [W(("h", 0)), eflag]}
    rb = []
    for i in range(NB, 12):
        rb += b_loads(i)
    cur = []
    k = 0
    nld = sum(1 for i in rb if i.kind == "vload")
    for i in rb:
        cur.append(i)
        if i.kind == "vload":
            ins.setdefault(4 + k * (n * 6 // 10) // max(nld, 1), []).extend(cur)
            cur = []
            k += 1
    ins.setdefault(n * 75 // 100, []).extend(poll_ld(VPE, "pe"))
    for k, i in enumerate(tl):
        o += ins.get(k, [])
        o.append(i)
    o += stamp(9)
    o += check("Fe", poll_ld(VPE), poll_cmp(), "pe", True)
    return o


class Pool:
    def __init__(self, regs):
        self.free = set(regs)

    def get(self, n, align=None):
        align = align or (2 if n > 1 else 1)
        for b in sorted(self.free):
            if b % align == 0 and all(b + i in self.free for i in range(n)):
                for i in range(n):
                    self.free.remove(b + i)
                return b
        raise ValueError("out of registers for %d (free %s)" % (n, sorted(self.free)))

    def put(self, b, n):
        for i in range(n):
            assert b + i not in self.free
            self.free.add(b + i)


def lanemask(f):
    m = 0
    for l in range(64):
        if f(l >> 4, l & 15):
            m |= 1 << l
    return m


A_VWA = 194
A_WB2, A_SEQB = S_R + 3, S_R + 4


def att_wdma(st):
    r = (nib(S_WO, st) if st < 10 else nib(S_WO, 2 * (st - 10), A_SEQB)) + L(f"""
        s_mul_i32 s{S_WO}, s{S_WO}, {64*3840}
        s_add_u32 m0, s{S_WL}, {(st % 4)*20480}
        s_add_u32 s{S_WO}, s{S_WO}, s{S_WB if st < 10 else A_WB2}
    """)
    for j in range(5):
        if j == 4:
            r += L(f"s_add_u32 m0, s{S_WL}, {(st % 4)*20480 + 4096}")
        r.append(I(f"buffer_load_dwordx4 v{A_VWA+j}, {R(R_A)}, s{S_WO} offen offset:{1024*(j % 4)} lds", tag=("w", st)))
    return r


def att_pro():
    VT = 216
    o = L(f"""
        s_mul_i32 s{S_WL}, s{S_W}, 5120
        s_and_b32 s{S_T}, s{S_W}, 1
        s_mul_i32 s{A_WB2}, s{S_T}, {32*3840}
        s_mul_i32 s{S_T}, s{S_CG}, 160
        s_add_u32 s{A_WB2}, s{A_WB2}, s{S_T}
        s_cmp_lt_u32 s{S_W}, 2
        s_cselect_b32 s{S_T}, 1280, 0
        s_add_u32 s{S_WB}, s{A_WB2}, s{S_T}
        s_movk_i32 s{S_T}, 3680
        s_movk_i32 s{S_T+1}, 15360
        v_mul_u32_u24 v{VT+3}, 205, v0
        v_lshlrev_b32 v{VT+4}, 4, v0
    """)
    o += srd(R_A, P_QKV, 640 * 3840)
    for j in range(5):
        o += L(f"""
            v_add_u32 v{VT}, {64*j*205}, v{VT+3}
            v_bfe_u32 v{VT+1}, v{VT}, 13, 1
            v_bfe_u32 v{VT+2}, v{VT}, 14, 1
            v_lshrrev_b32 v{VT}, 11, v{VT}
            v_sub_u32 v{VT+1}, v{VT+1}, v{VT+2}
            v_mad_u32_u24 v{VT}, v{VT}, s{S_T}, v{VT+4}
            v_mad_i32_i24 v{A_VWA+j}, v{VT+1}, s{S_T+1}, v{VT}
        """)
    o += L(f"v_add_u32 v{A_VWA+4}, 4096, v{A_VWA+4}")
    pfi = L(f"s_lshl_b32 s{S_T}, s2, 2\ns_add_u32 s{S_T}, s{S_T}, s{S_W}")
    pfi += pf_addr(199, S_T, 384, 768, (13108, 26215), (1280, 2560), 7, 2560, VT) + pf(199, R_A, 1, 8)
    o += prologue(att_wdma, pfi)
    return o


def att():
    AK, AQ, AV = 4, 64, 124
    VWF, VTR, VOS, VNM, VPM, VL = 184, 192, 1, 200, 206, 210
    VT = 168
    S_HG = S_CG
    S_OB = S_R
    S_GM = S_R + 6
    S_SEL = S_R + 12
    S_M = S_R + 28
    sh = int(math.log2(FS))
    STL = 157184
    wbuf = lambda b: ("a", 240 + 8 * b) if b < 2 else ("v", VWF)
    o = L("ATT:")
    o += x_setup2(VT)
    o += L(f"""
        v_lshrrev_b32 v{VT}, 5, v0
        v_lshlrev_b32 v{VT}, 4, v{VT}
        v_bfe_u32 v{VT+1}, v0, 2, 3
        v_add_u32 v{VT}, v{VT}, v{VT+1}
        v_mul_u32_u24 v{VT}, 160, v{VT}
        v_and_b32 v{VT+1}, 3, v0
        v_lshl_add_u32 v{VTR}, v{VT+1}, 3, v{VT}
        v_add_u32 v{VTR+1}, 40960, v{VTR}
    """)

    def gsc(st, g):
        return (g // 5, g % 5) if st < 10 else (g & 1, g >> 1)

    def trread(st, g, b):
        sec, c = gsc(st, g)
        k, r0 = wbuf(b)
        sl = st % 4
        return [I(f"ds_read_b64_tr_b16 {k}[{r0+4*s+2*h}:{r0+4*s+2*h+1}], v{VTR + (sl >> 1)} "
                  f"offset:{(sl & 1)*20480 + sec*10240 + (32*s + 8*h)*160 + c*32}", tag=("t", st, g))
                for s in range(2) for h in range(2)]

    def mfma(st, g, b):
        sec, c = gsc(st, g)
        k, r0 = wbuf(b)
        r = []
        for t in range(3):
            for s in range(2):
                wf = f"{k}[{r0+4*s}:{r0+4*s+3}]"
                if st < 10:
                    d = (AK, AQ)[sec] + t * 20 + c * 4
                    ks = 2 * st + s
                    ab = f"{wf}, {xa(t, ks)}"
                else:
                    d = AV + c * 12 + t * 4
                    ks = 4 * (st - 10) + 2 * sec + s
                    ab = f"{xa(t, ks)}, {wf}"
                cin = "0" if ks == 0 else f"v[{d}:{d+3}]"
                r.append(I(f"v_mfma_f32_16x16x32_bf16 v[{d}:{d+3}], {ab}, {cin}"))
        return r

    first = {w: pf(199, R_A, *x) for w, x in zip(PFW, ((9, 10), (19, 13), (32, 17)))}
    pre, mf, waits, tr, dma, bar = gemm_streams(15, 10, att_wdma, trread, mfma, {}, first)
    T = S_T
    pool = Pool([199] + list(range(213, 248)))
    cs = L(f"""
        s_add_u32 s{A_WB2}, s{A_WB2}, 2560
        s_and_b32 s{T}, s{S_W}, 2
        s_lshl_b32 s{T}, s{T}, 1
        s_lshr_b64 s[{A_SEQB}:{A_SEQB+1}], s[{S_SEQ}:{S_SEQ+1}], s{T}
        s_mul_i32 s{T+1}, s{S_RB}, 171
        s_max_i32 s{T+1}, s{T+1}, s{S_PL0}
    """)
    for t in range(3):
        cs += a2_addr(VOS + t, t, VT, T + 1)
    cs += L(f"""
        s_lshr_b32 s{S_OB}, s{S_HG}, 1
        s_mul_i32 s{S_OB}, s{S_OB}, {5*4096}
        s_mul_i32 s{T}, s{S_PAR}, {16*NKB*4096}
        s_add_u32 s{S_OB}, s{S_OB}, s{T}
        s_add_u32 s{S_OB}, s{S_OB}, {hx(WS_A2 + 54*4096)}
        s_and_b32 s{T+1}, s{S_HG}, 1
        s_lshl_b32 s{T+2}, s{T+1}, 3
        s_add_u32 s{S_OB+2}, s{S_OB}, {4*4096}
        s_add_u32 s{S_OB+2}, s{S_OB+2}, s{T+2}
        s_lshl_b32 s{T+1}, s{T+1}, 13
        s_add_u32 s{S_OB}, s{S_OB}, s{T+1}
        s_add_u32 s{S_OB+1}, s{S_OB}, 4096
        s_lshl_b32 s{T}, s{S_HG}, 6
        s_mul_i32 s{T+1}, s{S_PAR}, 24
        s_add_u32 s{T}, s{T}, s{T+1}
        s_lshl_b32 s{T+1}, s{S_RB}, 2
        s_add_u32 s{T}, s{T}, s{T+1}
        s_add_u32 s{T}, s{T}, s{S_W}
        s_lshl_b32 s{T}, s{T}, {sh}
        s_add_u32 s{T}, s{T}, {hx(WS_FO)}
        s_mov_b32 s{S_FO}, 0
    """) + flag_addr(T)
    prevf = lambda geom, r: (lambda g, q: 4 * g + r >= q + (8 if geom == 0 else 9))
    curf = lambda geom, r: (lambda g, q: 0 <= q - (4 * g + r) <= 7 and (geom == 1 or 4 * g + r >= 1))
    smov = lambda s, m: L(f"s_mov_b32 s{s}, {hx(m)}\ns_mov_b32 s{s+1}, {hx(m >> 32)}")
    for geom in range(2):
        for r in range(4):
            cs += smov(S_SEL + 2 * (4 * geom + r), lanemask(prevf(geom, r)))
    for k in range(3):
        cs += smov(S_GM + 2 * k, lanemask(lambda g, q: g <= k))
    sel = lambda geom, r: f"s[{S_SEL+2*(4*geom+r)}:{S_SEL+2*(4*geom+r)+1}]"
    gm = lambda k: f"s[{S_GM+2*k}:{S_GM+2*k+1}]"
    cs += L(f"v_mov_b32 v{VT}, 0xffff\nv_mov_b32 v{VT+1}, 0xffff0000")
    for geom in range(2):
        for pr_ in range(2):
            d = VPM + 2 * geom + pr_
            cs += L(f"""
                v_cndmask_b32 v{d}, 0, v{VT}, {sel(geom, 2*pr_)}
                v_cndmask_b32 v{VT+2}, 0, v{VT+1}, {sel(geom, 2*pr_+1)}
                v_or_b32 v{d}, v{d}, v{VT+2}
            """)
    cs += p2_setup(VT)
    SSO = T + 4
    cs += L(f"""
        v_add_u32 v{VT}, s{S_PL0}, v0
        v_subrev_u32 v{VT}, 16, v{VT}
        v_subrev_u32 v{VT+1}, 1, v{VT}
        v_cmp_gt_u32 vcc, 16, v0
        v_cndmask_b32 v{VT}, v{VT+1}, v{VT}, vcc
        v_cmp_ne_u32 vcc, 16, v0
        v_cndmask_b32 v{VT+1}, -1, v{VT}, vcc
        v_cmp_gt_u32 s[{S_M+2}:{S_M+3}], s{S_PEND}, v{VT+1}
        v_max_i32 v{VT}, 0, v{VT}
        v_min_u32 v{VT}, 0x3ff, v{VT}
        v_lshlrev_b32 v{VT}, 4, v{VT}
        s_lshl_b32 s{T+1}, s{S_W}, 9
        s_add_u32 s{T+1}, s{T+1}, {STL}
        v_lshlrev_b32 v{VT+1}, 2, v0
        v_add_u32 v{VT+1}, s{T+1}, v{VT+1}
        v_and_b32 v{VT+2}, 15, v0
        v_lshlrev_b32 v{VT+2}, 2, v{VT+2}
        v_add_u32 v{VT+2}, s{T+1}, v{VT+2}
        v_lshrrev_b32 v{VL}, 4, v0
        v_lshlrev_b32 v{VL}, 4, v{VL}
        v_add_u32 v{VL}, s{T+1}, v{VL}
        v_lshlrev_b32 v{VL+1}, 3, v0
        s_add_u32 s{T+2}, s{S_W}, 3
        s_and_b32 s{T+2}, s{T+2}, 3
        s_mul_i32 s{T+2}, s{T+2}, {3*XSLOT}
        s_add_u32 s{T+2}, s{T+2}, {XRING}
        v_add_u32 v{VL+2}, s{T+2}, v{VL+1}
        v_add_u32 v{VL+1}, s{S_XL}, v{VL+1}
        s_lshl_b32 s{SSO}, s{S_PAR}, 14
        s_add_u32 s{SSO}, s{SSO}, {WS_STATS}
    """)
    sl = [I(f"buffer_load_dwordx4 v[{VT+4}:{VT+7}], v{VT}, {R(R_WS)}, s{SSO} offen sc1", tag="stat")]
    cm = L(f"""
        v_xor_b32 v{VT+5}, v{VT+5}, v{VTAG}
        v_xor_b32 v{VT+7}, v{VT+7}, v{VTAG}
        v_or_b32 v{VT+5}, v{VT+5}, v{VT+7}
        v_cmp_ne_u32 vcc, 0, v{VT+5}
    """)
    c2 = check("As", sl, cm, "stat") + L(f"""
        v_rcp_f32 v{VT+5}, v{VT+6}
        v_cndmask_b32 v{VT+4}, 0, v{VT+4}, s[{S_M+2}:{S_M+3}]
        v_cndmask_b32 v{VT+5}, 0, v{VT+5}, s[{S_M+2}:{S_M+3}]
    """)
    c2.append(I(f"ds_write_b32 v{VT+1}, v{VT+4}", tag="stw"))
    c2.append(I(f"ds_write_b32 v{VT+1}, v{VT+5} offset:256", tag="stw"))
    c3 = [W("stw")]
    for t in range(3):
        c3.append(I(f"ds_read2_b32 v[{VNM+2*t}:{VNM+2*t+1}], v{VT+2} offset0:{16+16*t} offset1:{64+16+16*t}", tag="str"))
    RS0 = 124
    for t in range(4):
        c3.append(I(f"ds_read_b128 v[{RS0+4*t}:{RS0+4*t+3}], v{VL} offset:{256 + 64*t}", tag="str"))
    c4 = [W("str")]
    CB = {}
    for t in range(3):
        geom = 0 if t == 0 else 1
        cb = CB[t] = pool.get(8, 2)
        c4 += L(f"v_mul_f32 v{VNM+2*t+1}, {hx(f2u(ATT_C))}, v{VNM+2*t+1}")
        for e in range(4):
            c4 += smov(S_M, lanemask(lambda g, q: prevf(geom, e)(g, q) or curf(geom, e)(g, q)))
            c4 += L(f"""
                v_cndmask_b32 v{cb+e}, v{RS0+4*(t+1)+e}, v{RS0+4*t+e}, {sel(geom, e)}
                v_mul_f32 v{cb+e}, v{cb+e}, v{VNM+2*t+1}
                v_cndmask_b32 v{cb+e}, 0, v{cb+e}, s[{S_M}:{S_M+1}]
                v_cmp_lt_f32 vcc, 0, v{cb+e}
                v_mov_b32 v{cb+4+e}, {hx(f2u(-1e30))}
                v_cndmask_b32 v{cb+4+e}, v{cb+4+e}, 0, vcc
            """)

    vs = []
    dppb = "row_newbcast:0 row_mask:0xf bank_mask:0xf"
    KP = {}
    for t in (2, 1, 0):
        for e in range(20):
            vs += L(f"v_fmac_f32_dpp v{AK+20*t+e}, v{AK+e}, v{VNM+2*t} {dppb}")
        for e in range(10):
            vs += L(f"v_cvt_pk_bf16_f32 v{AK+20*t+e}, v{AK+20*t+2*e}, v{AK+20*t+2*e+1}")
        KP[t] = AK + 20 * t
        pool.put(AK + 20 * t + 10, 10)
        if t == 2:
            for c in range(5):
                vs.append(I(f"ds_write_b64 v{VL+1}, v[{KP[2]+2*c}:{KP[2]+2*c+1}] offset:{512*c}", tag="khw"))
            khw_end = len(vs)
    kfix_end = len(vs)
    POP = {}
    marks = {}

    def q_ops(t):
        r = []
        Q = AQ + 20 * t
        for e in range(20):
            r += L(f"v_fmac_f32_dpp v{Q+e}, v{AQ+e}, v{VNM+2*t} {dppb}")
        qo = [pool.get(4, 2) for _ in range(4)]
        for e in range(2):
            r += L(f"v_cvt_pk_bf16_f32 v{qo[0]+e}, v{Q+2*e}, v{Q+2*e+1}")
            r += L(f"v_cvt_pk_bf16_f32 v{qo[3]+2+e}, v{Q+16+2*e}, v{Q+16+2*e+1}")
        for c in (1, 2, 3):
            for e in range(2):
                a, b = qo[c - 1] + 2 + e, qo[c] + e
                r += L(f"""
                    v_cvt_pk_bf16_f32 v{a}, v{Q+4*c+2*e}, v{Q+4*c+2*e+1}
                    v_cndmask_b32 v{b}, v{a}, 0, {gm(c-1)}
                    v_cndmask_b32 v{a}, 0, v{a}, {gm(c-1)}
                """)
        pool.put(Q, 20)
        S = [pool.get(4, 2) for _ in range(8)]
        for h in range(4):
            for w in range(2):
                kp = KP[t - 1 + w] + 2 * h
                r.append(I(f"v_mfma_f32_16x16x32_bf16 v[{S[2*h+w]}:{S[2*h+w]+3}], v[{kp}:{kp+3}], v[{qo[h]}:{qo[h]+3}], 0"))
        for q in qo:
            pool.put(q, 4)
        pool.put(KP[t], 10)
        return r, S

    def xred(op, M):
        return L(f"""
            v_permlane32_swap_b32 v{M}, v{M+1}
            v_permlane32_swap_b32 v{M+2}, v{M+3}
            {op} v{M}, v{M}, v{M+1}
            {op} v{M+2}, v{M+2}, v{M+3}
            v_permlane16_swap_b32 v{M}, v{M+2}
            {op} v{M}, v{M}, v{M+2}
        """)

    def xbc(M):
        return L(f"""
            v_mov_b32 v{M+2}, v{M}
            v_permlane16_swap_b32 v{M}, v{M+2}
            v_mov_b32 v{M+1}, v{M}
            v_mov_b32 v{M+3}, v{M+2}
            v_permlane32_swap_b32 v{M}, v{M+1}
            v_permlane32_swap_b32 v{M+2}, v{M+3}
        """)

    def softmax(t, S):
        geom = 0 if t == 0 else 1
        cb = CB[t]
        r = []
        M = pool.get(4, 2)
        for h in range(4):
            a, b = S[2 * h], S[2 * h + 1]
            for e in range(4):
                r += L(f"v_cndmask_b32 v{b+e}, v{b+e}, v{a+e}, {sel(geom, e)}")
            for e in range(4):
                r += L(f"v_fma_f32 v{b+e}, v{b+e}, v{cb+e}, v{cb+4+e}")
            r += L(f"v_max3_f32 v{M+h}, v{b}, v{b+1}, v{b+2}\nv_max_f32 v{M+h}, v{M+h}, v{b+3}")
        r += xred("v_max_f32", M) + xbc(M)
        for h in range(4):
            b = S[2 * h + 1]
            for e in range(4):
                r += L(f"v_sub_f32 v{b+e}, v{b+e}, v{M+h}")
            for e in range(4):
                r += L(f"v_exp_f32 v{b+e}, v{b+e}")
        for h in range(4):
            a, b = S[2 * h], S[2 * h + 1]
            r += L(f"v_add_f32 v{M+h}, v{b}, v{b+1}\nv_add_f32 v{a}, v{b+2}, v{b+3}\nv_add_f32 v{M+h}, v{M+h}, v{a}")
        r += xred("v_add_f32", M) + L(f"v_rcp_f32 v{M}, v{M}") + xbc(M)
        for h in range(4):
            a, b = S[2 * h], S[2 * h + 1]
            for e in range(4):
                r += L(f"v_mul_f32 v{b+e}, v{b+e}, v{M+h}")
            for e in range(2):
                r += L(f"v_cvt_pk_bf16_f32 v{a+2+e}, v{b+2*e}, v{b+2*e+1}")
            for e in range(2):
                r += L(f"v_and_b32 v{a+e}, v{a+2+e}, v{VPM+2*geom+e}")
            for e in range(2):
                r += L(f"v_xor_b32 v{a+2+e}, v{a+2+e}, v{a+e}")
            POP[t, h] = a
            pool.put(b, 4)
        pool.put(M, 4)
        pool.put(cb, 8)
        return r

    for t in (2, 1, 0):
        if t == 0:
            KP[-1] = pool.get(10, 2)
            marks["khr"] = len(vs)
            for c in range(5):
                vs.append(I(f"ds_read_b64 v[{KP[-1]+2*c}:{KP[-1]+2*c+1}], v{VL+2} offset:{512*c}", tag="khr"))
        a, S = q_ops(t)
        if t == 0:
            k = next(n for n, i in enumerate(a) if i.kind == "mfma")
            a.insert(k, W("khr"))
        vs += a + softmax(t, S)
    pool.put(KP[-1], 10)
    GK = 572
    fv = paced(vs, GK, 899)
    for n, f in enumerate(fv):
        if n >= kfix_end:
            f.lo = max(f.lo, 602)
        f.hi = min(899, f.lo + opt("aslack", 12))
        f.lo -= opt("alead", 30)
        f.lo = max(f.lo, GK if n < kfix_end else 602)
    barB = bar[12]
    assert fv[khw_end].hi < barB - 2
    assert fv[marks["khr"]].lo > barB
    for f in tr:
        if f.ins.mn == "WAIT" and f.lo == barB - 2:
            f.ins.need.append("khw")
    misc = paced(stats_compute(), 46, 170, False) + paced(cs, 170, 400) + [F(i, 402, 410) for i in sl]
    misc += paced(c2, 470, 480) + paced(c3, 486, 494) + paced(c4, 500, 570)
    gB = opt("agb", 590)
    misc += [F(i, gB, gB + 4) for i in poll_ld(VPB, "pb")]
    misc += [F(i, gB + 50, gB + 54) for i in check("Ab", poll_ld(VPB), poll_cmp(), "pb")]
    NB = opt("anb", 9)
    bl = []
    for i in range(NB):
        bl += b_loads(i)
    bs = paced(bl, 660, 898)
    for f in bs:
        if f.ins.kind == "vload":
            f.lo = max(f.lo, 600 + 60 * (f.ins.wr[-1][1] // 48 + 1))
        f.hi = min(899, f.lo + 10)
    misc += bs
    st = {}
    body, left = schedule(mf, [waits, tr, dma, misc, ooo(fv, 28)], st)
    print("ATT sched", st, file=sys.stderr)
    body = stamped(body, {120: 4, 300: 5, 600: 6, 760: 7}, 60, 2)
    o += stamp(2) + pre + stamp(3) + body + stamp(8)

    NM2 = [pool.get(4, 2) for _ in range(3)]
    RS2 = [pool.get(4, 2) for _ in range(3)]
    WSV = pool.get(6, 2)
    tl = []
    BA = pool.get(1)
    tl += L(f"v_and_b32 v{BA}, 15, v0\nv_lshlrev_b32 v{BA}, 2, v{BA}")
    for t in range(3):
        tl.append(I(f"ds_read_b128 v[{NM2[t]}:{NM2[t]+3}], v{VL} offset:{64*(t+1)}", tag="nm2"))
        tl.append(I(f"ds_read_b128 v[{RS2[t]}:{RS2[t]+3}], v{VL} offset:{256 + 64*(t+1)}", tag="nm2"))
    for c in range(5):
        tl.append(I(f"ds_bpermute_b32 v{WSV+c}, v{BA}, v{AV+12*c}", tag="nm2"))
    rb = []
    for i in range(NB, 12):
        rb += b_loads(i)
    tl += rb[:7]
    rb = rb[7:]
    tl.append(W("nm2"))
    pr = lambda x: f"v[{x}:{x+1}]"

    def vfix(t):
        r = []
        for c in range(5):
            a = AV + 12 * c + 4 * t
            wb, hi = WSV + (c & ~1), c & 1
            for e in (0, 2):
                r += L(f"v_pk_fma_f32 {pr(a+e)}, {pr(NM2[t]+e)}, {pr(wb)}, {pr(a+e)} op_sel:[0,{hi},0] op_sel_hi:[1,{hi},1]")
            for e in (0, 2):
                r += L(f"v_pk_mul_f32 {pr(a+e)}, {pr(a+e)}, {pr(RS2[t]+e)}")
            for e in ((1, 0) if t == 0 else (0, 1)):
                r += L(f"v_cvt_pk_bf16_f32 v{AV+12*c+2*(t+1)+e}, v{a+2*e}, v{a+2*e+1}")
            while rb and rb[0].scalar:
                r.append(rb.pop(0))
            if rb:
                r.append(rb.pop(0))
        return r

    tl += vfix(1) + vfix(2)
    for c in range(5):
        tl.append(I(f"ds_write_b64 v{VL+1}, v[{AV+12*c+6}:{AV+12*c+7}] offset:{4096 + 512*c}", tag="vhw"))
    tl += vfix(0) + rb
    tl += poll_ld(VPE, "pe")
    tl += [W("vhw"), I("s_barrier")]
    for c in range(5):
        tl.append(I(f"ds_read_b64 v[{AV+12*c}:{AV+12*c+1}], v{VL+2} offset:{4096 + 512*c}", tag="vhr"))
        pool.put(AV + 12 * c + 8, 4)
    for t in range(3):
        pool.put(NM2[t], 4)
        pool.put(RS2[t], 4)
    OD = {}

    def pv(t):
        r = []
        for h in range(4):
            for w in range(2):
                d = OD[t, h, w] = pool.get(4, 2)
                vp = AV + 12 * (h + w) + 2 * t
                r.append(I(f"v_mfma_f32_16x16x32_bf16 v[{d}:{d+3}], v[{vp}:{vp+3}], v[{POP[t, h]}:{POP[t, h]+3}], 0"))
        return r

    def ostore(t):
        r = []
        ob = [POP[t, 0], POP[t, 1], POP[t, 2]]
        for c in range(5):
            if c == 0:
                s = OD[t, 0, 0]
            elif c == 4:
                s = OD[t, 3, 1]
            else:
                s = OD[t, c, 0]
                for e in range(4):
                    r += L(f"v_cndmask_b32 v{s+e}, v{s+e}, v{OD[t, c-1, 1]+e}, {gm(c-1)}")
            for e in range(2):
                r += L(f"v_cvt_pk_bf16_f32 v{ob[c//2]+2*(c % 2)+e}, v{s+2*e}, v{s+2*e+1}")
            if c in (1, 3):
                r.append(I(f"buffer_store_dwordx4 v[{ob[c//2]}:{ob[c//2]+3}], v{VOS+t}, {R(R_WS)}, s{S_OB + c//2} offen sc1"))
            if c == 4:
                r.append(I(f"buffer_store_dwordx2 v[{ob[2]}:{ob[2]+1}], v{VOS+t}, {R(R_WS)}, s{S_OB+2} offen sc1"))
        for h in range(4):
            for w in range(2):
                pool.put(OD[t, h, w], 4)
        return r

    tl += pv(2)
    m1 = pv(1)
    tl += schedule(m1, [[F(i, 1, 7) for i in ostore(2)]])[0]
    tl.append(W("vhr"))
    m0 = pv(0)
    tl += schedule(m0, [[F(i, 0, 7) for i in ostore(1)]])[0]
    tl += ostore(0)
    o += tl
    o += stamp(9)
    o += check("Ae", poll_ld(VPE), poll_cmp(), "pe", True)
    o += L("s_branch JOIN")
    return o


def head(code_bytes):
    T = S_T
    o = L("s_cmp_ge_u32 s2, 256\ns_cbranch_scc1 END")
    if STAMP:
        o += L("s_memrealtime s[42:43]")
    o += L(f"""
        s_load_dwordx16 s[4:19], s[0:1], 0
        s_load_dwordx4 s[20:23], s[0:1], 64
        v_readfirstlane_b32 s{S_W}, v0
        s_lshr_b32 s{T}, s2, 3
    """)
    if opt("cpf", 1):
        per = -(-code_bytes // (32 * 128))
        o += L(f"""
            s_getpc_b64 s[{T+1}:{T+2}]
            s_mul_i32 s{T+3}, s{T}, {per}
            v_min_u32 v1, {per-1}, v0
            v_add_u32 v1, s{T+3}, v1
            v_min_u32 v1, {code_bytes//128 - 1}, v1
            v_lshlrev_b32 v1, 7, v1
            v_mov_b32 v3, s{T+2}
            v_add_co_u32 v2, vcc, s{T+1}, v1
            v_addc_co_u32 v3, vcc, 0, v3, vcc
        """)
        o.append(I("global_load_dword v246, v[2:3], off", tag="cpf"))
    RA, RB_, RC, RD, RE = opt("ra", 0), opt("rb", 0), opt("rc", 0), opt("rd", 0), opt("re", 0)
    o += L(f"""
        s_lshr_b32 s{S_W}, s{S_W}, 6
        v_and_b32 v0, 63, v0
        s_and_b32 s{T+1}, s2, 3
        s_bfe_u32 s{S_PAR}, s2, 0x10002
        s_cmp_lt_u32 s{T}, 12
        s_cbranch_scc0 H_notatt
        s_lshr_b32 s{S_RB}, s{T}, 1
        s_and_b32 s{S_CG}, s{T}, 1
        s_lshl_b32 s{T+1}, s{T+1}, 1
        s_add_u32 s{S_CG}, s{S_CG}, s{T+1}
        s_mul_i32 s{T}, s{S_RB}, 171
        s_mul_i32 s{S_PL0}, s{S_W}, 47
        s_add_u32 s{S_PL0}, s{S_PL0}, s{T}
        s_sub_u32 s{S_PL0}, s{S_PL0}, 7
        s_add_u32 s{S_PEND}, s{T}, 171
        s_mul_i32 s{T}, s{S_RB}, {RC}
        s_mul_i32 s{T+1}, s{S_CG}, {RD}
        s_add_u32 s{T}, s{T}, {RE}
        s_branch H_common
        H_notatt:
        s_cmp_lt_u32 s{T}, 30
        s_cbranch_scc1 H_two
        s_lshl_b32 s{T+1}, s{T+1}, 1
        s_add_u32 s{T+1}, s{T+1}, s{T}
        s_sub_u32 s{T+1}, s{T+1}, 30
        s_mul_i32 s{S_RB}, s{S_PAR}, 6
        s_add_u32 s{S_RB}, s{S_RB}, s{T+1}
        s_mov_b32 s{S_CG}, 13
        s_movk_i32 s{F_UF}, 1000
        s_cmp_lt_u32 s{T+1}, 5
        s_cbranch_scc1 H_ffn
        s_mul_i32 s{S_RB}, s{S_PAR}, 3
        s_add_u32 s{S_RB}, s{S_RB}, s{T+1}
        s_sub_u32 s{S_RB}, s{S_RB}, 5
        s_branch HELPER
        H_two:
        s_mul_i32 s{T+1}, s{T+1}, 18
        s_add_u32 s{T+1}, s{T+1}, s{T}
        s_sub_u32 s{T+1}, s{T+1}, 12
        s_lshl_b32 s{F_UF}, s{T+1}, 1
        s_add_u32 s{F_UF}, s{F_UF}, s{S_PAR}
        s_mul_i32 s{T+2}, s{S_W}, 144
        s_add_u32 s{F_UF}, s{F_UF}, s{T+2}
        s_cmp_eq_u32 s{S_PAR}, 1
        s_cselect_b32 s{T+2}, 35, 42
        s_cmp_ge_u32 s{T+1}, s{T+2}
        s_cselect_b32 s{T+2}, s{T+2}, 0
        s_cselect_b32 s{S_CG}, 7, 0
        s_cselect_b32 s{T+4}, 1, 0
        s_sub_u32 s{T+1}, s{T+1}, s{T+2}
        s_cmp_eq_u32 s{S_PAR}, s{T+4}
        s_cselect_b32 s{T+2}, 43, 52
        s_cselect_b32 s{T+4}, 6, 5
        s_mul_i32 s{T+2}, s{T+2}, s{T+1}
        s_lshr_b32 s{T+2}, s{T+2}, 8
        s_add_u32 s{S_CG}, s{S_CG}, s{T+2}
        s_mul_i32 s{T+2}, s{T+2}, s{T+4}
        s_sub_u32 s{S_RB}, s{T+1}, s{T+2}
        s_sub_u32 s{T+4}, 11, s{T+4}
        s_mul_i32 s{T+4}, s{T+4}, s{S_PAR}
        s_add_u32 s{S_RB}, s{S_RB}, s{T+4}
        H_ffn:
        s_lshl_b32 s{T}, s{S_RB}, 2
        s_add_u32 s{T}, s{T}, s{S_W}
        s_cmp_ge_u32 s{T}, 22
        s_cselect_b32 s{S_PAR}, 1, 0
        s_cselect_b32 s{T+1}, 22, 0
        s_sub_u32 s{T}, s{T}, s{T+1}
        s_mul_i32 s{S_PL0}, s{T}, 47
        s_movk_i32 s{S_PEND}, 1024
        s_mul_i32 s{T}, s{S_RB}, {RA}
        s_mul_i32 s{T+1}, s{S_CG}, {RB_}
        H_common:
        s_add_u32 s{T}, s{T}, s{T+1}
        s_mul_i32 s{T+1}, s{T}, 205
        s_lshr_b32 s{T+1}, s{T+1}, 11
        s_mul_i32 s{T+1}, s{T+1}, 10
        s_sub_u32 s{T}, s{T}, s{T+1}
        s_lshl_b32 s{T}, s{T}, 2
        s_mov_b32 s{T+1}, 0x76543210
        s_movk_i32 s{T+2}, 0x98
        s_lshr_b64 s[{S_SEQ}:{S_SEQ+1}], s[{T+1}:{T+2}], s{T}
        s_sub_u32 s{T}, 40, s{T}
        s_lshl_b64 s[{T+1}:{T+2}], s[{T+1}:{T+2}], s{T}
        s_or_b64 s[{S_SEQ}:{S_SEQ+1}], s[{S_SEQ}:{S_SEQ+1}], s[{T+1}:{T+2}]
        s_add_u32 s{T}, s{S_PL0}, 47
        s_min_u32 s{S_PEND}, s{S_PEND}, s{T}
        s_min_u32 s{S_PEND}, s{S_PEND}, 0x400
    """)
    o += x_addr(4)
    o += L("s_waitcnt lgkmcnt(0)") + (L("s_mov_b32 s3, s42") if STAMP else []) + stamp(1)
    o += srd(R_X, P_X, None)
    if PRO[0] == "x0":
        o += x_dma(0)
    o += srd(R_XF, P_X, 2048 * 1280) + srd(R_WS, P_WS, WS_SIZE)
    o += L("s_cmp_lt_u32 s2, 96\ns_cbranch_scc0 H_fpro")
    return o


def finish(code, name, vm0=None, skip=0):
    rep = []
    check_chains(code)
    c = resolve_waits(code, vm0=vm0)
    c = fix_hazards(c, rep)
    if skip:
        k = next(n for n, i in enumerate(c) if i.text == skip)
        c = c[k:]
    n = sum(r[0] for r in rep)
    print(f"{name}: {len(c)} instrs, {len(rep)} hazard nops ({n} states)", file=sys.stderr)
    if opt("v", 0):
        for r in rep:
            print("   ", r, file=sys.stderr)
    return text_of(c)


def build(code_bytes):
    del SLOW[:]
    k = NAME + "_kernel"
    out = [f"; @launch grid=(256,1,1) block=(256,1,1) lds={LDS_BYTES}"]
    out.append('.amdgcn_target "amdgcn-amd-amdhsa--gfx950"\n.text')
    out.append(f".globl {k}\n.p2align 8\n.type {k},@function\n{k}:")
    hd = head(code_bytes)
    ap = L("H_apro:") + att_pro() + L("s_branch ATT")
    fp = L("H_fpro:") + ffn_pro()
    out.append(finish(hd + ap, "head"))
    out.append(finish(hd + fp + ffn(), "ffn", skip="H_fpro:"))
    role = I("buffer_inv sc1", tag="role")
    out.append(finish(phase2(), "phase2", vm0=[role]))
    out.append(finish(hd + ap + att(), "att", skip="ATT:"))
    out.append(finish(helper(), "helper"))
    out.append(finish(slowjoin(), "slowjoin"))
    out.append(finish(hd + fp + SINGLE[0], "single", skip="SINGLE:"))
    for s in SLOW:
        out.append(finish(s, "slow"))
    out.append("END:\n  s_endpgm\nCODE_END:")
    out.append(f""".section .rodata,"a"
.p2align 6
.amdhsa_kernel {k}
  .amdhsa_next_free_vgpr 512
  .amdhsa_next_free_sgpr 102
  .amdhsa_accum_offset 256
  .amdhsa_group_segment_fixed_size 0
  .amdhsa_kernarg_size 80
  .amdhsa_user_sgpr_count 2
  .amdhsa_user_sgpr_kernarg_segment_ptr 1
  .amdhsa_system_sgpr_workgroup_id_x 1
  .amdhsa_float_denorm_mode_32 3
.end_amdhsa_kernel""")
    return "\n".join(out) + "\n"


def code_size(text):
    import subprocess, tempfile, os
    d = tempfile.mkdtemp()
    open(d + "/a.s", "w").write(text)
    subprocess.run(["clang", "-x", "assembler", "-target", "amdgcn-amd-amdhsa", "-mcpu=gfx950", "-c",
                    d + "/a.s", "-o", d + "/a.o"], check=True)
    r = subprocess.run(["llvm-readelf", "-s", d + "/a.o"], capture_output=True, text=True).stdout
    for ln in r.splitlines():
        if ln.endswith(" CODE_END"):
            return int(ln.split()[1], 16)


if __name__ == "__main__":
    err, sys.stderr = sys.stderr, open("/dev/null", "w")
    n = code_size(build(65536))
    sys.stderr = err
    t = build(n)
    print("code bytes", n, file=sys.stderr)
    sys.stdout.write(t)
```

```python
import math, struct, sys
from asmlib import *

NAME = "recurrent_scan__sliding_local_dilated__glu_gated_geglu__prompt"
OPT = dict(a.lstrip("-").split("=") if "=" in a else (a.lstrip("-"), "1") for a in sys.argv[1:])
opt = lambda k, d: int(OPT.get(k, d))
STAMP = opt("s", 0) or ("amp" in OPT) or opt("fine", 0)
AMP = [int(x) for x in OPT["amp"].split(",")] if "amp" in OPT else None

FS = opt("fs", 128)
WS_STATS = 0x1000
WS_FB, WS_FH, WS_FO = 0x10000, 0x40000, 0x80000
WS_A2 = 0x100000
WS_B2 = 0xB00000
WS_STAMP = 0xE00000
WS_SIZE = 0x1000000
NKB = 74
NUNIT = 500
OOB = 0x40000000
LDS_BYTES = 163840
SPIN = 20000


def f2u(x):
    return struct.unpack("<I", struct.pack("<f", x))[0]


def hx(x):
    return "0x%x" % (x & 0xFFFFFFFF)


LOG2E = 1.4426950408889634
GK1 = -2.0 * math.sqrt(2.0 / math.pi) * LOG2E
GK2 = GK1 * 0.044715
ATT_C = (20 ** -0.5) * LOG2E

P_X, P_QKV, P_WO, P_WG, P_WU, P_WD, P_OUT, P_DBG, P_WS = 4, 6, 8, 12, 14, 16, 18, 20, 22
R_X, R_A, R_B, R_WS, R_XF = 24, 28, 32, 36, 40
S_W, S_PL0, S_PAR, S_PEND = 44, 45, 46, 47
S_XL, S_XO, S_WL, S_WO, S_WB = 48, 49, 50, 51, 52
S_RB, S_CG = 53, 54
S_T = 55
S_SEQ = 60
S_TAG, S_FO = 62, 63
S_BE, S_BL, S_BO, S_BT = 64, 65, 66, 67
S_CNT = 68
S_R = 70
VB, VTAG, VFL, VPB, VPE, VPL, VPD, VST = 248, 249, 250, 251, 252, 253, 254, 255
ST_B, ST_U = 124, 140
VXA, VXR = 176, 182
XRING = 81920
XSLOT = 6272
SLOW = []
SINGLE = []


def srd(r, p, nbytes, bias=0):
    o = []
    if bias:
        o += L(f"s_sub_u32 s{r}, s{p}, {bias}\ns_subb_u32 s{r+1}, s{p+1}, 0")
    else:
        o += L(f"s_mov_b64 s[{r}:{r+1}], s[{p}:{p+1}]")
    if nbytes is not None:
        o += L(f"s_mov_b32 s{r+2}, {hx(nbytes + bias)}")
    o += L(f"s_mov_b32 s{r+3}, 0x20000")
    return o


def R(r):
    return f"s[{r}:{r+3}]"


FINE = opt("fine", 0)
FMAP = {1: 0, 2: 1, 8: 24, 9: 25, 10: 26, 11: 27, 16: 52, 30: 53, 31: 54}


def fine(body, step, lane0):
    out, n, pend = [], 0, None
    for i in body:
        if i.kind == "mfma" and pend is not None and n == pend[0]:
            out += [W("fst"), I(f"v_writelane_b32 v{VST}, s0, {pend[1]}")]
            pend = None
        out.append(i)
        if i.kind == "mfma" and any(r[0] == "a" for r in i.rd):
            if n % step == 0:
                out.append(I("s_memtime s[0:1]", tag="fst"))
                pend = (n + 6, lane0 + n // step)
            n += 1
    return out


def stamp(i):
    if FINE:
        return L(f"s_memtime s[0:1]\ns_waitcnt lgkmcnt(0)\nv_writelane_b32 v{VST}, s0, {FMAP[i]}") if i in FMAP else []
    if not STAMP or (AMP and i not in AMP[1:] and i != 31):
        return []
    return L(f"s_memrealtime s[10:11]\ns_memtime s[0:1]\ns_waitcnt lgkmcnt(0)\n"
             f"v_writelane_b32 v{VST}, s10, {i}\nv_writelane_b32 v{VST}, s0, {i+32}")


def stamped(body, at, step=None, lane0=None):
    if FINE:
        return fine(body, step, lane0)
    if "ampg" in OPT and (lane0 == 32) == bool(opt("ampp2", 0)):
        g = [int(x) for x in OPT["ampg"].split(",")]
        at = {g[0]: 20, g[1]: 21}
    out, n = [], 0
    for i in body:
        if i.kind == "mfma":
            if n in at:
                out += stamp(at[n])
            n += 1
        out.append(i)
    return out


def stamp_out():
    if not STAMP:
        return []
    return stamp(30) + L("s_waitcnt vmcnt(0)") + stamp(31) + L(f"""
        v_writelane_b32 v{VST}, s3, {63 if FINE else 0}
        s_lshl_b32 s10, s2, 2
        s_add_u32 s10, s10, s{S_W}
        s_lshl_b32 s10, s10, 8
        s_add_u32 s10, s10, {hx(WS_STAMP)}
        v_lshlrev_b32 v1, 2, v0
        buffer_store_dword v{VST}, v1, {R(R_WS)}, s10 offen
    """) + amp_out()


def amp_out():
    if not AMP:
        return []
    o = L(f"""
        s_cmp_lg_u32 s2, {AMP[0]}
        s_cbranch_scc1 AMP_D
        s_cmp_lg_u32 s{S_W}, 0
        s_cbranch_scc1 AMP_D
        v_lshlrev_b32 v1, 4, v0
        s_mov_b32 s10, {hx(WS_STAMP + 0x80000)}
        buffer_load_dwordx4 v[4:7], v1, {R(R_WS)}, s10 offen sc1
        s_waitcnt vmcnt(0)
        v_subrev_u32 v4, s3, v4
        v_subrev_u32 v5, s3, v5
        v_subrev_u32 v6, s3, v6
        v_subrev_u32 v7, s3, v7
        v_min_i32 v8, v4, v5
        v_min3_i32 v8, v8, v6, v7
        v_max_i32 v9, v4, v5
        v_max3_i32 v9, v9, v6, v7
        s_mov_b32 s12, 0
        s_mov_b32 s13, 0
    """)
    for l in range(64):
        o += L(f"v_readlane_b32 s10, v8, {l}\nv_readlane_b32 s11, v9, {l}\ns_nop 1\ns_min_i32 s12, s12, s10\ns_max_i32 s13, s13, s11")
    o += L("s_add_u32 s12, s12, s3\ns_add_u32 s13, s13, s3")
    for d, k in ((14, AMP[1]), (15, AMP[2])):
        o += L(f"s_mov_b32 s{d}, s{12 + k - 100}" if k >= 100 else f"v_readlane_b32 s{d}, v{VST}, {k}")
    o += L(f"""
        v_readlane_b32 s16, v{VST}, 31
        s_nop 2
        s_sub_u32 s14, s15, s14
        s_min_u32 s14, s14, 5000
        s_mul_i32 s14, s14, 10
        s_add_u32 s14, s14, 600
        AMP_L:
        s_memrealtime s[10:11]
        s_waitcnt lgkmcnt(0)
        s_sub_u32 s10, s10, s16
        s_cmp_lt_u32 s10, s14
        s_cbranch_scc1 AMP_L
        AMP_D:
    """)
    return o


def rowof(vd, vp, vt):
    return L(f"""
        v_and_b32 v{vt}, 0x3ff, v{vp}
        v_lshrrev_b32 v{vd}, 10, v{vp}
        v_lshl_add_u32 v{vd}, v{vt}, 1, v{vd}
    """)


def spin(lab, loads, cmpv, back=None):
    o = L(f"{lab}:\ns_mov_b32 s{S_CNT}, {SPIN}\n{lab}_l:")
    o += [I(i.text) for i in loads] + L("s_waitcnt vmcnt(0)") + [I(i.text) for i in cmpv]
    o += L(f"""
        s_cbranch_vccz {lab}_d
        s_sub_u32 s{S_CNT}, s{S_CNT}, 1
        s_cbranch_scc0 {lab}_l
        {lab}_d:
    """)
    if back:
        o += L(f"s_branch {back}")
    return o


def check(lab, loads, cmpv, tag, publish=False):
    sp = spin("S" + lab, loads, cmpv, "B" + lab)
    if publish:
        sp[1:1] = L(f"s_waitcnt vmcnt(0)\nbuffer_store_dword v{VTAG}, v{VFL}, {R(R_WS)}, s{S_FO} offen sc1")
    SLOW.append(sp)
    return [W(tag)] + cmpv + [G(f"s_cbranch_vccnz S{lab}\nB{lab}:")]


def poll_ld(va, tag=None):
    return [I(f"buffer_load_dword v{VPD}, v{va}, {R(R_WS)}, 0 offen sc1", tag=tag)]


def poll_cmp():
    return L(f"v_cmp_ne_u32 vcc, v{VPD}, v{VTAG}")


def stats_loads():
    vb = ST_B
    a, a2, p, t = vb + 12, vb + 13, vb + 14, vb + 15
    o = L(f"""
        s_lshl_b32 s{S_T}, s2, 2
        s_add_u32 s{S_T}, s{S_T}, s{S_W}
        s_lshl_b32 s{S_T}, s{S_T}, 1
        v_lshrrev_b32 v{p}, 5, v0
        v_add_u32 v{p}, s{S_T}, v{p}
        v_mul_u32_u24 v{a}, 1280, v{p}
        v_and_b32 v{t}, 31, v0
        v_lshl_add_u32 v{a}, v{t}, 4, v{a}
        v_and_b32 v{t}, 16, v0
        v_lshl_add_u32 v{a2}, v{t}, 26, v{a}
        v_mov_b32 v{VTAG}, 0
    """)
    o += [I(f"buffer_load_dwordx4 v[{vb}:{vb+3}], v{a}, {R(R_XF)}, 0 offen", tag="st_ld"),
          I(f"buffer_load_dwordx4 v[{vb+4}:{vb+7}], v{a}, {R(R_XF)}, 0 offen offset:512", tag="st_ld"),
          I(f"buffer_load_dwordx4 v[{vb+8}:{vb+11}], v{a2}, {R(R_XF)}, 0 offen offset:1024", tag="st_ld"),
          I(f"buffer_load_dword v{VTAG}, v{VTAG}, {R(R_WS)}, 0 offen sc1", tag="st_ld")]
    return o


def half_reduce(v, t):
    o = []
    for c in ("quad_perm:[1,0,3,2]", "quad_perm:[2,3,0,1]", "row_half_mirror", "row_mirror"):
        o += L(f"v_add_f32_dpp v{v}, v{v}, v{v} {c} row_mask:0xf bank_mask:0xf")
    o += L(f"""
        v_mov_b32 v{t}, v{v}
        v_permlane16_swap_b32 v{v}, v{t}
        v_add_f32 v{v}, v{v}, v{t}
    """)
    return o


def rne_bf16(v):
    return L(f"v_cvt_pk_bf16_f32 v{v}, v{v}, v{v}\nv_lshlrev_b32 v{v}, 16, v{v}")


def stats_compute():
    vb, vu = ST_B, ST_U
    p, t = vb + 14, vb + 15
    s0, s1, q0, q1 = vu + 24, vu + 25, vu + 26, vu + 27
    o = [W("st_ld")]
    o += L(f"""
        s_mov_b32 s{S_T}, 1664525
        v_mul_lo_u32 v{VTAG}, v{VTAG}, s{S_T}
        v_add_u32 v{VTAG}, 1013904223, v{VTAG}
    """)
    for i in range(12):
        o += L(f"v_lshlrev_b32 v{vu+2*i}, 16, v{vb+i}\nv_and_b32 v{vu+2*i+1}, 0xffff0000, v{vb+i}")
    o += L(f"v_add_f32 v{s0}, v{vu}, v{vu+2}\nv_add_f32 v{s1}, v{vu+1}, v{vu+3}")
    for i in range(2, 12):
        o += L(f"v_add_f32 v{s0}, v{s0}, v{vu+2*i}\nv_add_f32 v{s1}, v{s1}, v{vu+2*i+1}")
    o += L(f"v_add_f32 v{s0}, v{s0}, v{s1}")
    o += half_reduce(s0, t)
    o += L(f"""
        v_and_b32 v{t}, 16, v0
        v_cmp_eq_u32 vcc, 0, v{t}
        v_mul_f32 v{s0}, {hx(f2u(-1.0/640))}, v{s0}
    """)
    for i in range(16):
        o += L(f"v_add_f32 v{vu+i}, v{vu+i}, v{s0}")
    o += L(f"v_cndmask_b32 v{s1}, 0, v{s0}, vcc")
    for i in range(16, 24):
        o += L(f"v_add_f32 v{vu+i}, v{vu+i}, v{s1}")
    o += L(f"v_mul_f32 v{q0}, v{vu}, v{vu}\nv_mul_f32 v{q1}, v{vu+1}, v{vu+1}")
    for i in range(1, 12):
        o += L(f"v_fmac_f32 v{q0}, v{vu+2*i}, v{vu+2*i}\nv_fmac_f32 v{q1}, v{vu+2*i+1}, v{vu+2*i+1}")
    o += L(f"v_add_f32 v{q0}, v{q0}, v{q1}")
    o += half_reduce(q0, t)
    o += L(f"v_mul_f32 v{q0}, {hx(f2u(1.0/640))}, v{q0}")
    o += rne_bf16(q0)
    o += L(f"v_add_f32 v{q0}, {hx(f2u(1e-5))}, v{q0}")
    o += rne_bf16(q0)
    o += L(f"v_sqrt_f32 v{q0}, v{q0}")
    d = vb
    o += L(f"""
        v_cvt_pk_bf16_f32 v{s0}, v{s0}, v{s0}
        v_lshlrev_b32 v{d}, 16, v{s0}
        v_cvt_pk_bf16_f32 v{q0}, v{q0}, v{q0}
        v_lshlrev_b32 v{d+2}, 16, v{q0}
        v_mov_b32 v{d+1}, v{VTAG}
        v_mov_b32 v{d+3}, v{VTAG}
        v_and_b32 v{t}, 1, v{p}
        v_lshrrev_b32 v{p}, 1, v{p}
        v_lshl_add_u32 v{p}, v{t}, 10, v{p}
        v_lshlrev_b32 v{p}, 4, v{p}
        v_and_b32 v{t}, 31, v0
        v_lshl_add_u32 v{p}, v{t}, 25, v{p}
        v_add_u32 v{p}, {WS_STATS}, v{p}
    """)
    o.append(I(f"buffer_store_dwordx4 v[{d}:{d+3}], v{p}, {R(R_WS)}, 0 offen sc1", tag="st_st"))
    if AMP:
        o += L(f"""
            s_lshl_b32 s{S_T}, s2, 2
            s_add_u32 s{S_T}, s{S_T}, {hx(WS_STAMP + 0x80000)}
            v_lshlrev_b32 v{t}, 24, v0
            v_mov_b32 v{s0}, s3
            buffer_store_dword v{s0}, v{t}, {R(R_WS)}, s{S_T} offen sc1
        """)
    return o


def p2_setup(vt):
    T = S_T
    sh = int(math.log2(FS))
    o = L(f"""
        v_lshlrev_b32 v{VB}, 4, v0
        s_bfe_u32 s{T}, s2, 0x30003
        s_mul_i32 s{T+1}, s{T}, {NKB*5120}
        s_add_u32 s{T+1}, s{T+1}, {hx(WS_B2)}
        s_mul_i32 s{T+2}, s{S_W}, 7
        s_mul_i32 s{S_BE}, s{T+2}, 5120
        s_add_u32 s{S_BE}, s{S_BE}, s{T+1}
        s_min_u32 s{T+3}, s{T+2}, 20
        s_mul_i32 s{S_BL}, s{T+3}, 5120
        s_add_u32 s{S_BL}, s{S_BL}, s{T+1}
        s_add_u32 s{S_BL}, s{S_BL}, {28*5120}
        s_mul_i32 s{S_BO}, s{S_W}, {5*5120}
        s_add_u32 s{S_BO}, s{S_BO}, s{T+1}
        s_add_u32 s{S_BO}, s{S_BO}, {54*5120}
        s_mul_i32 s{T}, s{T}, 5
        s_lshr_b32 s{T}, s{T}, 2
        v_lshrrev_b32 v{vt}, 1, v0
        v_min_u32 v{vt}, 18, v{vt}
        s_mul_i32 s{T+1}, s{S_W}, 5
        s_add_u32 s{T+1}, s{T+1}, 40
        v_mov_b32 v{vt+1}, s{T+1}
        s_add_u32 s{T+1}, s{T+3}, 21
        v_mov_b32 v{vt+2}, s{T+1}
        v_cmp_gt_u32 vcc, 14, v{vt}
        v_cndmask_b32 v{vt+1}, v{vt+1}, v{vt+2}, vcc
        v_mov_b32 v{vt+2}, s{T+2}
        v_cmp_gt_u32 vcc, 7, v{vt}
        v_cndmask_b32 v{vt+1}, v{vt+1}, v{vt+2}, vcc
        v_add_u32 v{vt}, v{vt}, v{vt+1}
        v_and_b32 v{vt+1}, 1, v0
        v_lshl_add_u32 v{vt}, v{vt}, 4, v{vt+1}
        v_add_u32 v{vt}, s{T}, v{vt}
        v_lshlrev_b32 v{vt}, {sh}, v{vt}
        v_add_u32 v{VPB}, {hx(WS_FB)}, v{vt}
    """)
    o += L(f"""
        s_and_b32 s{T}, s2, 3
        s_lshl_b32 s{T}, s{T}, 2
        s_lshr_b32 s{T+1}, s2, 6
        s_add_u32 s{T}, s{T}, s{T+1}
        s_lshl_b32 s{T}, s{T}, 6
        s_mul_i32 s{T+1}, s{T}, 1395
        s_lshr_b32 s{T+1}, s{T+1}, 16
        v_bfe_u32 v{vt}, v0, 3, 2
        v_add_u32 v{vt+1}, s{T+1}, v{vt}
        s_add_u32 s{T+1}, s{T}, 63
        s_mul_i32 s{T+1}, s{T+1}, 1395
        s_lshr_b32 s{T+1}, s{T+1}, 16
        v_min_u32 v{vt+1}, s{T+1}, v{vt+1}
        s_bfe_u32 s{T+4}, s2, 0x10002
        s_mul_i32 s{T+1}, s{T+4}, 22
        v_add_u32 v{vt+1}, s{T+1}, v{vt+1}
        v_and_b32 v{vt+2}, 7, v0
        v_min_u32 v{VPE}, 6, v{vt+2}
        v_add_u32 v{VPE}, s{T+2}, v{VPE}
        v_lshrrev_b32 v{VPE}, 1, v{VPE}
        v_lshl_add_u32 v{VPE}, v{VPE}, 6, v{vt+1}
        v_lshlrev_b32 v{VPE}, {sh}, v{VPE}
        v_add_u32 v{VPE}, {hx(WS_FH)}, v{VPE}
        s_lshr_b32 s{T+1}, s{S_W}, 1
        s_sub_u32 s{T+1}, 6, s{T+1}
        v_min_u32 v{VPL}, s{T+1}, v{vt+2}
        v_add_u32 v{VPL}, s{T+3}, v{VPL}
        v_lshrrev_b32 v{VPL}, 1, v{VPL}
        v_lshl_add_u32 v{VPL}, v{VPL}, 6, v{vt+1}
        v_lshlrev_b32 v{VPL}, {sh}, v{VPL}
        v_add_u32 v{VPL}, {hx(WS_FH + 16*64*FS)}, v{VPL}
    """)

    def aw(d, x, t):
        return L(f"""
            s_mul_i32 s{d}, s{x}, 3067
            s_lshr_b32 s{d}, s{d}, 19
            s_mul_i32 s{t}, s{d}, 171
            s_sub_u32 s{t}, s{x}, s{t}
            s_add_u32 s{t}, s{t}, 7
            s_mul_i32 s{t}, s{t}, 1395
            s_lshr_b32 s{t}, s{t}, 16
            s_lshl_b32 s{d}, s{d}, 2
            s_add_u32 s{d}, s{d}, s{t}
        """)

    o += aw(T + 1, T, T + 2)
    o += L(f"v_add_u32 v{vt}, s{T+1}, v{vt}\ns_add_u32 s{T}, s{T}, 63")
    o += aw(T + 1, T, T + 2)
    o += L(f"""
        v_min_u32 v{vt}, s{T+1}, v{vt}
        s_mul_i32 s{T+4}, s{T+4}, 24
        s_lshl_b32 s{T+1}, s{S_W}, 7
        s_add_u32 s{T+4}, s{T+4}, s{T+1}
        v_add_u32 v{vt}, s{T+4}, v{vt}
        v_and_b32 v{vt+1}, 1, v0
        v_lshl_add_u32 v{vt}, v{vt+1}, 6, v{vt}
        v_lshlrev_b32 v{vt}, {sh}, v{vt}
        v_add_u32 v{vt}, {hx(WS_FO)}, v{vt}
        v_cmp_gt_u32 vcc, 32, v0
        v_cndmask_b32 v{VPL}, v{vt}, v{VPL}, vcc
    """)
    return o


def flag_addr(sidx):
    return L(f"""
        v_lshlrev_b32 v{VFL}, 24, v0
        v_add_u32 v{VFL}, s{sidx}, v{VFL}
    """)


def b_loads(i):
    base, k = ((S_BE, i), (S_BL, i - 7), (S_BO, i - 14))[0 if i < 7 else 1 if i < 14 else 2]
    b = 20 * (i % 12)
    o = L(f"s_add_u32 s{S_BT}, s{base}, {k*5120}")
    if i == 13:
        o = [G(f"s_add_u32 s{S_BT}, s{base}, {k*5120}\ns_cmp_ge_u32 s{S_W}, 2\ns_cselect_b32 s{S_BT}, {hx(OOB)}, s{S_BT}")]
    for c in range(5):
        if c == 4:
            o += L(f"s_add_u32 s{S_BT}, s{S_BT}, 4096")
        o.append(I(f"buffer_load_dwordx4 a[{b+4*c}:{b+4*c+3}], v{VB}, {R(R_WS)}, s{S_BT} offen offset:{(c % 4)*1024} sc1",
                   tag=("B", i)))
    return o


def side_job(s_kb, lab):
    ra, rb, t, u = S_R, S_R + 1, S_R + 2, S_R + 3
    so = S_R + 4
    lb = S_R + 8
    o = L(f"""
        s_cmp_ge_u32 s{s_kb}, 54
        s_cbranch_scc1 {lab}_o
        s_sub_u32 s{t}, s{s_kb}, 28
        s_lshr_b32 s{ra}, s{t}, 1
        s_lshl_b32 s{ra}, s{ra}, 7
        s_and_b32 s{t}, s{t}, 1
        s_lshl_b32 s{t}, s{t}, 5
        s_add_u32 s{ra}, s{ra}, s{t}
        s_add_u32 s{ra}, s{ra}, 64
        s_add_u32 s{rb}, s{ra}, 16
    """)
    o += srd(R_A, P_WD, 1728 * 1280)
    o += L(f"""
        s_branch {lab}_go
        {lab}_o:
        s_sub_u32 s{t}, s{s_kb}, 54
        s_mul_i32 s{u}, s{t}, 52
        s_lshr_b32 s{u}, s{u}, 8
        s_mul_i32 s{ra}, s{u}, 5
        s_sub_u32 s{t}, s{t}, s{ra}
        s_mul_i32 s{u}, s{u}, 160
        s_lshr_b32 s{ra}, s{t}, 1
        s_mul_i32 s{ra}, s{ra}, 80
        s_and_b32 s{rb}, s{t}, 1
        s_lshl_b32 s{rb}, s{rb}, 5
        s_add_u32 s{ra}, s{ra}, s{rb}
        s_add_u32 s{rb}, s{ra}, 16
        s_cmp_eq_u32 s{t}, 4
        s_cselect_b32 s{ra}, 64, s{ra}
        s_cselect_b32 s{rb}, 0x90, s{rb}
        s_add_u32 s{ra}, s{ra}, s{u}
        s_add_u32 s{rb}, s{rb}, s{u}
    """)
    o += srd(R_A, P_WO, 640 * 1280)
    o += L(f"""
        {lab}_go:
        s_mul_i32 s{so}, s{ra}, 1280
        s_add_u32 s{so+1}, s{so}, {8*1280}
        s_mul_i32 s{so+2}, s{rb}, 1280
        s_add_u32 s{so+3}, s{so+2}, {8*1280}
        s_mul_i32 s{lb}, s{S_W}, 40960
    """)
    o += unit_addr(1, 4, lb, 2)
    dm = []
    for l in range(10):
        for j in range(4):
            dm += L(f"s_add_u32 m0, s{lb}, {l*4096 + j*1024 - 128*l}")
            dm.append(I(f"buffer_load_dwordx4 v1, {R(R_A)}, s{so+j} offen offset:{128*l} lds", tag=(lab, "d", l)))
    o2 = L(f"""
        s_mul_i32 s{t}, s{s_kb}, 5120
        s_add_u32 s{t}, s{t}, {hx(WS_B2)}
        v_lshlrev_b32 v8, 4, v0
        v_add_u32 v8, s{t}, v8
    """)
    for l in range(10):
        b = 16 * l
        o2.append(W((lab, "d", l)))
        for c in range(4):
            for h in range(2):
                o2.append(I(f"ds_read_b64_tr_b16 a[{b+4*c+2*h}:{b+4*c+2*h+1}], v{4+c} offset:{l*4096+h*2048}", tag=(lab, "r", l)))
    for l in range(10):
        b = 16 * l
        o2.append(W((lab, "r", l)))
        for c in range(4):
            ct = 4 * l + c
            o2 += L(f"s_mov_b32 s{u}, {hx((ct//5)*NKB*5120 + (ct % 5)*1024)}")
            o2.append(I(f"buffer_store_dwordx4 a[{b+4*c}:{b+4*c+3}], v8, {R(R_WS)}, s{u} offen sc1", tag=(lab, "s")))
    return o, dm, o2


def unit_addr(vd, vtr, slb, vt):
    o = L(f"""
        v_lshrrev_b32 v{vd}, 3, v0
        v_mul_u32_u24 v{vd}, 1280, v{vd}
        v_bfe_u32 v{vt}, v0, 1, 2
        v_bfe_u32 v{vt+1}, v0, 4, 2
        v_xor_b32 v{vt}, v{vt}, v{vt+1}
        v_lshl_add_u32 v{vd}, v{vt}, 5, v{vd}
        v_and_b32 v{vt}, 1, v0
        v_lshl_add_u32 v{vd}, v{vt}, 4, v{vd}
        v_lshrrev_b32 v{vt}, 2, v0
        v_lshlrev_b32 v{vt}, 7, v{vt}
        v_and_b32 v{vt+1}, 3, v0
        v_lshl_add_u32 v{vt}, v{vt+1}, 3, v{vt}
        v_add_u32 v{vt}, s{slb}, v{vt}
        v_bfe_u32 v{vt+1}, v0, 3, 2
    """)
    for c in range(4):
        o += L(f"v_xor_b32 v{vtr+c}, {c}, v{vt+1}\nv_lshl_add_u32 v{vtr+c}, v{vtr+c}, 5, v{vt}")
    return o


def slowjoin():
    o = L(f"SLOWJOIN:\ns_mov_b32 s{S_FO}, {hx(OOB)}")
    o += spin("SJb", poll_ld(VPB), poll_cmp())
    for i in range(12):
        o += b_loads(i)
    o += stamp(9)
    o += spin("SJe", poll_ld(VPE), poll_cmp())
    o += L("s_branch JOIN")
    return o


def helper():
    KB = S_R + 10
    o = L("HELPER:")
    o += L("s_waitcnt lgkmcnt(0)") + (L("s_mov_b32 s3, s42") if STAMP else [])
    o += srd(R_XF, P_X, 2048 * 1280) + srd(R_WS, P_WS, WS_SIZE)
    o += stats_loads()
    o += L(f"s_lshl_b32 s{KB}, s{S_RB}, 2\ns_add_u32 s{KB}, s{KB}, s{S_W}\ns_add_u32 s{KB}, s{KB}, 50")
    a, dm, b = side_job(KB, "HJ")
    o += a + dm[:16] + stats_compute() + dm[16:] + b
    sh = int(math.log2(FS))
    o += p2_setup(10)
    o += L(f"""
        s_lshl_b32 s{S_T}, s{KB}, {4+sh}
        s_add_u32 s{S_T}, s{S_T}, {hx(WS_FB)}
        v_min_u32 v1, 9, v0
        v_lshlrev_b32 v1, {sh}, v1
        s_waitcnt vmcnt(0)
        buffer_store_dword v{VTAG}, v1, {R(R_WS)}, s{S_T} offen sc1
        v_mov_b32 v{VFL}, 0
    """)
    o += stamp(8)
    o += L(f"""
        s_cmp_lg_u32 s{KB}, 50
        s_cbranch_scc1 HG_done
        v_lshlrev_b32 v1, 4, v0
        v_add_u32 v1, {WS_STATS + 4}, v1
        v_add_u32 v2, 4096, v1
        v_add_u32 v3, 8192, v1
        v_add_u32 v4, 12288, v1
    """)
    lds_ = [I(f"buffer_load_dword v{8+i}, v{1 + i//4}, {R(R_WS)}, 0 offen offset:{1024*(i % 4)} sc1") for i in range(16)]
    cm = []
    for i in range(16):
        cm += L(f"v_xor_b32 v{8+i}, v{8+i}, v{VTAG}")
    for i in range(1, 16):
        cm += L(f"v_or_b32 v8, v8, v{8+i}")
    cm += L("v_cmp_ne_u32 vcc, 0, v8")
    o += spin("HG", lds_, cm)
    o += L(f"""
        v_lshlrev_b32 v1, 24, v0
        buffer_store_dword v{VTAG}, v1, {R(R_WS)}, 0 offen sc1
        HG_done:
        s_waitcnt vmcnt(0) lgkmcnt(0)
        s_branch SLOWJOIN
    """)
    return o


def phase2():
    AD, AS = 100, 4
    VW, VR, VXL, VXC, VG = 236, 239, 240, 241, 242
    VT = 1
    R_OUT = R_A
    sAt = S_R
    sA, sT, sRB = S_R + 4, S_R + 5, S_R + 6
    sE, sL, sO = S_R + 8, S_R + 9, S_R + 10
    XST = 122880
    o = L("JOIN:")
    o += stamp(10)
    o += L(f"""
        s_and_b32 s{sRB}, s2, 7
        s_lshl_b32 s{sRB}, s{sRB}, 2
        s_lshr_b32 s{sT}, s2, 6
        s_add_u32 s{sRB}, s{sRB}, s{sT}
        s_mul_i32 s{sA}, s{sRB}, {NKB*4096}
        s_add_u32 s{sA}, s{sA}, {hx(WS_A2)}
        s_mul_i32 s{sE}, s{S_W}, {7*4096}
        s_min_u32 s{sL}, s{sE}, {20*4096}
        s_add_u32 s{sL}, s{sL}, {28*4096}
        s_mul_i32 s{sO}, s{S_W}, {5*4096}
        s_add_u32 s{sO}, s{sO}, {54*4096}
        s_sub_u32 s{sO}, s{sO}, s{sL}
        s_sub_u32 s{sL}, s{sL}, s{sE}
        s_add_u32 s{sA}, s{sA}, s{sE}
    """)
    for t in range(4):
        o += L(f"""
            s_add_u32 s{sT}, s{S_W}, {t}
            s_and_b32 s{sT}, s{sT}, 3
            s_lshl_b32 s{sT}, s{sT}, 10
            s_add_u32 s{sAt+t}, s{sA}, s{sT}
        """)
    bufs = [("a", 240 + 4 * k) for k in range(4)] + [("v", 84 + 4 * k) for k in range(4)] + [("v", 4 + 4 * k) for k in range(20)]
    sp = [("v", 180 + 4 * k) for k in range(14)]
    RG = lambda b: f"{b[0]}[{b[1]}:{b[1]+3}]"
    TO = (1, 2, 3, 0)
    abuf = {}
    lb_ = sp + bufs[8:22]
    ob_ = bufs[:8] + sp[:12]
    for i in range(7):
        for t in range(4):
            abuf[i, t] = bufs[4 * i + t]
    for k, t in enumerate(TO):
        for i in range(7):
            abuf[7 + i, t] = lb_[7 * k + i]
        for i in range(5):
            abuf[14 + i, t] = ob_[5 * k + i]

    def a_load(i, t):
        k = i if i < 7 else i - 7 if i < 14 else i - 14
        r = L(f"s_add_u32 s{sA}, s{sAt+t}, {k*4096}")
        if i == 13:
            r = [G(f"s_add_u32 s{sA}, s{sAt+t}, {k*4096}\ns_cmp_ge_u32 s{S_W}, 2\ns_cselect_b32 s{sA}, {hx(OOB)}, s{sA}")]
        r.append(I(f"buffer_load_dwordx4 {RG(abuf[i, t])}, v{VB}, {R(R_WS)}, s{sA} offen sc1", tag=("A", i, t)))
        return r

    def adv(s):
        return L("\n".join(f"s_add_u32 s{sAt+t}, s{sAt+t}, s{s}" for t in range(4)))

    def mf(acc, i, t, c, first):
        b = 20 * (i % 12)
        d = acc + (t * 5 + c) * 4
        return I(f"v_mfma_f32_16x16x32_bf16 v[{d}:{d+3}], a[{b+4*c}:{b+4*c+3}], {RG(abuf[i, t])}, "
                 + ("0" if first else f"v[{d}:{d+3}]"))

    NP0, NP1 = opt("np0", 8), opt("np1", 12)
    eseq = [(i, t) for i in range(7) for t in range(4)]
    for i, t in eseq[:NP0]:
        o += a_load(i, t)
    su = []
    for t in range(1, 4):
        su += L(f"""
            s_add_u32 s{sT}, s{S_W}, {t}
            s_and_b32 s{sT}, s{sT}, 3
            s_mul_i32 s{sT}, s{sT}, 30720
            s_add_u32 s{sT}, s{sT}, {(t-1)*5120}
            v_add_u32 v{VW+t-1}, s{sT}, v{VB}
        """)
    su += L(f"""
        s_mul_i32 s{sT}, s{S_W}, 30720
        v_add_u32 v{VR}, s{sT}, v{VB}
        s_and_b32 s{sT}, s{sRB}, 15
        s_lshl_b32 s{sT}, s{sT}, 2
        s_add_u32 s{sT}, s{sT}, s{S_W}
        s_mul_i32 s{sT}, s{sT}, {16*2560}
        s_lshr_b32 s{sRB}, s{sRB}, 4
        s_mul_i32 s{sRB}, s{sRB}, 1280
        s_add_u32 s{sT}, s{sT}, s{sRB}
        s_bfe_u32 s{sRB}, s2, 0x30003
        s_mul_i32 s{sRB}, s{sRB}, 160
        s_add_u32 s{sT}, s{sT}, s{sRB}
        s_mul_i32 s{sRB}, s{S_W}, 3072
        s_add_u32 s{sRB}, s{sRB}, {XST}
    """)
    for j in range(3):
        su += L(f"""
            v_add_u32 v{VT}, {64*j}, v0
            v_mul_u32_u24 v{VT+1}, 205, v{VT}
            v_lshrrev_b32 v{VT+1}, 11, v{VT+1}
            v_mul_u32_u24 v{VT+1}, {2560-160}, v{VT+1}
            v_lshl_add_u32 v{VT+1}, v{VT}, 4, v{VT+1}
            v_add_u32 v{VG+j}, s{sT}, v{VT+1}
        """)
    su += L(f"""
        v_and_b32 v{VT}, 32, v0
        v_lshl_add_u32 v{VG+2}, v{VT}, 25, v{VG+2}
        v_and_b32 v{VT}, 15, v0
        v_mul_u32_u24 v{VT}, 160, v{VT}
        v_lshrrev_b32 v{VT+1}, 4, v0
        v_lshl_add_u32 v{VT}, v{VT+1}, 3, v{VT}
        v_add_u32 v{VXL}, s{sRB}, v{VT}
        v_add_u32 v{VXC}, s{sRB}, v{VB}
    """)
    su += srd(R_OUT, P_OUT, 2048 * 1280)
    o += su
    o.append(W("role"))
    o.append(I(f"buffer_store_dword v{VTAG}, v{VFL}, {R(R_WS)}, s{S_FO} offen sc1"))
    o += stamp(11)
    o += L("s_barrier")
    for i, t in eseq[NP0:NP1]:
        o += a_load(i, t)

    mfl, waits = [], []
    end, use, bfree = {}, {}, {}

    def emit(acc, i, t, c, first):
        use.setdefault(("A", i, t), len(mfl))
        use.setdefault(("B", i), len(mfl))
        bfree[("A", i, t)] = bfree[("B", i)] = len(mfl)
        mfl.append(mf(acc, i, t, c, first))

    def need(*tags):
        waits.append(F(W(*tags), len(mfl) - 1, len(mfl) - 1))

    for i in range(7):
        for tt in (0, 2):
            need(("A", i, tt), ("A", i, tt + 1))
            for c in range(5):
                emit(AD, i, tt, c, i == 0)
            for c in range(4, -1, -1):
                emit(AD, i, tt + 1, c, i == 0)
    for k, t in enumerate(TO):
        if k == 0:
            for i in range(7, 14):
                need(*([("A", i, t)] + ([("B", i)] if i >= 12 else [])))
                for c in range(5):
                    emit(AD, i, t, c, False)
                    end["d", t, c] = len(mfl) - 1
        else:
            need(*[("A", i, t) for i in range(7, 14)])
            for c in range(5):
                for i in range(7, 14):
                    emit(AD, i, t, c, False)
                end["d", t, c] = len(mfl) - 1
    gS = len(mfl)
    for k, t in enumerate(TO):
        need(*([("A", i, t) for i in range(14, 19)] + ([("B", i) for i in range(14, 19)] if k == 0 else [])))
        for c in range(5):
            for i in range(14, 19):
                emit(AS, i, t, c, i == 14)
            end["s", t, c] = len(mfl) - 1
    xs_ = []
    for j in range(3):
        xs_ += L(f"s_add_u32 m0, s{sRB}, {1024*j}")
        xs_.append(I(f"buffer_load_dwordx4 v{VG+j}, {R(R_XF)}, 0 offen lds", tag="xst"))
    al = lambda lst: [x for i, t in lst for x in a_load(i, t)]
    lt = lambda k: al([(7 + i, TO[k]) for i in range(7)])
    ot = lambda k: al([(14 + i, TO[k]) for i in range(5)])
    GC = opt("gc", 85)
    q1 = al(eseq[NP1:]) + b_loads(12) + poll_ld(VPL, "pl") + b_loads(13) + xs_ + b_loads(14) + adv(sL)
    q2 = lt(0) + lt(1) + b_loads(15) + lt(2) + b_loads(16) + lt(3) + adv(sO) + b_loads(17) + b_loads(18) + ot(0) + ot(1) + ot(2) + ot(3)
    ld = paced(q1, 0, GC - 1) + [F(i, GC, GC + 1) for i in stamp(12) + check("Pl", poll_ld(VPL), poll_cmp(), "pl") + stamp(13)]
    ld += paced(q2, GC + 2, opt("lend", 320))
    prevb = {}
    for i, t in eseq:
        prevb[abuf[i, t]] = ("A", i, t)
    for f in ld:
        f.hi = f.lo + 3
        tg = f.ins.tag
        if f.ins.kind == "vload" and isinstance(tg, tuple):
            if tg[0] == "B":
                fr = bfree["B", tg[1] - 12]
            else:
                p_ = prevb.get(abuf[tg[1], tg[2]])
                fr = bfree[p_] if p_ and p_ != tg else -1
                prevb[abuf[tg[1], tg[2]]] = tg
            f.lo = max(min(f.lo, use[tg] - opt("lead", 30)), fr, 0)
            f.hi = f.lo + 3
            assert f.hi < use[tg] - 1, (tg, f.lo, use[tg])
    for k in range(1, len(ld)):
        if ld[k].lo < ld[k - 1].lo and not ld[k].ins.scalar:
            pass
    lo = 10 ** 9
    for f in reversed(ld):
        if f.ins.kind == "salu" or f.ins.mn == "glue" and "cbranch" not in f.ins.text:
            f.lo = min(f.lo, lo)
        lo = f.lo
    hi = -1
    for f in ld:
        hi = max(hi, f.lo)
        f.hi = max(f.hi, hi)
    ex = []
    g = 0
    for t in (1, 2, 3):
        for c in range(5):
            d = AD + (t * 5 + c) * 4
            g = max(g + 3, end["d", t, c] + 5)
            ex.append(F(I(f"ds_write_b128 v{VW+t-1}, v[{d}:{d+3}] offset:{c*1024}", tag="xd"), g, g + 2))
    g += 6
    ex.append(F(W("xd", "xst"), g, g))
    ex.append(F(I("s_barrier"), g + 1, g + 1))
    VX = 84
    for tt in range(3):
        for c in range(5):
            d = AD + ((tt + 1) * 5 + c) * 4
            g += 1
            ex.append(F(I(f"ds_read_b128 v[{d}:{d+3}], v{VR} offset:{tt*5120 + c*1024}", tag="rd"), g, g + 4))
    gRD = max(g + 6, gS + 2)
    g = gRD
    for t in (1, 2, 3):
        for c in range(5):
            d = AS + (t * 5 + c) * 4
            g = max(g + 3, end["s", t, c] + 5)
            ex.append(F(I(f"ds_write_b128 v{VW+t-1}, v[{d}:{d+3}] offset:{15360 + c*1024}", tag="xs"), g, g + 2))
    g += 6
    ex.append(F(W("xs"), g, g))
    ex.append(F(I("s_barrier"), g + 1, g + 1))
    last = len(mfl) - 1
    for tt in range(3):
        for c in range(5):
            d = AS + ((tt + 1) * 5 + c) * 4
            ex.append(F(I(f"ds_read_b128 v[{d}:{d+3}], v{VR} offset:{15360 + tt*5120 + c*1024}", tag="rs"), g + 1, last))
    va = []
    for e in range(20):
        va += L(f"""
            v_add_f32 v{AD+20+e}, v{AD+20+e}, v{AD+40+e}
            v_add_f32 v{AD+e}, v{AD+e}, v{AD+60+e}
            v_add_f32 v{AD+e}, v{AD+e}, v{AD+20+e}
        """)
    XP = AD + 60
    for c in range(5):
        va.append(I(f"ds_read_b64 v[{XP+2*c}:{XP+2*c+1}], v{VXL} offset:{c*32}", tag="rx"))
    for e in range(20):
        va += L(f"""
            v_mul_f32 v{AD+20+e}, {hx(f2u(-LOG2E))}, v{AD+e}
            v_exp_f32 v{AD+20+e}, v{AD+20+e}
            v_add_f32 v{AD+20+e}, 1.0, v{AD+20+e}
            v_rcp_f32 v{AD+20+e}, v{AD+20+e}
            v_mul_f32 v{AD+e}, v{AD+e}, v{AD+20+e}
        """)
    va.append(W("rx"))
    for e in range(20):
        va += L(f"v_lshlrev_b32 v{AD+40+e}, 16, v{XP+e//2}" if e % 2 == 0 else f"v_and_b32 v{AD+40+e}, 0xffff0000, v{XP+e//2}")
    vs = ooo([F(W("rd"), gRD, gRD)] + [F(i, gRD, last) for i in va], 40)
    st = {}
    body, _ = schedule(mfl, [waits[1:], ex, ld, vs], st)
    print("P2 late sched", st, file=sys.stderr)
    o += [waits[0].ins] + stamped(body, {140: 14, gS: 15}, 20, 32) + stamp(16)
    o.append(W("rs"))
    pr = lambda x: f"v[{x}:{x+1}]"
    for e in range(0, 20, 2):
        o += L(f"v_pk_add_f32 {pr(AS+20+e)}, {pr(AS+20+e)}, {pr(AS+40+e)}\nv_pk_add_f32 {pr(AS+e)}, {pr(AS+e)}, {pr(AS+60+e)}")
    for c in range(5):
        for e in (4 * c, 4 * c + 2):
            o += L(f"v_pk_add_f32 {pr(AS+e)}, {pr(AS+e)}, {pr(AS+20+e)}")
        for e in (4 * c, 4 * c + 2):
            o += L(f"v_pk_fma_f32 {pr(AS+e)}, {pr(AS+e)}, {pr(AD+e)}, {pr(AD+40+e)}")
        o += L(f"""
            v_cvt_pk_bf16_f32 v{XP+2*c}, v{AS+4*c}, v{AS+4*c+1}
            v_cvt_pk_bf16_f32 v{XP+2*c+1}, v{AS+4*c+2}, v{AS+4*c+3}
        """)
        o.append(I(f"ds_write_b64 v{VXL}, v[{XP+2*c}:{XP+2*c+1}] offset:{c*32}", tag="ow"))
    o.append(W("ow"))
    for j in range(3):
        o.append(I(f"ds_read_b128 v[{180+4*j}:{183+4*j}], v{VXC} offset:{1024*j}", tag=("or", j)))
    for j in range(3):
        o.append(W(("or", j)))
        o.append(I(f"buffer_store_dwordx4 v[{180+4*j}:{183+4*j}], v{VG+j}, {R(R_OUT)}, 0 offen {OPT.get('ofl', '')}"))
    o += stamp_out()
    o += L("s_endpgm")
    return o


def xa(t, ks):
    b = (ks * 3 + t) * 4
    return f"a[{b}:{b+3}]"


def nib(dst, st, seq=S_SEQ):
    return L(f"s_bfe_u32 s{dst}, s{seq + st//8}, {hx((4 << 16) | (4*(st % 8)))}")


def x_addr(vt):
    o = L(f"""
        s_mul_i32 s{S_XL}, s{S_W}, {3*XSLOT}
        s_add_u32 s{S_XL}, s{S_XL}, {XRING}
        s_mul_i32 s{S_T}, s{S_PL0}, 2560
        s_mul_i32 s{S_T+1}, s{S_PAR}, 1280
        s_add_u32 s{S_T}, s{S_T}, s{S_T+1}
        s_mul_i32 s{R_X+2}, s{S_PEND}, 2560
        v_lshrrev_b32 v{vt}, 3, v0
        v_add_u32 v{vt+1}, 1, v{vt}
        v_lshrrev_b32 v{vt+1}, 1, v{vt+1}
        v_xor_b32 v{vt+1}, v{vt+1}, v0
        v_and_b32 v{vt+1}, 7, v{vt+1}
        v_mul_u32_u24 v{vt}, 2560, v{vt}
        v_lshl_add_u32 v{vt}, v{vt+1}, 4, v{vt}
        v_add_u32 v{VXA}, s{S_T}, v{vt}
        v_xor_b32 v{vt}, 64, v{vt}
        v_add_u32 v{vt}, s{S_T}, v{vt}
        v_add_u32 v{VXA+1}, {20480 - 1024}, v{vt}
        v_add_u32 v{VXA+2}, {40960 - 2048}, v{VXA}
        v_add_u32 v{VXA+3}, {61440 - 3072}, v{vt}
        v_add_u32 v{VXA+4}, {81920}, v{VXA}
        v_add_u32 v{VXA+5}, {102400 - 1024}, v{vt}
        v_min_u32 v{VXA}, {hx(OOB)}, v{VXA}
    """)
    return o


def x_setup2(vt):
    o = L(f"""
        v_and_b32 v{vt}, 15, v0
        v_bfe_u32 v{vt+1}, v0, 1, 3
        v_lshrrev_b32 v{vt+2}, 4, v0
        v_xor_b32 v{vt+1}, v{vt+1}, v{vt+2}
        v_lshlrev_b32 v{vt}, 7, v{vt}
        v_lshl_add_u32 v{vt}, v{vt+1}, 4, v{vt}
        v_add_u32 v{VXR}, s{S_XL}, v{vt}
        v_xor_b32 v{vt}, 64, v{vt}
        v_add_u32 v{VXR+1}, s{S_XL}, v{vt}
        v_and_b32 v{vt}, 31, v0
        v_lshlrev_b32 v{vt}, 2, v{vt}
        v_add_u32 v{vt}, s{S_XL}, v{vt}
        v_mov_b32 v{vt+1}, 0x3f803f80
    """)
    for s in range(3):
        o.append(I(f"ds_write_b32 v{vt}, v{vt+1} offset:{s*XSLOT}", tag="ones"))
    return o


def x_dma(st):
    o = nib(S_XO, st) + L(f"s_lshl_b32 s{S_XO}, s{S_XO}, 7")
    base = (st % 3) * XSLOT + 128
    for j in range(6):
        if j % 4 == 0:
            o.insert(len(o) - (1 if j == 0 else 0), I(f"s_add_u32 m0, s{S_XL}, {base + 1024*j}"))
        o.append(I(f"buffer_load_dwordx4 v{VXA+j}, {R(R_X)}, s{S_XO} offen offset:{1024*(j % 4)} lds", tag=("x", st)))
    return o


def x_read(st):
    return [I(f"ds_read_b128 {xa(t, 2*st+s)}, v{VXR+s} offset:{(st % 3)*XSLOT + t*2048}", tag=("xr", st))
            for s in range(2) for t in range(3)]


def gemm_streams(nst, ng, wdma, trread, mfma, extra, first):
    per = ng * 6
    mf, waits, tr, dma = [], [], [], []
    total = nst * ng
    pre = [W(("x", 0), "ones")] + x_read(0) + [W(("w", 0)), I("s_barrier")]
    pre += trread(0, 0, 0) + trread(0, 1, 1) + [W(("t", 0, 0), ("xr", 0))]
    bar = {0: -1}

    def window(s, lo, hi):
        x = list(first.get(s, []))
        if s + 2 < 10:
            x += x_dma(s + 2)
        if s + 2 < nst:
            x += wdma(s + 2)
        if s + 2 >= 10:
            hi = lo + (hi - lo) // 2
        return paced(x, lo, hi) + extra.get(s, [])

    dma += window(0, 0, (ng - 2) * 6 - 3)
    for k in range(total):
        st, g = divmod(k, ng)
        g0 = len(mf)
        mf += mfma(st, g, k % 3)
        if k + 1 < total:
            s1, g1 = divmod(k + 1, ng)
            need = [("t", s1, g1)]
            if g1 == 0 and s1 < 10:
                need.append(("xr", s1))
            waits.append(F(W(*need), g0 + 5, g0 + 5))
        if k + 2 < total:
            s2, g2 = divmod(k + 2, ng)
            rd = trread(s2, g2, (k + 2) % 3)
            if g2 == 0:
                need = [("w", s2)] + ([("x", s2)] if s2 < 10 else [])
                tr.append(F(W(*need), g0 - 2, g0 - 2))
                tr.append(F(I("s_barrier"), g0, g0))
                bar[s2] = g0
                if s2 < 10:
                    xr = x_read(s2)
                    rd = [rd[0], xr[0], rd[1], xr[1], rd[2], xr[2], rd[3], xr[3], xr[4], xr[5]]
                    tr += [F(r, g0 + i // 2, g0 + 5) for i, r in enumerate(rd)]
                else:
                    tr += [F(r, g0 + i, g0 + 4) for i, r in enumerate(rd)]
                dma += window(s2, g0 + (5 if s2 < 10 else 1), g0 + per - 3)
            else:
                tr += [F(r, g0 + i, g0 + (3 if g2 == ng - 1 else 4)) for i, r in enumerate(rd)]
    return pre, mf, waits, tr, dma, bar


def pf(va, r, lane0, n):
    i = I(f"buffer_load_dword v246, v{va}, {R(r)}, 0 offen")
    i.wr = []
    i.text = f"s_bfm_b64 exec, {n}, {lane0}\n  {i.text}\n  s_mov_b64 exec, -1"
    return [i] if opt("pf", 1) else []


def pf_addr(vd, sq, step, n0, mg, rowk, sh_, add1, vt):
    if not opt("pf", 1):
        return []
    return L(f"""
        v_and_b32 v{vt}, 31, v0
        v_mul_u32_u24 v{vt}, {step}, v{vt}
        v_add_u32 v{vt}, s{sq}, v{vt}
        v_lshrrev_b32 v{vt+1}, 5, v0
        v_mul_i32_i24 v{vt+2}, {-n0}, v{vt+1}
        v_add3_u32 v{vt}, v{vt}, v{vt+2}, 0
        v_add_u32 v{vt}, {n0}, v{vt}
        v_mul_i32_i24 v{vt+2}, {mg[1]-mg[0]}, v{vt+1}
        v_add_u32 v{vt+2}, {mg[0]}, v{vt+2}
        v_mul_u32_u24 v{vt+2}, v{vt+2}, v{vt}
        v_lshrrev_b32 v{vt+2}, 18, v{vt+2}
        v_mul_i32_i24 v{vd}, {rowk[1]-rowk[0]}, v{vt+1}
        v_add_u32 v{vd}, {rowk[0]}, v{vd}
        v_mul_i32_i24 v{vd}, v{vd}, v{vt+2}
        v_lshl_add_u32 v{vd}, v{vt}, {sh_}, v{vd}
        v_mul_u32_u24 v{vt+1}, {add1}, v{vt+1}
        v_add_u32 v{vd}, v{vd}, v{vt+1}
    """)


PRO = OPT.get("pro", "x0,w0,st,pf,x1,w1").split(",")


def prologue(wdma, pfi):
    d = {"x0": x_dma(0), "w0": wdma(0), "st": stats_loads(), "pf": pfi, "x1": x_dma(1), "w1": wdma(1)}
    return [i for k in PRO[(1 if PRO[0] == "x0" else 0):] for i in d[k]]


def a2_addr(vd, t, vt, lo_s=None):
    return L(f"""
        v_and_b32 v{vt}, 15, v0
        v_add_u32 v{vt+1}, {16*t - 1}, v{vt}
        v_add_u32 v{vt+1}, s{S_PL0}, v{vt+1}
        v_lshrrev_b32 v{vt+2}, 6, v{vt+1}
        v_mul_u32_u24 v{vt+2}, {NKB*4096}, v{vt+2}
        v_bfe_u32 v{vt+3}, v{vt+1}, 4, 2
        v_lshl_add_u32 v{vt+2}, v{vt+3}, 10, v{vt+2}
        v_and_b32 v{vt+3}, 15, v{vt+1}
        v_lshl_add_u32 v{vt+2}, v{vt+3}, 4, v{vt+2}
        v_lshrrev_b32 v{vt+3}, 4, v0
        v_lshl_add_u32 v{vt+2}, v{vt+3}, 8, v{vt+2}
        v_mov_b32 v{vt+3}, {hx(OOB)}
        v_cmp_gt_i32 vcc, s{S_PEND}, v{vt+1}
        v_cndmask_b32 v{vd}, v{vt+3}, v{vt+2}, vcc
        v_cmp_le_i32 vcc, s{lo_s}, v{vt+1}
        v_cndmask_b32 v{vd}, v{vt+3}, v{vd}, vcc
    """)


F_VWA = 208
F_VPF, F_RPF = 121, S_R + 18
PFW = [int(x) for x in OPT.get("pfw", "0,2,4,6").split(",")]
F_UO, F_US, F_UF, F_WB2 = S_R + 4, S_R + 5, S_R + 6, S_R + 7


def ffn_wdma(st):
    r = nib(S_WO, st % 10) + L(f"""
        s_mul_i32 s{S_WO}, s{S_WO}, {64*3456}
        s_add_u32 m0, s{S_WL}, {(st % 4)*16384}
        s_add_u32 s{S_WO}, s{S_WO}, s{S_WB if st < 10 else F_WB2}
    """)
    for j in range(4):
        rr = R_A if j < 2 else R_B
        r.append(I(f"buffer_load_dwordx4 v{F_VWA + (j & 1)}, {R(rr)}, s{S_WO} offen offset:{1024*j} lds", tag=("w", st)))
    return r


def ffn_pro():
    VT, VWA = 224, F_VWA
    o = L(f"""
        s_lshl_b32 s{S_WL}, s{S_W}, 12
        s_mul_i32 s{S_WB}, s{S_W}, {16*3456}
        s_lshl_b32 s{S_T}, s{S_CG}, 8
        s_add_u32 s{S_WB}, s{S_WB}, s{S_T}
        v_lshrrev_b32 v{VT}, 3, v0
        v_mul_u32_u24 v{VT}, 3456, v{VT}
        v_and_b32 v{VT+1}, 1, v0
        v_lshl_add_u32 v{VT}, v{VT+1}, 4, v{VT}
        v_bfe_u32 v{VT+1}, v0, 1, 2
        v_bfe_u32 v{VT+2}, v0, 4, 1
        v_xor_b32 v{VT+1}, v{VT+1}, v{VT+2}
        v_lshl_add_u32 v{VWA}, v{VT+1}, 5, v{VT}
        v_xor_b32 v{VWA+1}, 64, v{VWA}
        v_add_u32 v{VWA+1}, {8*3456 - 1024}, v{VWA+1}
    """)
    o += srd(R_A, P_WG, 640 * 3456) + srd(R_B, P_WU, 640 * 3456, 2048)
    pfi = L(f"""
        s_cmp_lt_u32 s{S_W}, 2
        s_cselect_b64 s[{F_RPF}:{F_RPF+1}], s[{P_WG}:{P_WG+1}], s[{P_WU}:{P_WU+1}]
        s_cselect_b32 s{S_T}, 0, 288
        s_sub_u32 s{S_T}, s{F_UF}, s{S_T}
        s_mov_b32 s{F_RPF+2}, {640*3456}
        s_mov_b32 s{F_RPF+3}, 0x20000
    """) + pf_addr(F_VPF, S_T, 288, 0, (18725, 20165), (-128, 128), 8, 128, VT) + pf(F_VPF, F_RPF, 3, 7)
    o += prologue(ffn_wdma, pfi)
    return o


def ffn():
    ACC = [4, 100]
    VWF, VTR, VHS, VC, VT = 196, 204, 1, 212, 224
    S_KB = S_R
    sh = int(math.log2(FS))
    acc = lambda p, gu, c, t: ACC[p] + (gu * 4 + c) * 12 + t * 4
    wbuf = lambda b: ("a", 240 + 8 * b) if b < 2 else ("v", VWF)
    o = L("FFN:")
    o += x_setup2(VT)
    o += L(f"""
        v_lshrrev_b32 v{VT}, 5, v0
        v_lshlrev_b32 v{VT}, 12, v{VT}
        v_bfe_u32 v{VT+1}, v0, 4, 1
        v_lshl_add_u32 v{VT}, v{VT+1}, 10, v{VT}
        v_bfe_u32 v{VT+1}, v0, 2, 2
        v_lshl_add_u32 v{VT}, v{VT+1}, 7, v{VT}
        v_and_b32 v{VT+1}, 3, v0
        v_lshl_add_u32 v{VT}, v{VT+1}, 3, v{VT}
        v_bfe_u32 v{VT+1}, v0, 3, 2
    """)
    for c in range(4):
        o += L(f"v_xor_b32 v{VTR+c}, {c}, v{VT+1}\nv_lshl_add_u32 v{VTR+c}, v{VTR+c}, 5, v{VT}")

    def trread(st, g, b):
        c, gu = g >> 1, g & 1
        k, r0 = wbuf(b)
        return [I(f"ds_read_b64_tr_b16 {k}[{r0+4*s+2*h}:{r0+4*s+2*h+1}], v{VTR+c} "
                  f"offset:{(st % 4)*16384 + s*8192 + gu*2048 + h*512}", tag=("t", st, g))
                for s in range(2) for h in range(2)]

    def mfma(st, g, b):
        c, gu = g >> 1, g & 1
        p, sl = divmod(st, 10)
        k, r0 = wbuf(b)
        r = []
        for t in range(3):
            d = acc(p, gu, c, t)
            for s in range(2):
                cin = "0" if (sl == 0 and s == 0) else f"v[{d}:{d+3}]"
                r.append(I(f"v_mfma_f32_16x16x32_bf16 v[{d}:{d+3}], {k}[{r0+4*s}:{r0+4*s+3}], {xa(t, 2*sl+s)}, {cin}"))
        return r

    UD, UA, UT = 100, 116, 117
    R_U = S_R + 14
    ULB, UCT, UTm = S_R + 8, S_R + 9, S_R + 10
    T = S_T
    us = L(f"""
        s_mul_i32 s{T}, s{F_UF}, 205
        s_lshr_b32 s{T}, s{T}, 11
        s_mul_i32 s{T+1}, s{T}, 10
        s_sub_u32 s{T+1}, s{F_UF}, s{T+1}
    """)
    us += [G(f"s_cmp_ge_u32 s{T}, 28\ns_cselect_b32 s{T+2}, 28, 0\ns_cselect_b32 s{T+3}, 64, 0")]
    us += L(f"""
        s_sub_u32 s{T+2}, s{T}, s{T+2}
        s_lshr_b32 s{F_UO}, s{T+2}, 1
        s_lshl_b32 s{F_UO}, s{F_UO}, 7
        s_and_b32 s{T+2}, s{T+2}, 1
        s_lshl_b32 s{T+2}, s{T+2}, 5
        s_add_u32 s{F_UO}, s{F_UO}, s{T+2}
        s_add_u32 s{F_UO}, s{F_UO}, s{T+3}
        s_mul_i32 s{F_UO}, s{F_UO}, 1280
        s_lshl_b32 s{T+2}, s{T+1}, 7
        s_add_u32 s{F_UO}, s{F_UO}, s{T+2}
        s_lshl_b32 s{UCT}, s{T+1}, 2
        s_mul_i32 s{F_US}, s{T}, 5120
        s_lshl_b32 s{T+2}, s{T+1}, 12
        s_add_u32 s{F_US}, s{F_US}, s{T+2}
        s_add_u32 s{F_US}, s{F_US}, {hx(WS_B2)}
        s_lshl_b32 s{T}, s{T}, 4
        s_add_u32 s{T}, s{T}, s{T+1}
        s_lshl_b32 s{T}, s{T}, {sh}
        s_add_u32 s{T}, s{T}, {hx(WS_FB)}
    """)
    us += [G(f"s_cmp_ge_u32 s{F_UF}, {NUNIT}\ns_cselect_b32 s{F_UO}, {hx(OOB)}, s{F_UO}\n"
             f"s_cselect_b32 s{F_US}, {hx(OOB)}, s{F_US}\ns_cselect_b32 s{F_UF}, {hx(OOB)}, s{T}")]
    us += L(f"s_add_u32 s{ULB}, s{S_WL}, 65536")
    us += srd(R_U, P_WD, 1728 * 1280)
    us += unit_addr(UA, UT, ULB, VT)
    us += [G(f"s_add_u32 s{F_WB2}, s{S_WB}, 128\ns_cmp_eq_u32 s{S_CG}, 13\ns_cselect_b32 s{F_WB2}, {hx(OOB)}, s{F_WB2}")]
    ud = []
    for j in range(4):
        ud += L(f"s_add_u32 m0, s{ULB}, {1024*j}\ns_add_u32 s{UTm}, s{F_UO}, {10240*j}")
        ud.append(I(f"buffer_load_dwordx4 v{UA}, {R(R_U)}, s{UTm} offen lds", tag="ud"))
    ur = [W("ud")]
    for c in range(4):
        for h in range(2):
            ur.append(I(f"ds_read_b64_tr_b16 v[{UD+4*c+2*h}:{UD+4*c+2*h+1}], v{UT+c} offset:{h*2048}", tag="ur"))
    ust = [W("ur")]
    for c in range(4):
        ust += L(f"""
            s_add_u32 s{T}, s{UCT}, {c}
            s_mul_i32 s{T}, s{T}, 52
            s_lshr_b32 s{T}, s{T}, 8
            s_mul_i32 s{T}, s{T}, {(NKB-1)*5120}
            s_add_u32 s{T}, s{T}, s{F_US}
        """)
        ust.append(I(f"buffer_store_dwordx4 v[{UD+4*c}:{UD+4*c+3}], v{VB}, {R(R_WS)}, s{T} offen offset:{1024*c} sc1", tag="us"))
    ufl = L(f"v_lshlrev_b32 v{VPD}, 24, v0") + [W("us"), I(f"buffer_store_dword v{VTAG}, v{VPD}, {R(R_WS)}, s{F_UF} offen sc1")]

    UW = opt("uw", 5)
    gU = (UW + 1) * 48 - 12 - 3
    extra = {UW: [F(i, gU - 8, gU) for i in ud]}
    first = {w: pf(F_VPF, F_RPF, *x) for w, x in zip(PFW, ((10, 9), (19, 13), (32, 16), (48, 13)))}
    pre, mf, waits, tr, dma, bar = gemm_streams(20, 8, ffn_wdma, trread, mfma, extra, first)

    cs = []
    for t in range(3):
        cs += a2_addr(VHS + t, t, VT, S_PL0)
        cs += L(f"""
            v_max_i32 v{VT+1}, 0, v{VT+1}
            v_min_u32 v{VT+1}, 0x3ff, v{VT+1}
            v_lshlrev_b32 v{VT+5+t}, 4, v{VT+1}
        """)
    cs += L(f"""
        s_mul_i32 s{S_KB}, s{S_PAR}, {16*NKB*4096}
        s_lshl_b32 s{T}, s{S_CG}, 13
        s_add_u32 s{S_KB}, s{S_KB}, s{T}
        s_add_u32 s{S_KB}, s{S_KB}, {hx(WS_A2)}
        s_add_u32 s{S_KB+1}, s{S_KB}, 4096
        s_add_u32 s{S_KB+2}, s{S_KB}, {28*4096}
        s_add_u32 s{S_KB+3}, s{S_KB}, {29*4096}
        s_lshl_b32 s{T}, s{S_CG}, 6
        s_lshl_b32 s{T+1}, s{S_RB}, 2
        s_add_u32 s{T}, s{T}, s{T+1}
        s_add_u32 s{T}, s{T}, s{S_W}
        s_lshl_b32 s{T}, s{T}, {sh}
        s_add_u32 s{T}, s{T}, {hx(WS_FH)}
        s_mov_b32 s{S_FO}, {16*64*FS}
    """) + flag_addr(T)
    SSO = S_R + 11
    cs += L(f"s_lshl_b32 s{SSO}, s{S_PAR}, 14\ns_add_u32 s{SSO}, s{SSO}, {WS_STATS}")
    sl = [I(f"buffer_load_dwordx4 v[{VC+4*t}:{VC+4*t+3}], v{VT+5+t}, {R(R_WS)}, s{SSO} offen sc1", tag="stat") for t in range(3)]
    cm = []
    for t in range(3):
        cm += L(f"v_xor_b32 v{VC+4*t+1}, v{VC+4*t+1}, v{VTAG}\nv_xor_b32 v{VC+4*t+3}, v{VC+4*t+3}, v{VTAG}")
    cm += L(f"""
        v_or3_b32 v{VT}, v{VC+1}, v{VC+3}, v{VC+5}
        v_or3_b32 v{VT}, v{VT}, v{VC+7}, v{VC+9}
        v_or_b32 v{VT}, v{VT}, v{VC+11}
        v_cmp_ne_u32 vcc, 0, v{VT}
    """)
    c2 = check("Fs", sl, cm, "stat")
    for t in range(3):
        b = VC + 4 * t
        c2 += L(f"""
            v_rcp_f32 v{b+1}, v{b+2}
            v_mul_f32 v{b+3}, v{b+2}, v{b+2}
            v_mul_f32 v{b+2}, v{b+1}, v{b+1}
            v_mul_f32 v{b+2}, v{b+2}, v{b+1}
            v_mul_f32 v{b+1}, {hx(f2u(GK1))}, v{b+1}
            v_mul_f32 v{b+2}, {hx(f2u(GK2))}, v{b+2}
        """)

    def epi(p, packed):
        r = []
        q = 0
        dp = "row_newbcast:0 row_mask:0xf bank_mask:0xf"
        pr = lambda x: f"v[{x}:{x+1}]"
        for hb in range(2):
            for t in (1, 2, 0):
                b = VC + 4 * t
                dst = acc(p, 1, 2 * hb, t)
                for ci in range(2):
                    c = 2 * hb + ci
                    Gt, U = acc(p, 0, c, t), acc(p, 1, c, t)
                    G0, U0 = acc(p, 0, c, 0), acc(p, 1, c, 0)
                    tm = VT + 4 * (q % 4)
                    q += 1
                    E4, E2 = range(4), (0, 2)
                    r += [I(f"v_fmac_f32_dpp v{Gt+e}, v{G0+e}, v{b} {dp}") for e in E4]
                    r += [I(f"v_fmac_f32_dpp v{U+e}, v{U0+e}, v{b} {dp}") for e in E4]
                    if not packed:
                        r += [I(f"v_mul_f32 v{tm+e}, v{Gt+e}, v{Gt+e}") for e in E4]
                        r += [I(f"v_fma_f32 v{tm+e}, v{tm+e}, v{b+2}, v{b+1}") for e in E4]
                        r += [I(f"v_mul_f32 v{tm+e}, v{tm+e}, v{Gt+e}") for e in E4]
                        r += [I(f"v_exp_f32 v{tm+e}, v{tm+e}") for e in E4]
                        r += [I(f"v_mul_f32 v{Gt+e}, v{Gt+e}, v{U+e}") for e in E4]
                        r += [I(f"v_fma_f32 v{tm+e}, v{tm+e}, v{b+3}, v{b+3}") for e in E4]
                        r += [I(f"v_rcp_f32 v{tm+e}, v{tm+e}") for e in E4]
                        r += [I(f"v_mul_f32 v{Gt+e}, v{Gt+e}, v{tm+e}") for e in E4]
                    else:
                        r += [I(f"v_pk_mul_f32 {pr(tm+e)}, {pr(Gt+e)}, {pr(Gt+e)}") for e in E2]
                        r += [I(f"v_pk_fma_f32 {pr(tm+e)}, {pr(tm+e)}, {pr(b+2)}, {pr(b)} op_sel:[0,0,1] op_sel_hi:[1,0,1]") for e in E2]
                        r += [I(f"v_pk_mul_f32 {pr(tm+e)}, {pr(tm+e)}, {pr(Gt+e)}") for e in E2]
                        r += [I(f"v_exp_f32 v{tm+e}, v{tm+e}") for e in E4]
                        r += [I(f"v_pk_mul_f32 {pr(Gt+e)}, {pr(Gt+e)}, {pr(U+e)}") for e in E2]
                        r += [I(f"v_pk_fma_f32 {pr(tm+e)}, {pr(tm+e)}, {pr(b+2)}, {pr(b+2)} op_sel:[0,1,1] op_sel_hi:[1,1,1]") for e in E2]
                        r += [I(f"v_rcp_f32 v{tm+e}, v{tm+e}") for e in (0, 2, 1, 3)]
                        r += [I(f"v_pk_mul_f32 {pr(Gt+e)}, {pr(Gt+e)}, {pr(tm+e)}") for e in E2]
                    r += L(f"v_cvt_pk_bf16_f32 v{dst+2*ci}, v{Gt}, v{Gt+1}\nv_cvt_pk_bf16_f32 v{dst+2*ci+1}, v{Gt+2}, v{Gt+3}")
                r.append(I(f"buffer_store_dwordx4 v[{dst}:{dst+3}], v{VHS+t}, {R(R_WS)}, s{S_KB+2*p+hb} offen sc1", tag=("h", p)))
        return r

    eflag = I(f"buffer_store_dword v{VTAG}, v{VFL}, {R(R_WS)}, 0 offen sc1")
    misc = paced(stats_compute(), 34, 190, False) + paced(us, 190, gU - 12) + paced(cs, gU - 30, gU + 50, False)
    misc += [F(i, gU + 50) for i in sl] + paced(p2_setup(VT), gU + 50, gU + 100, False)
    misc += paced(ur, gU + 100, gU + 112, False) + paced(ust, gU + 120, gU + 150, False)
    GE = 446
    misc += paced(c2, GE - 34, GE - 2)
    misc.append(F(G(f"s_cmp_eq_u32 s{S_CG}, 13\ns_cbranch_scc1 SINGLE"), GE - 1, GE - 1))
    gF = opt("fuf", 490)
    misc += [F(i, gF, gF + 4) for i in ufl]
    gB = opt("fgb", 570)
    misc += [F(i, gB, gB + 4) for i in poll_ld(VPB, "pb")]
    misc += [F(i, gB + 46, gB + 50) for i in check("Fb", poll_ld(VPB), poll_cmp(), "pb")]
    NB = opt("fnb", 9)
    bl = []
    for i in range(NB):
        bl += b_loads(i)
    bs = paced(bl, gB + 52, 958)
    for f in bs:
        if f.ins.kind == "vload":
            f.lo = max(f.lo, 480 + 48 * (f.ins.wr[-1][1] // 24 + 1))
        f.hi = min(959, f.lo + 4)
    misc += bs
    FE1 = opt("fe1", 910)
    e1 = epi(0, False)
    ep = paced(e1, GE, FE1)
    for f in ep:
        f.hi = min(FE1, f.lo + opt("fslack", 24))
        f.lo = max(GE, f.lo - 40)
        if any(r[0] == "v" and (r[1] - 4) % 48 >= 12 and r[1] < 100 for r in f.ins.rd if r[1] != 0 and isinstance(r[1], int) and r[1] > 3):
            f.lo = max(f.lo, GE + 12)
    st = {}
    body, left = schedule(mf, [waits, tr, dma, misc, ooo(ep, 28)], st)
    print("FFN sched", st, file=sys.stderr)
    ib = next(k for k, i in enumerate(body) if "SINGLE" in i.text)
    il = [k for k, i in enumerate(body) if i.kind == "mfma"][479]
    e1s = set(id(i) for i in e1)
    single = L("SINGLE:") + [i for i in body[ib + 1:il + 1] if id(i) not in e1s] + L("s_waitcnt vmcnt(0) lgkmcnt(0)")
    single += [ufl[0], ufl[2]] + epi(0, True) + L("s_waitcnt vmcnt(0)") + [eflag] + stamp(8) + L("s_branch SLOWJOIN")
    SINGLE[:] = [o + pre + body[:ib + 1] + single]
    body = stamped(body, {96: 4, 240: 5, 480: 6, 720: 7}, 48, 2)
    o += stamp(2) + pre + stamp(3) + body + stamp(8)
    tl = epi(1, True)
    n = len(tl)
    ins = {opt("fef", 5) * n // 100: [W(("h", 0)), eflag]}
    rb = []
    for i in range(NB, 12):
        rb += b_loads(i)
    cur = []
    k = 0
    nld = sum(1 for i in rb if i.kind == "vload")
    for i in rb:
        cur.append(i)
        if i.kind == "vload":
            ins.setdefault(4 + k * (n * 6 // 10) // max(nld, 1), []).extend(cur)
            cur = []
            k += 1
    ins.setdefault(n * 75 // 100, []).extend(poll_ld(VPE, "pe"))
    for k, i in enumerate(tl):
        o += ins.get(k, [])
        o.append(i)
    o += stamp(9)
    o += check("Fe", poll_ld(VPE), poll_cmp(), "pe", True)
    return o


class Pool:
    def __init__(self, regs):
        self.free = set(regs)

    def get(self, n, align=None):
        align = align or (2 if n > 1 else 1)
        for b in sorted(self.free):
            if b % align == 0 and all(b + i in self.free for i in range(n)):
                for i in range(n):
                    self.free.remove(b + i)
                return b
        raise ValueError("out of registers for %d (free %s)" % (n, sorted(self.free)))

    def put(self, b, n):
        for i in range(n):
            assert b + i not in self.free
            self.free.add(b + i)


def lanemask(f):
    m = 0
    for l in range(64):
        if f(l >> 4, l & 15):
            m |= 1 << l
    return m


A_VWA = 194
A_WB2, A_SEQB = S_R + 3, S_R + 4


def att_wdma(st):
    r = (nib(S_WO, st) if st < 10 else nib(S_WO, 2 * (st - 10), A_SEQB)) + L(f"""
        s_mul_i32 s{S_WO}, s{S_WO}, {64*3840}
        s_add_u32 m0, s{S_WL}, {(st % 4)*20480}
        s_add_u32 s{S_WO}, s{S_WO}, s{S_WB if st < 10 else A_WB2}
    """)
    for j in range(5):
        if j == 4:
            r += L(f"s_add_u32 m0, s{S_WL}, {(st % 4)*20480 + 4096}")
        r.append(I(f"buffer_load_dwordx4 v{A_VWA+j}, {R(R_A)}, s{S_WO} offen offset:{1024*(j % 4)} lds", tag=("w", st)))
    return r


def att_pro():
    VT = 216
    o = L(f"""
        s_mul_i32 s{S_WL}, s{S_W}, 5120
        s_and_b32 s{S_T}, s{S_W}, 1
        s_mul_i32 s{A_WB2}, s{S_T}, {32*3840}
        s_mul_i32 s{S_T}, s{S_CG}, 160
        s_add_u32 s{A_WB2}, s{A_WB2}, s{S_T}
        s_cmp_lt_u32 s{S_W}, 2
        s_cselect_b32 s{S_T}, 1280, 0
        s_add_u32 s{S_WB}, s{A_WB2}, s{S_T}
        s_movk_i32 s{S_T}, 3680
        s_movk_i32 s{S_T+1}, 15360
        v_mul_u32_u24 v{VT+3}, 205, v0
        v_lshlrev_b32 v{VT+4}, 4, v0
    """)
    o += srd(R_A, P_QKV, 640 * 3840)
    for j in range(5):
        o += L(f"""
            v_add_u32 v{VT}, {64*j*205}, v{VT+3}
            v_bfe_u32 v{VT+1}, v{VT}, 13, 1
            v_bfe_u32 v{VT+2}, v{VT}, 14, 1
            v_lshrrev_b32 v{VT}, 11, v{VT}
            v_sub_u32 v{VT+1}, v{VT+1}, v{VT+2}
            v_mad_u32_u24 v{VT}, v{VT}, s{S_T}, v{VT+4}
            v_mad_i32_i24 v{A_VWA+j}, v{VT+1}, s{S_T+1}, v{VT}
        """)
    o += L(f"v_add_u32 v{A_VWA+4}, 4096, v{A_VWA+4}")
    pfi = L(f"s_lshl_b32 s{S_T}, s2, 2\ns_add_u32 s{S_T}, s{S_T}, s{S_W}")
    pfi += pf_addr(199, S_T, 384, 768, (13108, 26215), (1280, 2560), 7, 2560, VT) + pf(199, R_A, 1, 8)
    o += prologue(att_wdma, pfi)
    return o


def att():
    AK, AQ, AV = 4, 64, 124
    VWF, VTR, VOS, VNM, VPM, VL = 184, 192, 1, 200, 206, 210
    VT = 168
    S_HG = S_CG
    S_OB = S_R
    S_GM = S_R + 6
    S_SEL = S_R + 12
    S_M = S_R + 28
    sh = int(math.log2(FS))
    STL = 157184
    wbuf = lambda b: ("a", 240 + 8 * b) if b < 2 else ("v", VWF)
    o = L("ATT:")
    o += x_setup2(VT)
    o += L(f"""
        v_lshrrev_b32 v{VT}, 5, v0
        v_lshlrev_b32 v{VT}, 4, v{VT}
        v_bfe_u32 v{VT+1}, v0, 2, 3
        v_add_u32 v{VT}, v{VT}, v{VT+1}
        v_mul_u32_u24 v{VT}, 160, v{VT}
        v_and_b32 v{VT+1}, 3, v0
        v_lshl_add_u32 v{VTR}, v{VT+1}, 3, v{VT}
        v_add_u32 v{VTR+1}, 40960, v{VTR}
    """)

    def gsc(st, g):
        return (g // 5, g % 5) if st < 10 else (g & 1, g >> 1)

    def trread(st, g, b):
        sec, c = gsc(st, g)
        k, r0 = wbuf(b)
        sl = st % 4
        return [I(f"ds_read_b64_tr_b16 {k}[{r0+4*s+2*h}:{r0+4*s+2*h+1}], v{VTR + (sl >> 1)} "
                  f"offset:{(sl & 1)*20480 + sec*10240 + (32*s + 8*h)*160 + c*32}", tag=("t", st, g))
                for s in range(2) for h in range(2)]

    def mfma(st, g, b):
        sec, c = gsc(st, g)
        k, r0 = wbuf(b)
        r = []
        for t in range(3):
            for s in range(2):
                wf = f"{k}[{r0+4*s}:{r0+4*s+3}]"
                if st < 10:
                    d = (AK, AQ)[sec] + t * 20 + c * 4
                    ks = 2 * st + s
                    ab = f"{wf}, {xa(t, ks)}"
                else:
                    d = AV + c * 12 + t * 4
                    ks = 4 * (st - 10) + 2 * sec + s
                    ab = f"{xa(t, ks)}, {wf}"
                cin = "0" if ks == 0 else f"v[{d}:{d+3}]"
                r.append(I(f"v_mfma_f32_16x16x32_bf16 v[{d}:{d+3}], {ab}, {cin}"))
        return r

    first = {w: pf(199, R_A, *x) for w, x in zip(PFW, ((9, 10), (19, 13), (32, 17)))}
    pre, mf, waits, tr, dma, bar = gemm_streams(15, 10, att_wdma, trread, mfma, {}, first)
    T = S_T
    pool = Pool([199] + list(range(213, 248)))
    cs = L(f"""
        s_add_u32 s{A_WB2}, s{A_WB2}, 2560
        s_and_b32 s{T}, s{S_W}, 2
        s_lshl_b32 s{T}, s{T}, 1
        s_lshr_b64 s[{A_SEQB}:{A_SEQB+1}], s[{S_SEQ}:{S_SEQ+1}], s{T}
        s_mul_i32 s{T+1}, s{S_RB}, 171
        s_max_i32 s{T+1}, s{T+1}, s{S_PL0}
    """)
    for t in range(3):
        cs += a2_addr(VOS + t, t, VT, T + 1)
    cs += L(f"""
        s_lshr_b32 s{S_OB}, s{S_HG}, 1
        s_mul_i32 s{S_OB}, s{S_OB}, {5*4096}
        s_mul_i32 s{T}, s{S_PAR}, {16*NKB*4096}
        s_add_u32 s{S_OB}, s{S_OB}, s{T}
        s_add_u32 s{S_OB}, s{S_OB}, {hx(WS_A2 + 54*4096)}
        s_and_b32 s{T+1}, s{S_HG}, 1
        s_lshl_b32 s{T+2}, s{T+1}, 3
        s_add_u32 s{S_OB+2}, s{S_OB}, {4*4096}
        s_add_u32 s{S_OB+2}, s{S_OB+2}, s{T+2}
        s_lshl_b32 s{T+1}, s{T+1}, 13
        s_add_u32 s{S_OB}, s{S_OB}, s{T+1}
        s_add_u32 s{S_OB+1}, s{S_OB}, 4096
        s_lshl_b32 s{T}, s{S_HG}, 6
        s_mul_i32 s{T+1}, s{S_PAR}, 24
        s_add_u32 s{T}, s{T}, s{T+1}
        s_lshl_b32 s{T+1}, s{S_RB}, 2
        s_add_u32 s{T}, s{T}, s{T+1}
        s_add_u32 s{T}, s{T}, s{S_W}
        s_lshl_b32 s{T}, s{T}, {sh}
        s_add_u32 s{T}, s{T}, {hx(WS_FO)}
        s_mov_b32 s{S_FO}, 0
    """) + flag_addr(T)
    prevf = lambda geom, r: (lambda g, q: 4 * g + r >= q + (8 if geom == 0 else 9))
    curf = lambda geom, r: (lambda g, q: 0 <= q - (4 * g + r) <= 7 and (geom == 1 or 4 * g + r >= 1))
    smov = lambda s, m: L(f"s_mov_b32 s{s}, {hx(m)}\ns_mov_b32 s{s+1}, {hx(m >> 32)}")
    for geom in range(2):
        for r in range(4):
            cs += smov(S_SEL + 2 * (4 * geom + r), lanemask(prevf(geom, r)))
    for k in range(3):
        cs += smov(S_GM + 2 * k, lanemask(lambda g, q: g <= k))
    sel = lambda geom, r: f"s[{S_SEL+2*(4*geom+r)}:{S_SEL+2*(4*geom+r)+1}]"
    gm = lambda k: f"s[{S_GM+2*k}:{S_GM+2*k+1}]"
    cs += L(f"v_mov_b32 v{VT}, 0xffff\nv_mov_b32 v{VT+1}, 0xffff0000")
    for geom in range(2):
        for pr_ in range(2):
            d = VPM + 2 * geom + pr_
            cs += L(f"""
                v_cndmask_b32 v{d}, 0, v{VT}, {sel(geom, 2*pr_)}
                v_cndmask_b32 v{VT+2}, 0, v{VT+1}, {sel(geom, 2*pr_+1)}
                v_or_b32 v{d}, v{d}, v{VT+2}
            """)
    cs += p2_setup(VT)
    SSO = T + 4
    cs += L(f"""
        v_add_u32 v{VT}, s{S_PL0}, v0
        v_subrev_u32 v{VT}, 16, v{VT}
        v_subrev_u32 v{VT+1}, 1, v{VT}
        v_cmp_gt_u32 vcc, 16, v0
        v_cndmask_b32 v{VT}, v{VT+1}, v{VT}, vcc
        v_cmp_ne_u32 vcc, 16, v0
        v_cndmask_b32 v{VT+1}, -1, v{VT}, vcc
        v_cmp_gt_u32 s[{S_M+2}:{S_M+3}], s{S_PEND}, v{VT+1}
        v_max_i32 v{VT}, 0, v{VT}
        v_min_u32 v{VT}, 0x3ff, v{VT}
        v_lshlrev_b32 v{VT}, 4, v{VT}
        s_lshl_b32 s{T+1}, s{S_W}, 9
        s_add_u32 s{T+1}, s{T+1}, {STL}
        v_lshlrev_b32 v{VT+1}, 2, v0
        v_add_u32 v{VT+1}, s{T+1}, v{VT+1}
        v_and_b32 v{VT+2}, 15, v0
        v_lshlrev_b32 v{VT+2}, 2, v{VT+2}
        v_add_u32 v{VT+2}, s{T+1}, v{VT+2}
        v_lshrrev_b32 v{VL}, 4, v0
        v_lshlrev_b32 v{VL}, 4, v{VL}
        v_add_u32 v{VL}, s{T+1}, v{VL}
        v_lshlrev_b32 v{VL+1}, 3, v0
        s_add_u32 s{T+2}, s{S_W}, 3
        s_and_b32 s{T+2}, s{T+2}, 3
        s_mul_i32 s{T+2}, s{T+2}, {3*XSLOT}
        s_add_u32 s{T+2}, s{T+2}, {XRING}
        v_add_u32 v{VL+2}, s{T+2}, v{VL+1}
        v_add_u32 v{VL+1}, s{S_XL}, v{VL+1}
        s_lshl_b32 s{SSO}, s{S_PAR}, 14
        s_add_u32 s{SSO}, s{SSO}, {WS_STATS}
    """)
    sl = [I(f"buffer_load_dwordx4 v[{VT+4}:{VT+7}], v{VT}, {R(R_WS)}, s{SSO} offen sc1", tag="stat")]
    cm = L(f"""
        v_xor_b32 v{VT+5}, v{VT+5}, v{VTAG}
        v_xor_b32 v{VT+7}, v{VT+7}, v{VTAG}
        v_or_b32 v{VT+5}, v{VT+5}, v{VT+7}
        v_cmp_ne_u32 vcc, 0, v{VT+5}
    """)
    c2 = check("As", sl, cm, "stat") + L(f"""
        v_rcp_f32 v{VT+5}, v{VT+6}
        v_cndmask_b32 v{VT+4}, 0, v{VT+4}, s[{S_M+2}:{S_M+3}]
        v_cndmask_b32 v{VT+5}, 0, v{VT+5}, s[{S_M+2}:{S_M+3}]
    """)
    c2.append(I(f"ds_write_b32 v{VT+1}, v{VT+4}", tag="stw"))
    c2.append(I(f"ds_write_b32 v{VT+1}, v{VT+5} offset:256", tag="stw"))
    c3 = [W("stw")]
    for t in range(3):
        c3.append(I(f"ds_read2_b32 v[{VNM+2*t}:{VNM+2*t+1}], v{VT+2} offset0:{16+16*t} offset1:{64+16+16*t}", tag="str"))
    RS0 = 124
    for t in range(4):
        c3.append(I(f"ds_read_b128 v[{RS0+4*t}:{RS0+4*t+3}], v{VL} offset:{256 + 64*t}", tag="str"))
    c4 = [W("str")]
    CB = {}
    for t in range(3):
        geom = 0 if t == 0 else 1
        cb = CB[t] = pool.get(8, 2)
        c4 += L(f"v_mul_f32 v{VNM+2*t+1}, {hx(f2u(ATT_C))}, v{VNM+2*t+1}")
        for e in range(4):
            c4 += smov(S_M, lanemask(lambda g, q: prevf(geom, e)(g, q) or curf(geom, e)(g, q)))
            c4 += L(f"""
                v_cndmask_b32 v{cb+e}, v{RS0+4*(t+1)+e}, v{RS0+4*t+e}, {sel(geom, e)}
                v_mul_f32 v{cb+e}, v{cb+e}, v{VNM+2*t+1}
                v_cndmask_b32 v{cb+e}, 0, v{cb+e}, s[{S_M}:{S_M+1}]
                v_cmp_lt_f32 vcc, 0, v{cb+e}
                v_mov_b32 v{cb+4+e}, {hx(f2u(-1e30))}
                v_cndmask_b32 v{cb+4+e}, v{cb+4+e}, 0, vcc
            """)

    vs = []
    dppb = "row_newbcast:0 row_mask:0xf bank_mask:0xf"
    KP = {}
    for t in (2, 1, 0):
        for e in range(20):
            vs += L(f"v_fmac_f32_dpp v{AK+20*t+e}, v{AK+e}, v{VNM+2*t} {dppb}")
        for e in range(10):
            vs += L(f"v_cvt_pk_bf16_f32 v{AK+20*t+e}, v{AK+20*t+2*e}, v{AK+20*t+2*e+1}")
        KP[t] = AK + 20 * t
        pool.put(AK + 20 * t + 10, 10)
        if t == 2:
            for c in range(5):
                vs.append(I(f"ds_write_b64 v{VL+1}, v[{KP[2]+2*c}:{KP[2]+2*c+1}] offset:{512*c}", tag="khw"))
            khw_end = len(vs)
    kfix_end = len(vs)
    POP = {}
    marks = {}

    def q_ops(t):
        r = []
        Q = AQ + 20 * t
        for e in range(20):
            r += L(f"v_fmac_f32_dpp v{Q+e}, v{AQ+e}, v{VNM+2*t} {dppb}")
        qo = [pool.get(4, 2) for _ in range(4)]
        for e in range(2):
            r += L(f"v_cvt_pk_bf16_f32 v{qo[0]+e}, v{Q+2*e}, v{Q+2*e+1}")
            r += L(f"v_cvt_pk_bf16_f32 v{qo[3]+2+e}, v{Q+16+2*e}, v{Q+16+2*e+1}")
        for c in (1, 2, 3):
            for e in range(2):
                a, b = qo[c - 1] + 2 + e, qo[c] + e
                r += L(f"""
                    v_cvt_pk_bf16_f32 v{a}, v{Q+4*c+2*e}, v{Q+4*c+2*e+1}
                    v_cndmask_b32 v{b}, v{a}, 0, {gm(c-1)}
                    v_cndmask_b32 v{a}, 0, v{a}, {gm(c-1)}
                """)
        pool.put(Q, 20)
        S = [pool.get(4, 2) for _ in range(8)]
        for h in range(4):
            for w in range(2):
                kp = KP[t - 1 + w] + 2 * h
                r.append(I(f"v_mfma_f32_16x16x32_bf16 v[{S[2*h+w]}:{S[2*h+w]+3}], v[{kp}:{kp+3}], v[{qo[h]}:{qo[h]+3}], 0"))
        for q in qo:
            pool.put(q, 4)
        pool.put(KP[t], 10)
        return r, S

    def xred(op, M):
        return L(f"""
            v_permlane32_swap_b32 v{M}, v{M+1}
            v_permlane32_swap_b32 v{M+2}, v{M+3}
            {op} v{M}, v{M}, v{M+1}
            {op} v{M+2}, v{M+2}, v{M+3}
            v_permlane16_swap_b32 v{M}, v{M+2}
            {op} v{M}, v{M}, v{M+2}
        """)

    def xbc(M):
        return L(f"""
            v_mov_b32 v{M+2}, v{M}
            v_permlane16_swap_b32 v{M}, v{M+2}
            v_mov_b32 v{M+1}, v{M}
            v_mov_b32 v{M+3}, v{M+2}
            v_permlane32_swap_b32 v{M}, v{M+1}
            v_permlane32_swap_b32 v{M+2}, v{M+3}
        """)

    def softmax(t, S):
        geom = 0 if t == 0 else 1
        cb = CB[t]
        r = []
        M = pool.get(4, 2)
        for h in range(4):
            a, b = S[2 * h], S[2 * h + 1]
            for e in range(4):
                r += L(f"v_cndmask_b32 v{b+e}, v{b+e}, v{a+e}, {sel(geom, e)}")
            for e in range(4):
                r += L(f"v_fma_f32 v{b+e}, v{b+e}, v{cb+e}, v{cb+4+e}")
            r += L(f"v_max3_f32 v{M+h}, v{b}, v{b+1}, v{b+2}\nv_max_f32 v{M+h}, v{M+h}, v{b+3}")
        r += xred("v_max_f32", M) + xbc(M)
        for h in range(4):
            b = S[2 * h + 1]
            for e in range(4):
                r += L(f"v_sub_f32 v{b+e}, v{b+e}, v{M+h}")
            for e in range(4):
                r += L(f"v_exp_f32 v{b+e}, v{b+e}")
        for h in range(4):
            a, b = S[2 * h], S[2 * h + 1]
            r += L(f"v_add_f32 v{M+h}, v{b}, v{b+1}\nv_add_f32 v{a}, v{b+2}, v{b+3}\nv_add_f32 v{M+h}, v{M+h}, v{a}")
        r += xred("v_add_f32", M) + L(f"v_rcp_f32 v{M}, v{M}") + xbc(M)
        for h in range(4):
            a, b = S[2 * h], S[2 * h + 1]
            for e in range(4):
                r += L(f"v_mul_f32 v{b+e}, v{b+e}, v{M+h}")
            for e in range(2):
                r += L(f"v_cvt_pk_bf16_f32 v{a+2+e}, v{b+2*e}, v{b+2*e+1}")
            for e in range(2):
                r += L(f"v_and_b32 v{a+e}, v{a+2+e}, v{VPM+2*geom+e}")
            for e in range(2):
                r += L(f"v_xor_b32 v{a+2+e}, v{a+2+e}, v{a+e}")
            POP[t, h] = a
            pool.put(b, 4)
        pool.put(M, 4)
        pool.put(cb, 8)
        return r

    for t in (2, 1, 0):
        if t == 0:
            KP[-1] = pool.get(10, 2)
            marks["khr"] = len(vs)
            for c in range(5):
                vs.append(I(f"ds_read_b64 v[{KP[-1]+2*c}:{KP[-1]+2*c+1}], v{VL+2} offset:{512*c}", tag="khr"))
        a, S = q_ops(t)
        if t == 0:
            k = next(n for n, i in enumerate(a) if i.kind == "mfma")
            a.insert(k, W("khr"))
        vs += a + softmax(t, S)
    pool.put(KP[-1], 10)
    GK = 572
    fv = paced(vs, GK, 899)
    for n, f in enumerate(fv):
        if n >= kfix_end:
            f.lo = max(f.lo, 602)
        f.hi = min(899, f.lo + opt("aslack", 12))
        f.lo -= opt("alead", 30)
        f.lo = max(f.lo, GK if n < kfix_end else 602)
    barB = bar[12]
    assert fv[khw_end].hi < barB - 2
    assert fv[marks["khr"]].lo > barB
    for f in tr:
        if f.ins.mn == "WAIT" and f.lo == barB - 2:
            f.ins.need.append("khw")
    misc = paced(stats_compute(), 46, 170, False) + paced(cs, 170, 400) + [F(i, 402, 410) for i in sl]
    misc += paced(c2, 470, 480) + paced(c3, 486, 494) + paced(c4, 500, 570)
    gB = opt("agb", 590)
    misc += [F(i, gB, gB + 4) for i in poll_ld(VPB, "pb")]
    misc += [F(i, gB + 50, gB + 54) for i in check("Ab", poll_ld(VPB), poll_cmp(), "pb")]
    NB = opt("anb", 9)
    bl = []
    for i in range(NB):
        bl += b_loads(i)
    bs = paced(bl, 660, 898)
    for f in bs:
        if f.ins.kind == "vload":
            f.lo = max(f.lo, 600 + 60 * (f.ins.wr[-1][1] // 48 + 1))
        f.hi = min(899, f.lo + 10)
    misc += bs
    st = {}
    body, left = schedule(mf, [waits, tr, dma, misc, ooo(fv, 28)], st)
    print("ATT sched", st, file=sys.stderr)
    body = stamped(body, {120: 4, 300: 5, 600: 6, 760: 7}, 60, 2)
    o += stamp(2) + pre + stamp(3) + body + stamp(8)

    NM2 = [pool.get(4, 2) for _ in range(3)]
    RS2 = [pool.get(4, 2) for _ in range(3)]
    WSV = pool.get(6, 2)
    tl = []
    BA = pool.get(1)
    tl += L(f"v_and_b32 v{BA}, 15, v0\nv_lshlrev_b32 v{BA}, 2, v{BA}")
    for t in range(3):
        tl.append(I(f"ds_read_b128 v[{NM2[t]}:{NM2[t]+3}], v{VL} offset:{64*(t+1)}", tag="nm2"))
        tl.append(I(f"ds_read_b128 v[{RS2[t]}:{RS2[t]+3}], v{VL} offset:{256 + 64*(t+1)}", tag="nm2"))
    for c in range(5):
        tl.append(I(f"ds_bpermute_b32 v{WSV+c}, v{BA}, v{AV+12*c}", tag="nm2"))
    rb = []
    for i in range(NB, 12):
        rb += b_loads(i)
    tl += rb[:7]
    rb = rb[7:]
    tl.append(W("nm2"))
    pr = lambda x: f"v[{x}:{x+1}]"

    def vfix(t):
        r = []
        for c in range(5):
            a = AV + 12 * c + 4 * t
            wb, hi = WSV + (c & ~1), c & 1
            for e in (0, 2):
                r += L(f"v_pk_fma_f32 {pr(a+e)}, {pr(NM2[t]+e)}, {pr(wb)}, {pr(a+e)} op_sel:[0,{hi},0] op_sel_hi:[1,{hi},1]")
            for e in (0, 2):
                r += L(f"v_pk_mul_f32 {pr(a+e)}, {pr(a+e)}, {pr(RS2[t]+e)}")
            for e in ((1, 0) if t == 0 else (0, 1)):
                r += L(f"v_cvt_pk_bf16_f32 v{AV+12*c+2*(t+1)+e}, v{a+2*e}, v{a+2*e+1}")
            while rb and rb[0].scalar:
                r.append(rb.pop(0))
            if rb:
                r.append(rb.pop(0))
        return r

    tl += vfix(1) + vfix(2)
    for c in range(5):
        tl.append(I(f"ds_write_b64 v{VL+1}, v[{AV+12*c+6}:{AV+12*c+7}] offset:{4096 + 512*c}", tag="vhw"))
    tl += vfix(0) + rb
    tl += poll_ld(VPE, "pe")
    tl += [W("vhw"), I("s_barrier")]
    for c in range(5):
        tl.append(I(f"ds_read_b64 v[{AV+12*c}:{AV+12*c+1}], v{VL+2} offset:{4096 + 512*c}", tag="vhr"))
        pool.put(AV + 12 * c + 8, 4)
    for t in range(3):
        pool.put(NM2[t], 4)
        pool.put(RS2[t], 4)
    OD = {}

    def pv(t):
        r = []
        for h in range(4):
            for w in range(2):
                d = OD[t, h, w] = pool.get(4, 2)
                vp = AV + 12 * (h + w) + 2 * t
                r.append(I(f"v_mfma_f32_16x16x32_bf16 v[{d}:{d+3}], v[{vp}:{vp+3}], v[{POP[t, h]}:{POP[t, h]+3}], 0"))
        return r

    def ostore(t):
        r = []
        ob = [POP[t, 0], POP[t, 1], POP[t, 2]]
        for c in range(5):
            if c == 0:
                s = OD[t, 0, 0]
            elif c == 4:
                s = OD[t, 3, 1]
            else:
                s = OD[t, c, 0]
                for e in range(4):
                    r += L(f"v_cndmask_b32 v{s+e}, v{s+e}, v{OD[t, c-1, 1]+e}, {gm(c-1)}")
            for e in range(2):
                r += L(f"v_cvt_pk_bf16_f32 v{ob[c//2]+2*(c % 2)+e}, v{s+2*e}, v{s+2*e+1}")
            if c in (1, 3):
                r.append(I(f"buffer_store_dwordx4 v[{ob[c//2]}:{ob[c//2]+3}], v{VOS+t}, {R(R_WS)}, s{S_OB + c//2} offen sc1"))
            if c == 4:
                r.append(I(f"buffer_store_dwordx2 v[{ob[2]}:{ob[2]+1}], v{VOS+t}, {R(R_WS)}, s{S_OB+2} offen sc1"))
        for h in range(4):
            for w in range(2):
                pool.put(OD[t, h, w], 4)
        return r

    tl += pv(2)
    m1 = pv(1)
    tl += schedule(m1, [[F(i, 1, 7) for i in ostore(2)]])[0]
    tl.append(W("vhr"))
    m0 = pv(0)
    tl += schedule(m0, [[F(i, 0, 7) for i in ostore(1)]])[0]
    tl += ostore(0)
    o += tl
    o += stamp(9)
    o += check("Ae", poll_ld(VPE), poll_cmp(), "pe", True)
    o += L("s_branch JOIN")
    return o


def head(code_bytes):
    T = S_T
    o = L("s_cmp_ge_u32 s2, 256\ns_cbranch_scc1 END")
    if STAMP:
        o += L("s_memrealtime s[42:43]")
    o += L(f"""
        s_load_dwordx16 s[4:19], s[0:1], 0
        s_load_dwordx4 s[20:23], s[0:1], 64
        v_readfirstlane_b32 s{S_W}, v0
        s_lshr_b32 s{T}, s2, 3
    """)
    if opt("cpf", 1):
        per = -(-code_bytes // (32 * 128))
        o += L(f"""
            s_getpc_b64 s[{T+1}:{T+2}]
            s_mul_i32 s{T+3}, s{T}, {per}
            v_min_u32 v1, {per-1}, v0
            v_add_u32 v1, s{T+3}, v1
            v_min_u32 v1, {code_bytes//128 - 1}, v1
            v_lshlrev_b32 v1, 7, v1
            v_mov_b32 v3, s{T+2}
            v_add_co_u32 v2, vcc, s{T+1}, v1
            v_addc_co_u32 v3, vcc, 0, v3, vcc
        """)
        o.append(I("global_load_dword v246, v[2:3], off", tag="cpf"))
    RA, RB_, RC, RD, RE = opt("ra", 0), opt("rb", 0), opt("rc", 0), opt("rd", 0), opt("re", 0)
    o += L(f"""
        s_lshr_b32 s{S_W}, s{S_W}, 6
        v_and_b32 v0, 63, v0
        s_and_b32 s{T+1}, s2, 3
        s_bfe_u32 s{S_PAR}, s2, 0x10002
        s_cmp_lt_u32 s{T}, 12
        s_cbranch_scc0 H_notatt
        s_lshr_b32 s{S_RB}, s{T}, 1
        s_and_b32 s{S_CG}, s{T}, 1
        s_lshl_b32 s{T+1}, s{T+1}, 1
        s_add_u32 s{S_CG}, s{S_CG}, s{T+1}
        s_mul_i32 s{T}, s{S_RB}, 171
        s_mul_i32 s{S_PL0}, s{S_W}, 47
        s_add_u32 s{S_PL0}, s{S_PL0}, s{T}
        s_sub_u32 s{S_PL0}, s{S_PL0}, 7
        s_add_u32 s{S_PEND}, s{T}, 171
        s_mul_i32 s{T}, s{S_RB}, {RC}
        s_mul_i32 s{T+1}, s{S_CG}, {RD}
        s_add_u32 s{T}, s{T}, {RE}
        s_branch H_common
        H_notatt:
        s_cmp_lt_u32 s{T}, 30
        s_cbranch_scc1 H_two
        s_lshl_b32 s{T+1}, s{T+1}, 1
        s_add_u32 s{T+1}, s{T+1}, s{T}
        s_sub_u32 s{T+1}, s{T+1}, 30
        s_mul_i32 s{S_RB}, s{S_PAR}, 6
        s_add_u32 s{S_RB}, s{S_RB}, s{T+1}
        s_mov_b32 s{S_CG}, 13
        s_movk_i32 s{F_UF}, 1000
        s_cmp_lt_u32 s{T+1}, 5
        s_cbranch_scc1 H_ffn
        s_mul_i32 s{S_RB}, s{S_PAR}, 3
        s_add_u32 s{S_RB}, s{S_RB}, s{T+1}
        s_sub_u32 s{S_RB}, s{S_RB}, 5
        s_branch HELPER
        H_two:
        s_mul_i32 s{T+1}, s{T+1}, 18
        s_add_u32 s{T+1}, s{T+1}, s{T}
        s_sub_u32 s{T+1}, s{T+1}, 12
        s_lshl_b32 s{F_UF}, s{T+1}, 1
        s_add_u32 s{F_UF}, s{F_UF}, s{S_PAR}
        s_mul_i32 s{T+2}, s{S_W}, 144
        s_add_u32 s{F_UF}, s{F_UF}, s{T+2}
        s_cmp_eq_u32 s{S_PAR}, 1
        s_cselect_b32 s{T+2}, 35, 42
        s_cmp_ge_u32 s{T+1}, s{T+2}
        s_cselect_b32 s{T+2}, s{T+2}, 0
        s_cselect_b32 s{S_CG}, 7, 0
        s_cselect_b32 s{T+4}, 1, 0
        s_sub_u32 s{T+1}, s{T+1}, s{T+2}
        s_cmp_eq_u32 s{S_PAR}, s{T+4}
        s_cselect_b32 s{T+2}, 43, 52
        s_cselect_b32 s{T+4}, 6, 5
        s_mul_i32 s{T+2}, s{T+2}, s{T+1}
        s_lshr_b32 s{T+2}, s{T+2}, 8
        s_add_u32 s{S_CG}, s{S_CG}, s{T+2}
        s_mul_i32 s{T+2}, s{T+2}, s{T+4}
        s_sub_u32 s{S_RB}, s{T+1}, s{T+2}
        s_sub_u32 s{T+4}, 11, s{T+4}
        s_mul_i32 s{T+4}, s{T+4}, s{S_PAR}
        s_add_u32 s{S_RB}, s{S_RB}, s{T+4}
        H_ffn:
        s_lshl_b32 s{T}, s{S_RB}, 2
        s_add_u32 s{T}, s{T}, s{S_W}
        s_cmp_ge_u32 s{T}, 22
        s_cselect_b32 s{S_PAR}, 1, 0
        s_cselect_b32 s{T+1}, 22, 0
        s_sub_u32 s{T}, s{T}, s{T+1}
        s_mul_i32 s{S_PL0}, s{T}, 47
        s_movk_i32 s{S_PEND}, 1024
        s_mul_i32 s{T}, s{S_RB}, {RA}
        s_mul_i32 s{T+1}, s{S_CG}, {RB_}
        H_common:
        s_add_u32 s{T}, s{T}, s{T+1}
        s_mul_i32 s{T+1}, s{T}, 205
        s_lshr_b32 s{T+1}, s{T+1}, 11
        s_mul_i32 s{T+1}, s{T+1}, 10
        s_sub_u32 s{T}, s{T}, s{T+1}
        s_lshl_b32 s{T}, s{T}, 2
        s_mov_b32 s{T+1}, 0x76543210
        s_movk_i32 s{T+2}, 0x98
        s_lshr_b64 s[{S_SEQ}:{S_SEQ+1}], s[{T+1}:{T+2}], s{T}
        s_sub_u32 s{T}, 40, s{T}
        s_lshl_b64 s[{T+1}:{T+2}], s[{T+1}:{T+2}], s{T}
        s_or_b64 s[{S_SEQ}:{S_SEQ+1}], s[{S_SEQ}:{S_SEQ+1}], s[{T+1}:{T+2}]
        s_add_u32 s{T}, s{S_PL0}, 47
        s_min_u32 s{S_PEND}, s{S_PEND}, s{T}
        s_min_u32 s{S_PEND}, s{S_PEND}, 0x400
    """)
    o += x_addr(4)
    o += L("s_waitcnt lgkmcnt(0)") + (L("s_mov_b32 s3, s42") if STAMP else []) + stamp(1)
    o += srd(R_X, P_X, None)
    if PRO[0] == "x0":
        o += x_dma(0)
    o += srd(R_XF, P_X, 2048 * 1280) + srd(R_WS, P_WS, WS_SIZE)
    o += L("s_cmp_lt_u32 s2, 96\ns_cbranch_scc0 H_fpro")
    return o


def finish(code, name, vm0=None, skip=0):
    rep = []
    check_chains(code)
    c = resolve_waits(code, vm0=vm0)
    c = fix_hazards(c, rep)
    if skip:
        k = next(n for n, i in enumerate(c) if i.text == skip)
        c = c[k:]
    n = sum(r[0] for r in rep)
    print(f"{name}: {len(c)} instrs, {len(rep)} hazard nops ({n} states)", file=sys.stderr)
    if opt("v", 0):
        for r in rep:
            print("   ", r, file=sys.stderr)
    return text_of(c)


def build(code_bytes):
    del SLOW[:]
    k = NAME + "_kernel"
    out = [f"; @launch grid=(256,1,1) block=(256,1,1) lds={LDS_BYTES}"]
    out.append('.amdgcn_target "amdgcn-amd-amdhsa--gfx950"\n.text')
    out.append(f".globl {k}\n.p2align 8\n.type {k},@function\n{k}:")
    hd = head(code_bytes)
    ap = L("H_apro:") + att_pro() + L("s_branch ATT")
    fp = L("H_fpro:") + ffn_pro()
    out.append(finish(hd + ap, "head"))
    out.append(finish(hd + fp + ffn(), "ffn", skip="H_fpro:"))
    role = I("buffer_inv sc1", tag="role")
    out.append(finish(phase2(), "phase2", vm0=[role]))
    out.append(finish(hd + ap + att(), "att", skip="ATT:"))
    out.append(finish(helper(), "helper"))
    out.append(finish(slowjoin(), "slowjoin"))
    out.append(finish(hd + fp + SINGLE[0], "single", skip="SINGLE:"))
    for s in SLOW:
        out.append(finish(s, "slow"))
    out.append("END:\n  s_endpgm\nCODE_END:")
    out.append(f""".section .rodata,"a"
.p2align 6
.amdhsa_kernel {k}
  .amdhsa_next_free_vgpr 512
  .amdhsa_next_free_sgpr 102
  .amdhsa_accum_offset 256
  .amdhsa_group_segment_fixed_size 0
  .amdhsa_kernarg_size 80
  .amdhsa_user_sgpr_count 2
  .amdhsa_user_sgpr_kernarg_segment_ptr 1
  .amdhsa_system_sgpr_workgroup_id_x 1
  .amdhsa_float_denorm_mode_32 3
.end_amdhsa_kernel""")
    return "\n".join(out) + "\n"


def code_size(text):
    import subprocess, tempfile, os
    d = tempfile.mkdtemp()
    open(d + "/a.s", "w").write(text)
    subprocess.run(["clang", "-x", "assembler", "-target", "amdgcn-amd-amdhsa", "-mcpu=gfx950", "-c",
                    d + "/a.s", "-o", d + "/a.o"], check=True)
    r = subprocess.run(["llvm-readelf", "-s", d + "/a.o"], capture_output=True, text=True).stdout
    for ln in r.splitlines():
        if ln.endswith(" CODE_END"):
            return int(ln.split()[1], 16)


if __name__ == "__main__":
    err, sys.stderr = sys.stderr, open("/dev/null", "w")
    n = code_size(build(65536))
    sys.stderr = err
    t = build(n)
    print("code bytes", n, file=sys.stderr)
    sys.stdout.write(t)
```
